```python
import torch

def _softmax(x, axis=-1):
    return torch.softmax(x, dim=axis)
def _gelu(x):
    return torch.nn.functional.gelu(x, approximate="tanh")
def _silu(x):
    return torch.nn.functional.silu(x)
def _sigmoid(x):
    return torch.sigmoid(x)
def _layernorm(x, axis=-1, eps=1e-5):
    m = x.mean(dim=axis, keepdim=True)
    v = x.var(dim=axis, keepdim=True, unbiased=False)
    return (x - m) / torch.sqrt(v + eps)
def _scatter_add(tgt, idx, src, axis=0):
    return tgt.clone().index_add_(axis, idx, src)
def _segment_sum(src, seg, n):
    out = torch.zeros((n,) + src.shape[1:], dtype=src.dtype)
    return out.index_add_(0, seg, src)
def _pad(x, pw):
    flat = tuple(v for pair in reversed(pw) for v in pair)
    return torch.nn.functional.pad(x, flat)

kernel_name = 'gated_mix__mha_block__dense_activation_squared_relu__prompt'

def setup_inputs():

    _w = (lambda a: (lambda t: t.to(torch.bfloat16) if t.is_floating_point() else t)(torch.as_tensor(a)))
    def _A_setup():
        B, S, D, H = 1, 2048, 640, 32
        return {
            "x": _w((lambda *s: torch.randn(*s, dtype=torch.bfloat16) * 0.05)(B, S, D)),
            "wqkv": _w((lambda *s: torch.randn(*s, dtype=torch.bfloat16) * 0.8)(D, 3 * D)),
            "wo": _w((lambda *s: torch.randn(*s, dtype=torch.bfloat16) * 0.1)(D, D)),
        }
    _A_in = _A_setup()

    def _B_setup():
        B, S, D, F = 1, 2048, 640, 1728
        return {
            "x": _w((lambda *s: torch.randn(*s, dtype=torch.bfloat16) * 0.05)(B, S, D)),
            "w1": _w((lambda *s: torch.randn(*s, dtype=torch.bfloat16) * 0.1)(D, F)),
            "b1": _w((lambda *s: torch.randn(*s, dtype=torch.bfloat16) * 0.1)(F)),
            "w2": _w((lambda *s: torch.randn(*s, dtype=torch.bfloat16) * 0.1)(F, D)),
            "b2": _w((lambda *s: torch.randn(*s, dtype=torch.bfloat16) * 0.05)(D)),
        }
    _B_in = _B_setup()

    return {
        "A_x": _A_in["x"],
        "A_wqkv": _A_in["wqkv"],
        "A_wo": _A_in["wo"],
        "B_x": _B_in["x"],
        "B_w1": _B_in["w1"],
        "B_b1": _B_in["b1"],
        "B_w2": _B_in["w2"],
        "B_b2": _B_in["b2"],
        "gate_w": _w((lambda *s: torch.randn(*s, dtype=torch.bfloat16) * 0.05)(640) * 16.0),
    }

def reference(A_x, A_wqkv, A_wo, B_x, B_w1, B_b1, B_w2, B_b2, gate_w):
    def _A_ref(x, wqkv, wo):
        B, S, D = x.shape
        H = 32
        Dh = D // H
        qkv = (lambda x, *d: x.permute(*d))((x @ wqkv).reshape(B, S, 3, H, Dh), 2, 0, 3, 1, 4)
        q, k, v = qkv[0], qkv[1], qkv[2]
        scores = torch.einsum("bhqd,bhkd->bhqk", q, k) * (Dh ** -0.5)
        p = _softmax(scores, axis=-1)
        o = torch.einsum("bhqk,bhkd->bhqd", p, v)
        return (lambda x, *d: x.permute(*d))(o, 0, 2, 1, 3).reshape(B, S, D) @ wo

    def _B_ref(x, w1, b1, w2, b2):
        h = torch.einsum("bsd,df->bsf", x, w1) + b1
        zero = torch.zeros_like(h)
        r = torch.where(h > zero, h, zero)
        h = r * r
        out = torch.einsum("bsf,fd->bsd", h, w2) + b2
        return out

    x = A_x
    g = _sigmoid((x * gate_w).sum(-1, keepdims=True))
    a = _A_ref(x, A_wqkv, A_wo)
    b = _B_ref(x, B_w1, B_b1, B_w2, B_b2)
    return g * a + (1 - g) * b
```

```python
import re


def vr(a, n=1):
    return f"v{a}" if n == 1 else f"v[{a}:{a + n - 1}]"


def sr(a, n=1):
    return f"s{a}" if n == 1 else f"s[{a}:{a + n - 1}]"


class Emit:
    def __init__(self):
        self.lines = []
        self.vm = []
        self.lg = []

    def i(self, txt):
        for ln in txt.strip().split("\n"):
            ln = ln.strip()
            if ln:
                self.lines.append(ln)

    def label(self, name):
        self.lines.append(name + ":")

    def vmem(self, txt, tag):
        self.i(txt)
        self.vm.append(tag)

    def lds(self, txt, tag):
        self.i(txt)
        self.lg.append(tag)

    @staticmethod
    def _count(lst, tags):
        if isinstance(tags, str):
            tags = [tags]
        last = -1
        for k, t in enumerate(lst):
            if t in tags:
                last = k
        if last < 0:
            return None
        return len(lst) - 1 - last

    def wait(self, vm=None, lg=None):
        parts = []
        if vm is not None:
            n = 0 if vm == "all" else self._count(self.vm, vm)
            if n is not None:
                n = min(n, 63)
                parts.append(f"vmcnt({n})")
                self.vm = self.vm[len(self.vm) - n:] if n else []
        if lg is not None:
            n = 0 if lg == "all" else self._count(self.lg, lg)
            if n is not None:
                n = min(n, 15)
                parts.append(f"lgkmcnt({n})")
                self.lg = self.lg[len(self.lg) - n:] if n else []
        if parts:
            self.i("s_waitcnt " + " ".join(parts))

    def snapshot(self):
        return list(self.vm), list(self.lg)

    def restore(self, snap):
        self.vm, self.lg = list(snap[0]), list(snap[1])

    def text(self):
        out = []
        for ln in self.lines:
            out.append(ln if ln.endswith(":") or ln.startswith(".") else "    " + ln)
        return "\n".join(out)


REG = re.compile(r"\b([vsa])(?:(\d+)|\[(\d+):(\d+)\])")
TRANS = ("v_exp_", "v_log_", "v_rcp_", "v_rsq_", "v_sqrt_", "v_sin_", "v_cos_")


def regs(op):
    out = set()
    for m in REG.finditer(op):
        k = m.group(1)
        if m.group(2) is not None:
            out.add((k, int(m.group(2))))
        else:
            out.update((k, x) for x in range(int(m.group(3)), int(m.group(4)) + 1))
    if re.search(r"\bvcc\b", op):
        out.add(("s", "vcc"))
    if re.search(r"\bexec\b", op):
        out.add(("s", "exec"))
    if re.search(r"\bm0\b", op):
        out.add(("s", "m0"))
    return out


def split_ops(rest):
    ops, depth, cur = [], 0, ""
    for ch in rest:
        if ch == "[":
            depth += 1
        if ch == "]":
            depth -= 1
        if ch == "," and depth == 0:
            ops.append(cur.strip())
            cur = ""
        else:
            cur += ch
    if cur.strip():
        ops.append(cur.strip())
    return ops


class Ins:
    def __init__(self, txt):
        self.txt = txt
        t = txt.split(";")[0].strip()
        p = t.split(None, 1)
        self.op = p[0]
        ops = split_ops(p[1]) if len(p) > 1 else []
        self.ops = ops
        op = self.op
        self.mfma = op.startswith("v_mfma") or op.startswith("v_smfmac")
        self.valu = op.startswith("v_") and not self.mfma
        self.trans = op.startswith(TRANS)
        self.salu = op.startswith("s_")
        self.ds = op.startswith("ds_")
        self.vmem = op.startswith("buffer_") or op.startswith("global_")
        self.dpp = "row_" in t or "quad_perm" in t or "_dpp" in op
        self.w, self.r = set(), set()
        self.states = 1
        self.passes = 0
        self.a = self.b = self.c = set()
        self.storedata = set()
        if op == "s_nop":
            self.states = int(ops[0], 0) + 1
        if self.mfma:
            self.passes = 4 if "16x16" in op else (16 if "_2b" in op else 8)
            self.w = regs(ops[0])
            self.a, self.b = regs(ops[1]), regs(ops[2])
            if op.startswith("v_smfmac"):
                self.c = set(self.w)
                self.b = self.b | regs(ops[3].split()[0])
            else:
                self.c = regs(ops[3].split()[0])
            self.r = self.a | self.b | self.c
        elif self.valu:
            self.w = regs(ops[0])
            rest = ops[1:]
            if op.startswith(("v_add_co", "v_sub_co", "v_addc_co", "v_subb_co", "v_subbrev_co", "v_mad_u64", "v_div_scale")):
                self.w |= regs(ops[1])
                rest = ops[2:]
            for o in rest:
                self.r |= regs(o)
            if op.startswith(("v_fmac", "v_swap", "v_permlane", "v_dot2c", "v_writelane")) or self.dpp:
                self.r |= regs(ops[0])
            if op.startswith(("v_swap", "v_permlane")):
                self.w |= regs(ops[1])
            if op.startswith("v_cmpx"):
                self.w.add(("s", "exec"))
        elif self.ds:
            if op.startswith("ds_read") or "_rtn" in op or "permute" in op or "swizzle" in op:
                self.w = regs(ops[0])
                for o in ops[1:]:
                    self.r |= regs(o)
            else:
                for o in ops:
                    self.r |= regs(o)
            if "addtid" in op:
                self.r.add(("s", "m0"))
        elif self.vmem:
            lds = re.search(r"\blds\b", t) is not None
            if op in ("buffer_inv", "buffer_wbl2"):
                pass
            elif "load" in op and not lds:
                self.w = regs(ops[0])
                for o in ops[1:]:
                    self.r |= regs(o)
            else:
                for o in ops:
                    self.r |= regs(o)
                if lds:
                    self.r.add(("s", "m0"))
                elif "x3" in op or "x4" in op:
                    self.storedata = regs(ops[0])
            self.ldsdma = lds
        elif self.salu:
            if ops and not op.startswith(("s_cmp", "s_cbranch", "s_branch", "s_waitcnt", "s_nop", "s_barrier", "s_setprio",
                                          "s_sleep", "s_endpgm", "s_bitcmp")):
                self.w = regs(ops[0])
                for o in ops[1:]:
                    self.r |= regs(o)
                if "saveexec" in op:
                    self.w.add(("s", "exec"))
            else:
                for o in ops:
                    self.r |= regs(o)


def need(p, c):
    n = 0
    vw = {x for x in p.w if x[0] in "va"}
    sw = {x for x in p.w if x[0] == "s"}
    if p.valu:
        if c.mfma and vw & c.r:
            n = max(n, 2)
        if c.valu and p.trans and not c.trans and vw & c.r:
            n = max(n, 1)
        if c.valu and (c.dpp or c.op.startswith("v_permlane")) and vw & c.r:
            n = max(n, 2)
        if c.op.startswith(("v_readlane", "v_readfirstlane")) and vw & c.r:
            n = max(n, 1)
        if c.vmem and sw & c.r:
            n = max(n, 5)
        if c.valu and sw & c.r:
            n = max(n, 4 if c.op.startswith(("v_readlane", "v_writelane", "v_div_fmas")) else 2)
        if ("s", "exec") in sw:
            if c.mfma or c.op.startswith(("v_readlane", "v_readfirstlane", "v_writelane", "v_permlane")):
                n = max(n, 4)
            if c.dpp:
                n = max(n, 5)
        if p.op.startswith("v_dot") and (c.valu or c.mfma) and vw & (c.r | c.w):
            same = c.op == p.op
            if not same:
                n = max(n, 3)
            elif len(c.ops) >= 3 and vw & (regs(c.ops[1]) | regs(c.ops[2])):
                n = max(n, 3)
        if p.op.startswith("v_dot") and (c.vmem or c.ds) and vw & c.r:
            n = max(n, 3)
    if p.mfma:
        rw = {2: 5, 4: 8, 8: 12, 16: 20}[p.passes]
        if c.mfma:
            if vw & (c.a | c.b):
                n = max(n, rw)
            if vw & c.c:
                if not (vw == c.c and c.passes == p.passes):
                    n = max(n, {2: 4, 4: 6, 8: 10, 16: 18}[p.passes])
            elif vw & c.w and c.passes < p.passes:
                n = max(n, rw)
        elif c.valu or c.vmem or c.ds:
            if vw & (c.r | c.w):
                n = max(n, rw)
            if c.valu and p.c & c.w:
                n = max(n, {2: 1, 4: 3, 8: 7, 16: 15}[p.passes])
    if p.salu and ("s", "m0") in p.w and ("s", "m0") in c.r and (c.vmem or c.ds):
        n = max(n, 1)
    if p.storedata and p.storedata & c.w:
        n = max(n, 2 if (c.valu or c.mfma) else 1)
    return n


def check_hazards(lines, window=24):
    ins, labels = [], {}
    for ln in lines:
        s = ln.split(";")[0].strip()
        if not s or s.startswith("."):
            continue
        if s.endswith(":"):
            labels[s[:-1]] = len(ins)
            continue
        ins.append(Ins(s))
    errs = []

    def succ(k):
        x = ins[k]
        if x.op == "s_endpgm":
            return []
        if x.op == "s_branch":
            return [labels[x.ops[0]]]
        if x.op.startswith("s_cbranch"):
            return [k + 1, labels[x.ops[0]]]
        return [k + 1]

    for k, p in enumerate(ins):
        if not (p.valu or p.mfma or p.storedata or (p.salu and ("s", "m0") in p.w)):
            continue
        stack = [(s, 0) for s in succ(k)]
        seen = {}
        while stack:
            q, d = stack.pop()
            if q >= len(ins) or d >= window or seen.get(q, 99) <= d:
                continue
            seen[q] = d
            c = ins[q]
            nd = need(p, c)
            if nd > d:
                errs.append(f"need {nd} have {d}: [{k}] {p.txt}  ->  [{q}] {c.txt}")
            for s in succ(q):
                stack.append((s, d + c.states))
    return errs
```

```python
import math
import struct
import sys

from asmlib import Emit, check_hazards, sr, vr

NAME = "gated_mix__mha_block__dense_activation_squared_relu__prompt"

OFF_FLG = 0
OFF_G = 32768
OFF_Q = 65536
OFF_KV = OFF_Q + 32 * 64 * 1280
OFF_H = OFF_KV + 32 * 64 * 2560
OFF_WT = OFF_H + 64 * 112 * 1024
OFF_O = OFF_WT + 152 * 20 * 1024
OFF_DEV = OFF_O + 64 * 32 * 1280
WS_SIZE = OFF_DEV + 2048 * 128
OOB = 0x40000000
SPIN = 400000


def f32(x):
    return "0x%08x" % struct.unpack("<I", struct.pack("<f", x))[0]


S_WV, S_XCD, S_J, S_RB, S_CG, S_RQ, S_CH, S_M0 = 3, 4, 5, 6, 7, 8, 9, 10
T0, T1, T2, T3, T4 = 11, 12, 13, 14, 15
P_X, P_WQ, P_WO, P_W1, P_B1, P_W2, P_B2, P_GW, P_OUT, P_DBG, P_WS = 16, 18, 20, 24, 26, 28, 30, 32, 34, 36, 38
R_X, R_WQ, R_W1, R_WS, R_JOB, R_B1, R_B2, R_GW, R_OUT, R_DBG = 40, 44, 48, 52, 56, 60, 64, 68, 72, 76
S_HD, S_RTQ, S_RT, S_CT, S_BLK, S_SCALE = 80, 81, 82, 83, 84, 85
S_VMASK = 86
S_EPI, S_JST, S_OBLK, S_HB, S_WB, S_SEC, S_GAM, S_HST = 88, 89, 90, 91, 92, 93, 94, 95
S_MA, S_MB = 96, 98
S_SPIN = 100
S_KVB = 101

V_LANE = 0
V_X0, V_X1, V_W, V_W1 = 1, 2, 3, 4
V_XR = 5
V_WR = 7
V_ST = 11
V_L15, V_G4 = 15, 16
V_WR2 = 17
V_T = 21
V_BIAS = 24
V_ACC = 32
V_WB = (64, 80)
V_XF = 96

A_AK, A_AKR, A_AV, A_IDX, A_L16, A_GA, A_GF = 97, 98, 99, 100, 101, 102, 103
A_T = 104
A_QLO, A_QHI, A_KR, A_QM, A_KM, A_VLO = 106, 108, 110, 112, 116, 120
A_VHI = (124, 128)
A_P = 132
A_O = 136
A_S = (152, 168)
A_RING = 184
A_FACC = 16
NB = 3


class Cfg:
    dev = False
    ffn_start = 16
    ffn_end = 64
    t_flag2 = 4
    t_poll2 = 8
    t_chk2 = 11
    force_fallback = False


def acc(n, rt):
    return V_ACC + (n * 2 + rt) * 4


def xf(ks, rt):
    return V_XF + (ks * 2 + rt) * 4


def srd(e, r, p, size):
    e.i(f"s_mov_b32 {sr(r)}, {sr(p)}")
    e.i(f"s_mov_b32 {sr(r + 1)}, {sr(p + 1)}")
    e.i(f"s_mov_b32 {sr(r + 2)}, {size}")
    e.i(f"s_mov_b32 {sr(r + 3)}, 0x20000")


class Gen:
    def __init__(self, cfg):
        self.c = cfg
        self.e = Emit()
        self.cold = []
        self.nlab = 0

    def stamp(self, k):
        if self.c.dev:
            self.e.i(f"s_memtime {sr(16 + 2 * k, 2)}")

    def lab(self, base):
        self.nlab += 1
        return f"L_{base}_{self.nlab}"

    def dma_stage(self, s):
        slot = (s % 5) * 32768
        out = []
        for i in range(4):
            m0 = slot + (i & 1) * 1024 + (i >> 1) * 16384
            if s < 10:
                if i < 2:
                    va, r, so = (V_X0, V_X1)[i], R_X, s * 128
                else:
                    va, r, so = V_W, R_WQ, (s * 64 + (i & 1) * 4) * 3840
            else:
                va, r, so = V_W1, R_W1, ((s - 10) * 128 + (i & 1) * 4 + (i >> 1) * 64) * 3456
            out.append((f"s_add_u32 m0, {sr(S_M0)}, {m0}\ns_mov_b32 {sr(T0)}, {so}\n"
                        f"buffer_load_dwordx4 {vr(va)}, {sr(r, 4)}, {sr(T0)} offen lds", f"st{s}"))
        return out

    def prologue(self):
        e = self.e
        e.i(f"""
        s_cmp_ge_u32 s2, 256
        s_cbranch_scc1 L_end
        s_load_dwordx16 s[16:31], s[0:1], 0
        s_load_dwordx8 s[32:39], s[0:1], 64
        v_lshrrev_b32 v21, 6, v0
        v_and_b32 v0, 63, v0
        v_readfirstlane_b32 {sr(S_WV)}, v21
        s_and_b32 {sr(S_XCD)}, s2, 7
        s_lshr_b32 {sr(S_J)}, s2, 3
        s_and_b32 {sr(T0)}, {sr(S_XCD)}, 1
        s_lshl_b32 {sr(T0)}, {sr(T0)}, 3
        s_and_b32 {sr(T1)}, {sr(S_J)}, 7
        s_add_u32 {sr(S_RB)}, {sr(T0)}, {sr(T1)}
        s_lshr_b32 {sr(T0)}, {sr(S_XCD)}, 1
        s_lshl_b32 {sr(T0)}, {sr(T0)}, 2
        s_lshr_b32 {sr(T1)}, {sr(S_J)}, 3
        s_add_u32 {sr(S_CG)}, {sr(T0)}, {sr(T1)}
        s_and_b32 {sr(S_RQ)}, {sr(S_WV)}, 3
        s_lshr_b32 {sr(S_CH)}, {sr(S_WV)}, 2
        s_lshl_b32 {sr(S_M0)}, {sr(S_WV)}, 11
        v_and_b32 {vr(V_L15)}, 15, v0
        v_lshrrev_b32 {vr(V_G4)}, 4, v0
        """)
        e.i(f"""
        v_lshrrev_b32 v21, 3, v0
        v_and_b32 v22, 7, v0
        v_xor_b32 v22, v22, {vr(V_G4)}
        v_lshlrev_b32 v22, 4, v22
        s_lshl_b32 {sr(T0)}, {sr(S_RB)}, 7
        s_lshl_b32 {sr(T1)}, {sr(S_WV)}, 4
        s_add_u32 {sr(T0)}, {sr(T0)}, {sr(T1)}
        v_add_u32 v21, {sr(T0)}, v21
        v_mul_u32_u24 v21, 1280, v21
        v_add_u32 {vr(V_X0)}, v21, v22
        v_xor_b32 {vr(V_X1)}, 64, {vr(V_X0)}
        v_add_u32 {vr(V_X1)}, 10240, {vr(V_X1)}
        """)
        e.i(f"""
        s_and_b32 {sr(T0)}, {sr(S_WV)}, 1
        s_lshl_b32 {sr(T0)}, {sr(T0)}, 3
        v_lshlrev_b32 v23, 1, {vr(V_G4)}
        v_or_b32 v23, {sr(T0)}, v23
        v_xor_b32 v23, v23, {vr(V_L15)}
        s_lshl_b32 {sr(T0)}, {sr(S_WV)}, 3
        v_add_u32 v21, {sr(T0)}, {vr(V_G4)}
        v_mul_u32_u24 v22, 3840, v21
        v_lshl_add_u32 v22, v23, 4, v22
        s_lshl_b32 {sr(T0)}, {sr(S_CG)}, 8
        v_add_u32 {vr(V_W)}, {sr(T0)}, v22
        s_waitcnt lgkmcnt(0)
        """)
        srd(e, R_X, P_X, 2048 * 1280)
        srd(e, R_WQ, P_WQ, 640 * 3840)
        e.i(f"""
        s_cmp_eq_u32 {sr(S_CG)}, 15
        s_cselect_b32 {sr(R_WQ + 2)}, 0, {sr(R_WQ + 2)}
        """)
        srd(e, R_WS, P_WS, WS_SIZE)
        skip = self.lab("noinit")
        e.i(f"""
        s_lshl_b32 {sr(T0)}, s2, 3
        s_add_u32 {sr(T0)}, {sr(T0)}, {sr(S_WV)}
        s_cmp_lg_u32 {sr(T0)}, 7
        s_cbranch_scc1 {skip}
        v_lshlrev_b32 v24, 7, v0
        v_mov_b32 v25, 0
        s_mov_b32 {sr(T0)}, 8192
        s_mov_b32 {sr(T1)}, 16384
        s_mov_b32 {sr(T2)}, 24576
        buffer_store_dword v25, v24, {sr(R_WS, 4)}, 0 offen sc1
        buffer_store_dword v25, v24, {sr(R_WS, 4)}, {sr(T0)} offen sc1
        buffer_store_dword v25, v24, {sr(R_WS, 4)}, {sr(T1)} offen sc1
        buffer_store_dword v25, v24, {sr(R_WS, 4)}, {sr(T2)} offen sc1
        """)
        e.label(skip)
        for s in range(5):
            for txt, tag in self.dma_stage(s):
                e.vmem(txt, tag)
        srd(e, R_W1, P_W1, 640 * 3456)
        srd(e, R_B1, P_B1, 3456)
        srd(e, R_B2, P_B2, 1280)
        srd(e, R_GW, P_GW, 1280)
        srd(e, R_OUT, P_OUT, 2048 * 1280)
        srd(e, R_DBG, P_DBG, 256)
        e.i(f"""
        v_mul_u32_u24 v22, 3456, v21
        v_lshl_add_u32 v22, v23, 4, v22
        s_mul_i32 {sr(T0)}, {sr(S_CG)}, 224
        v_add_u32 {vr(V_W1)}, {sr(T0)}, v22
        s_cmp_eq_u32 {sr(S_CG)}, 15
        s_cselect_b32 {sr(T0)}, 6, 14
        v_cmp_gt_u32 vcc, {sr(T0)}, v23
        v_mov_b32 v22, {OOB}
        s_nop 0
        v_cndmask_b32 {vr(V_W1)}, v22, {vr(V_W1)}, vcc
        """)
        e.i(f"""
        s_lshl_b32 {sr(T0)}, {sr(S_XCD)}, 2
        s_lshr_b32 {sr(S_CT)}, {sr(S_J)}, 3
        s_add_u32 {sr(S_HD)}, {sr(T0)}, {sr(S_CT)}
        s_and_b32 {sr(T1)}, {sr(S_J)}, 7
        s_lshl_b32 {sr(T0)}, {sr(T1)}, 3
        s_add_u32 {sr(S_RTQ)}, {sr(T0)}, {sr(S_WV)}
        s_lshl_b32 {sr(T0)}, {sr(S_XCD)}, 3
        s_add_u32 {sr(S_RT)}, {sr(T0)}, {sr(T1)}
        s_lshl_b32 {sr(T0)}, {sr(S_RB)}, 2
        s_add_u32 {sr(S_BLK)}, {sr(T0)}, {sr(S_RQ)}
        s_mul_i32 {sr(S_SEC)}, {sr(S_CG)}, 52
        s_lshr_b32 {sr(S_SEC)}, {sr(S_SEC)}, 8
        s_mul_i32 {sr(T0)}, {sr(S_SEC)}, 5
        s_sub_u32 {sr(S_GAM)}, {sr(S_CG)}, {sr(T0)}
        s_mov_b32 {sr(S_VMASK)}, 0x000fffff
        s_mov_b32 {sr(S_VMASK + 1)}, 0x000fffff
        s_lshl_b32 {sr(T0)}, {sr(S_RTQ)}, 5
        s_add_u32 {sr(T0)}, {sr(T0)}, {sr(S_HD)}
        s_mul_i32 {sr(T0)}, {sr(T0)}, 1280
        s_add_u32 {sr(S_OBLK)}, {sr(T0)}, {OFF_O}
        s_mul_i32 {sr(T0)}, {sr(S_BLK)}, 112
        s_mul_i32 {sr(T1)}, {sr(S_CG)}, 7
        s_add_u32 {sr(T0)}, {sr(T0)}, {sr(T1)}
        s_lshl_b32 {sr(T1)}, {sr(S_CH)}, 2
        s_add_u32 {sr(T0)}, {sr(T0)}, {sr(T1)}
        s_lshl_b32 {sr(T0)}, {sr(T0)}, 10
        s_add_u32 {sr(S_HST)}, {sr(T0)}, {OFF_H}
        s_mul_i32 {sr(T0)}, {sr(S_RT)}, 112
        s_mul_i32 {sr(T1)}, {sr(S_WV)}, 14
        s_add_u32 {sr(T0)}, {sr(T0)}, {sr(T1)}
        s_lshl_b32 {sr(T0)}, {sr(T0)}, 10
        s_add_u32 {sr(S_HB)}, {sr(T0)}, {OFF_H}
        s_mul_i32 {sr(T0)}, {sr(T1)}, 20
        s_mul_i32 {sr(T1)}, {sr(S_CT)}, 5
        s_add_u32 {sr(T0)}, {sr(T0)}, {sr(T1)}
        s_lshl_b32 {sr(T0)}, {sr(T0)}, 10
        s_add_u32 {sr(S_WB)}, {sr(T0)}, {OFF_WT}
        s_mul_i32 {sr(T0)}, {sr(S_HD)}, {64 * 2560}
        s_mul_i32 {sr(T1)}, {sr(S_WV)}, 10240
        s_add_u32 {sr(T0)}, {sr(T0)}, {sr(T1)}
        s_add_u32 {sr(S_KVB)}, {sr(T0)}, {OFF_KV}
        """)
        self.job_setup()
        e.i(f"""
        s_lshl_b32 {sr(T0)}, {sr(S_RQ)}, 12
        v_lshrrev_b32 v21, 1, {vr(V_L15)}
        v_xor_b32 v21, v21, {vr(V_G4)}
        v_lshlrev_b32 v21, 4, v21
        v_lshl_add_u32 v21, {vr(V_L15)}, 7, v21
        v_add_u32 {vr(V_XR)}, {sr(T0)}, v21
        v_xor_b32 {vr(V_XR + 1)}, 64, {vr(V_XR)}
        """)
        e.i(f"""
        v_lshrrev_b32 v22, 2, {vr(V_L15)}
        v_lshl_add_u32 v21, {vr(V_G4)}, 3, v22
        v_lshlrev_b32 v21, 8, v21
        v_and_b32 v23, 1, {vr(V_G4)}
        v_lshl_add_u32 v22, v23, 2, v22
        v_lshlrev_b32 v22, 1, v22
        v_and_b32 v23, 3, {vr(V_L15)}
        s_lshl_b32 {sr(T0)}, {sr(S_CH)}, 3
        """)
        for n in range(4):
            e.i(f"""
            v_lshrrev_b32 v24, 1, v23
            v_add_u32 v24, {2 * n}, v24
            v_add_u32 v24, {sr(T0)}, v24
            v_xor_b32 v24, v24, v22
            v_lshl_add_u32 v24, v24, 4, v21
            v_and_b32 v25, 1, v23
            v_lshl_add_u32 {vr(V_WR2 + n)}, v25, 3, v24
            """)
        if self.c.dev:
            e.i("s_memrealtime s[38:39]")
        self.stamp(0)

    def job_setup(self):
        e = self.e
        kap, cp, base, a1, a2 = T0, T1, T2, T3, T4
        wo, done, odd, rem = self.lab("jwo"), self.lab("jdone"), self.lab("jodd"), self.lab("jrem")
        e.i(f"""
        s_lshl_b32 {sr(cp)}, s2, 3
        s_add_u32 {sr(cp)}, {sr(cp)}, {sr(S_WV)}
        s_mul_i32 {sr(kap)}, {sr(cp)}, 6554
        s_lshr_b32 {sr(kap)}, {sr(kap)}, 16
        s_lshl_b32 {sr(S_JST)}, {sr(cp)}, 11
        s_add_u32 {sr(S_JST)}, {sr(S_JST)}, {OFF_WT}
        s_cmp_ge_u32 {sr(kap)}, 152
        s_cselect_b32 {sr(S_JST)}, {OOB}, {sr(S_JST)}
        s_mul_i32 {sr(base)}, {sr(kap)}, 10
        s_sub_u32 {sr(cp)}, {sr(cp)}, {sr(base)}
        s_cmp_ge_u32 {sr(kap)}, 112
        s_cselect_b32 {sr(R_JOB)}, {sr(P_WO)}, {sr(P_W2)}
        s_cselect_b32 {sr(R_JOB + 1)}, {sr(P_WO + 1)}, {sr(P_W2 + 1)}
        s_mov_b32 {sr(R_JOB + 2)}, {1728 * 1280}
        s_cselect_b32 {sr(R_JOB + 2)}, {640 * 1280}, {sr(R_JOB + 2)}
        s_mov_b32 {sr(R_JOB + 3)}, 0x20000
        s_cbranch_scc1 {wo}
        s_mul_i32 {sr(a1)}, {sr(kap)}, 9363
        s_lshr_b32 {sr(a1)}, {sr(a1)}, 16
        s_mul_i32 {sr(base)}, {sr(a1)}, 112
        s_mul_i32 {sr(a1)}, {sr(a1)}, 7
        s_sub_u32 {sr(kap)}, {sr(kap)}, {sr(a1)}
        s_lshr_b32 {sr(a1)}, {sr(kap)}, 1
        s_lshl_b32 {sr(a1)}, {sr(a1)}, 5
        s_add_u32 {sr(base)}, {sr(base)}, {sr(a1)}
        s_and_b32 {sr(a1)}, {sr(kap)}, 1
        s_lshl_b32 {sr(a1)}, {sr(a1)}, 3
        s_add_u32 {sr(base)}, {sr(base)}, {sr(a1)}
        s_cmp_eq_u32 {sr(kap)}, 6
        s_cselect_b32 {sr(a1)}, 8, 4
        s_cselect_b32 {sr(a2)}, 4, 16
        s_branch {done}
        """)
        e.label(wo)
        e.i(f"""
        s_sub_u32 {sr(kap)}, {sr(kap)}, 112
        s_mul_i32 {sr(a1)}, {sr(kap)}, 13108
        s_lshr_b32 {sr(a1)}, {sr(a1)}, 16
        s_mul_i32 {sr(base)}, {sr(a1)}, 80
        s_mul_i32 {sr(a1)}, {sr(a1)}, 5
        s_sub_u32 {sr(kap)}, {sr(kap)}, {sr(a1)}
        s_mul_i32 {sr(a1)}, {sr(kap)}, 20
        s_cmp_eq_u32 {sr(kap)}, 4
        s_cselect_b32 {sr(a1)}, 16, {sr(a1)}
        s_add_u32 {sr(base)}, {sr(base)}, {sr(a1)}
        s_cmp_eq_u32 {sr(kap)}, 4
        s_cselect_b32 {sr(a1)}, 40, 4
        s_cselect_b32 {sr(a2)}, 20, 8
        """)
        e.label(done)
        e.i(f"""
        v_lshrrev_b32 v21, 5, v0
        v_mul_u32_u24 v21, {sr(a2)}, v21
        v_bfe_u32 v22, v0, 3, 2
        v_add3_u32 v21, v21, v22, {sr(base)}
        v_mul_u32_u24 v21, 1280, v21
        v_and_b32 v22, 7, v0
        v_lshl_add_u32 v21, v22, 4, v21
        s_lshl_b32 {sr(cp)}, {sr(cp)}, 7
        v_add_u32 v30, {sr(cp)}, v21
        s_mul_i32 {sr(a1)}, {sr(a1)}, 1280
        v_add_u32 v31, {sr(a1)}, v30
        """)

    def reads(self, s, ksl, ntiles, buf):
        off = (s % 5) * 32768 - ((s % 5) >> 1) * 65536
        out = []
        if s < 10:
            ks = 2 * s + ksl
            for rt in range(2):
                out.append(f"ds_read_b128 {vr(xf(ks, rt), 4)}, {vr(V_XR + ksl)} offset:{off + rt * 2048}")
            wbase, wr = off + 16384, V_WR
        else:
            wbase, wr = off, V_WR2
        for n in range(ntiles):
            for q in range(2):
                out.append(f"ds_read_b64_tr_b16 {vr(V_WB[buf] + 4 * n + 2 * q, 2)}, {vr(wr + n)} "
                           f"offset:{wbase + ksl * 8192 + q * 1024}")
        return out

    def window(self, s):
        slot = s % 5
        if s in (0, 10) or slot in (1, 3):
            return []
        d = 65536 if slot in (2, 4) else -131072
        rs = [V_XR, V_XR + 1] + [V_WR + n for n in range(4)] if s < 10 else [V_WR2 + n for n in range(4)]
        return [f"v_add_u32 {vr(r)}, {d & 0xffffffff:#x}, {vr(r)}" for r in rs]

    def mfmas(self, ks, ntiles, buf, vtype, first):
        out = []
        for n in range(ntiles):
            for rt in range(2):
                w, x, d = vr(V_WB[buf] + 4 * n, 4), vr(xf(ks, rt), 4), vr(acc(n, rt), 4)
                a, b = (x, w) if vtype else (w, x)
                out.append(f"v_mfma_f32_16x16x32_bf16 {d}, {a}, {b}, {'0' if first else d}")
        return out

    def unit(self, mf, rd, extra):
        e = self.e
        rd, extra = list(rd), list(extra)
        if not mf:
            for r in rd:
                e.lds(r, "rd")
            for x in extra:
                x()
            return
        for k, m in enumerate(mf):
            for _ in range(2):
                if rd:
                    e.lds(rd.pop(0), "rd")
            e.i(m)
            if extra and (not rd or k >= 3):
                extra.pop(0)()
        for r in rd:
            e.lds(r, "rd")
        for x in extra:
            x()

    def vm(self, txt, tag):
        return lambda: self.e.vmem(txt, tag)

    def ii(self, txt):
        return lambda: self.e.i(txt)

    def stage_sync(self, s, vmtags=()):
        e = self.e
        for w in self.window(s):
            e.i(w)
        e.wait(vm=[f"st{s}"] + list(vmtags), lg="all")
        e.i("s_barrier")

    def pass1(self, vtype):
        e = self.e
        if vtype:
            for n in range(4):
                e.i(f"v_mov_b32 {vr(V_WR + n)}, {vr(V_WR2 + n)}")
        else:
            for n in range(4):
                e.i(f"""
                v_add_u32 v24, {4 * (n >> 1)}, v23
                v_add_u32 v24, {sr(T0)}, v24
                v_xor_b32 v24, v24, v22
                v_lshl_add_u32 v24, v24, 4, v21
                v_lshrrev_b32 v25, 1, v23
                v_xor_b32 v25, {n & 1}, v25
                v_lshl_add_u32 {vr(V_WR + n)}, v25, 3, v24
                """)
        self.epi1_addr(vtype)
        prev = []
        for s in range(10):
            for ksl in range(2):
                extra = []
                if ksl == 0:
                    self.stage_sync(s)
                    if s == 0:
                        self.stamp(1)
                        self.publish_init()
                    else:
                        extra = [self.vm(t, g) for t, g in self.dma_stage(s + 4)]
                else:
                    e.wait(lg="all")
                if s == 8 and ksl == 1:
                    extra += self.bias_loads()
                self.unit(prev, self.reads(s, ksl, 4, ksl), extra)
                prev = self.mfmas(2 * s + ksl, 4, ksl, vtype, s == 0 and ksl == 0)
        self.stage_sync(10)
        self.unit(prev, self.reads(10, 0, 4, 0), [])
        self.stamp(2)
        self.epi1(vtype)
        for t, g in self.dma_stage(14):
            e.vmem(t, g)

    def publish_init(self):
        e = self.e
        skip = self.lab("nopub")
        e.i(f"""
        s_lshl_b32 {sr(T0)}, s2, 3
        s_add_u32 {sr(T0)}, {sr(T0)}, {sr(S_WV)}
        s_cmp_lg_u32 {sr(T0)}, 7
        s_cbranch_scc1 {skip}
        v_mov_b32 v25, 1
        s_mov_b64 exec, 1
        buffer_store_dword v25, off, {sr(R_DBG, 4)}, 0 sc1
        s_mov_b64 exec, -1
        """)
        e.label(skip)

    def bias_loads(self):
        out = [self.ii(f"""
        s_mul_i32 {sr(T1)}, {sr(S_CG)}, 224
        s_lshl_b32 {sr(T2)}, {sr(S_CH)}, 7
        s_add_u32 {sr(T1)}, {sr(T1)}, {sr(T2)}
        v_lshlrev_b32 v21, 3, {vr(V_G4)}
        """)]
        regs = (22, 24, 26, 28)
        for n in range(4):
            out.append(self.vm(f"buffer_load_dwordx2 {vr(regs[n], 2)}, v21, {sr(R_B1, 4)}, {sr(T1)} offen offset:{32 * n}",
                               "bias"))
        out.append(self.vm(f"buffer_load_dword v2, off, {sr(R_DBG, 4)}, 0 sc1", "dbg"))
        return out

    def epi1_addr(self, vtype):
        e = self.e
        if vtype:
            e.i(f"""
            s_lshl_b32 {sr(T1)}, {sr(S_GAM)}, 7
            s_lshl_b32 {sr(T2)}, {sr(S_CH)}, 6
            s_add_u32 {sr(T1)}, {sr(T1)}, {sr(T2)}
            s_mov_b32 {sr(T2)}, {64 * 2560}
            v_mul_u32_u24 v26, 320, {vr(V_G4)}
            """)
            for n in range(4):
                e.i(f"""
                v_add3_u32 v24, {vr(V_L15)}, {sr(T1)}, {16 * n}
                v_mul_u32_u24 v25, 3277, v24
                v_lshrrev_b32 v25, 16, v25
                v_mul_u32_u24 v27, 20, v25
                v_sub_u32 v24, v24, v27
                v_mul_u32_u24 v25, {sr(T2)}, v25
                v_lshl_add_u32 v24, v24, 4, v25
                v_add_u32 {vr(V_ST + n)}, v24, v26
                """)
            e.i(f"""
            s_mul_i32 {sr(T1)}, {sr(S_BLK)}, 2560
            s_add_u32 {sr(S_EPI)}, {sr(T1)}, {OFF_KV + 1280}
            s_cmp_eq_u32 {sr(S_CG)}, 15
            s_cselect_b32 {sr(S_EPI)}, {OOB}, {sr(S_EPI)}
            """)
            return
        e.i(f"""
        s_lshl_b32 {sr(T1)}, {sr(S_GAM)}, 4
        s_lshl_b32 {sr(T2)}, {sr(S_CH)}, 3
        s_add_u32 {sr(T1)}, {sr(T1)}, {sr(T2)}
        s_lshl_b32 {sr(T3)}, 1280, {sr(S_SEC)}
        s_lshl_b32 {sr(T2)}, {sr(T3)}, 6
        s_mul_i32 {sr(T3)}, {sr(T3)}, {sr(S_BLK)}
        s_cmp_eq_u32 {sr(S_SEC)}, 0
        s_mov_b32 {sr(T4)}, {OFF_KV}
        s_cselect_b32 {sr(T4)}, {OFF_Q}, {sr(T4)}
        s_cselect_b32 {sr(S_SCALE)}, {f32(math.log2(math.e) / math.sqrt(20.0))}, 1.0
        s_add_u32 {sr(S_EPI)}, {sr(T3)}, {sr(T4)}
        """)
        for p in range(2):
            mask = (S_MA, S_MB)[p]
            e.i(f"""
            v_add3_u32 v24, {vr(V_G4)}, {sr(T1)}, {4 * p}
            v_mul_u32_u24 v25, 205, v24
            v_lshrrev_b32 v25, 10, v25
            v_mul_u32_u24 v26, 5, v25
            v_sub_u32 v26, v24, v26
            v_cmp_eq_u32 {sr(mask, 2)}, 2, v26
            v_cmp_lt_u32 vcc, 2, v26
            v_lshrrev_b32 v27, 1, {vr(V_G4)}
            v_subrev_u32 v28, 3, v26
            v_cndmask_b32 v26, v26, v28, vcc
            v_cndmask_b32 v28, 0, 1, vcc
            v_lshlrev_b32 v26, 9, v26
            v_lshl_add_u32 v26, {vr(V_L15)}, 4, v26
            v_cndmask_b32 v29, v28, v27, {sr(mask, 2)}
            v_lshl_add_u32 v29, v25, 1, v29
            v_mul_lo_u32 v29, v29, {sr(T2)}
            v_add_u32 {vr(V_ST + 2 * p)}, v29, v26
            v_xor_b32 v27, 1, v27
            v_cndmask_b32 v29, v28, v27, {sr(mask, 2)}
            v_lshl_add_u32 v29, v25, 1, v29
            v_mul_lo_u32 v29, v29, {sr(T2)}
            v_mov_b32 v27, 256
            v_cndmask_b32 v27, v27, 0, {sr(mask, 2)}
            v_add3_u32 {vr(V_ST + 2 * p + 1)}, v29, v26, v27
            """)

    def epi1(self, vtype):
        e = self.e
        pk = V_WB[1]
        e.i("s_nop 7")
        if vtype:
            for n in range(4):
                for rt in range(2):
                    for h in range(2):
                        a = acc(n, rt) + 2 * h
                        e.i(f"v_cvt_pk_bf16_f32 {vr(pk + 4 * n + 2 * rt + h)}, {vr(a)}, {vr(a + 1)}")
                e.vmem(f"buffer_store_dwordx4 {vr(pk + 4 * n, 4)}, {vr(V_ST + n)}, {sr(R_WS, 4)}, {sr(S_EPI)} offen sc1",
                       "e1")
        else:
            for p in range(2):
                for k in range(16):
                    r = acc(2 * p, 0) + k
                    e.i(f"v_mul_f32 {vr(r)}, {sr(S_SCALE)}, {vr(r)}")
                for rt in range(2):
                    for ab in range(2):
                        for h in range(2):
                            a = acc(2 * p + ab, rt) + 2 * h
                            e.i(f"v_cvt_pk_bf16_f32 {vr(pk + 8 * p + 4 * rt + 2 * ab + h)}, {vr(a)}, {vr(a + 1)}")
                b = pk + 8 * p
                e.i(f"""
                s_mov_b64 exec, {sr((S_MA, S_MB)[p], 2)}
                v_swap_b32 {vr(b + 2)}, {vr(b + 4)}
                v_swap_b32 {vr(b + 3)}, {vr(b + 5)}
                s_mov_b64 exec, -1
                """)
                for k in range(2):
                    e.vmem(f"buffer_store_dwordx4 {vr(b + 4 * k, 4)}, {vr(V_ST + 2 * p + k)}, {sr(R_WS, 4)}, "
                           f"{sr(S_EPI)} offen sc1", "e1")
        e.wait(vm="bias")
        for n, r in enumerate((22, 24, 26, 28)):
            for h in range(2):
                for rt in range(2):
                    e.i(f"v_lshlrev_b32 {vr(acc(n, rt) + 2 * h)}, 16, {vr(r + h)}")
                    e.i(f"v_and_b32 {vr(acc(n, rt) + 2 * h + 1)}, 0xffff0000, {vr(r + h)}")

    def side_issue(self):
        out = [self.ii(f"""
        s_lshl_b32 {sr(T1)}, {sr(S_RB)}, 4
        s_add_u32 {sr(T1)}, {sr(T1)}, {sr(S_CG)}
        s_lshl_b32 {sr(T1)}, {sr(T1)}, 3
        s_add_u32 {sr(T1)}, {sr(T1)}, {sr(S_WV)}
        s_mul_i32 {sr(T1)}, {sr(T1)}, 1280
        v_lshlrev_b32 v21, 2, v0
        v_lshlrev_b32 v22, 4, v0
        v_mov_b32 v116, -1
        v_mov_b32 v117, -1
        v_mov_b32 v118, -1
        v_mov_b32 v119, -1
        """)]
        for h in range(2):
            out.append(self.vm(f"s_add_u32 m0, {sr(S_M0)}, {h * 1024}\ns_nop 0\n"
                               f"buffer_load_dwordx4 {vr(30 + h)}, {sr(R_JOB, 4)}, 0 offen lds", "job"))
        for i in range(5):
            out.append(self.vm(f"buffer_load_dword {vr(96 + i)}, v21, {sr(R_X, 4)}, {sr(T1)} offen offset:{256 * i}", "gate"))
            out.append(self.vm(f"buffer_load_dword {vr(101 + i)}, v21, {sr(R_GW, 4)}, 0 offen offset:{256 * i}", "gate"))
        out.append(self.vm(f"buffer_store_dwordx4 v[116:119], v22, {sr(R_WS, 4)}, {sr(S_OBLK)} offen sc1", "sent"))
        out.append(self.vm(f"buffer_store_dword v116, v21, {sr(R_WS, 4)}, {sr(S_OBLK)} offen offset:1024 sc1", "sent"))
        return out

    def flag_store(self, val, check_init):
        e = self.e
        skip = self.lab("nofl")
        e.i(f"s_cmp_lg_u32 {sr(S_WV)}, 0\ns_cbranch_scc1 {skip}")
        if check_init:
            ok, lp = self.lab("iok"), self.lab("ilp")
            e.i(f"v_readfirstlane_b32 {sr(T1)}, v2\ns_cmp_eq_u32 {sr(T1)}, 0\ns_cbranch_scc1 {lp}")
            e.label(ok)
            self.cold.append(f"""
            {lp}:
            s_mov_b32 {sr(S_SPIN)}, {SPIN}
            {lp}_a:
            buffer_load_dword v2, off, {sr(R_DBG, 4)}, 0 sc1
            s_waitcnt vmcnt(0)
            v_readfirstlane_b32 {sr(T1)}, v2
            s_cmp_lg_u32 {sr(T1)}, 0
            s_cbranch_scc1 {ok}
            s_sleep 8
            s_sub_u32 {sr(S_SPIN)}, {sr(S_SPIN)}, 1
            s_cmp_lg_u32 {sr(S_SPIN)}, 0
            s_cbranch_scc1 {lp}_a
            s_branch {ok}
            """)
        e.i(f"""
        s_lshl_b32 {sr(T1)}, {sr(S_CG)}, 4
        s_add_u32 {sr(T1)}, {sr(T1)}, {sr(S_RB)}
        s_lshl_b32 {sr(T1)}, {sr(T1)}, 7
        v_mov_b32 v1, {val}
        s_mov_b64 exec, 1
        buffer_store_dword v1, off, {sr(R_WS, 4)}, {sr(T1)} sc1
        s_mov_b64 exec, -1
        """)
        e.label(skip)

    def side_job_read(self):
        e = self.e

        def f():
            e.wait(vm="job")
            e.i(f"""
            v_lshrrev_b32 v23, 5, v0
            v_lshlrev_b32 v23, 10, v23
            v_bfe_u32 v24, v0, 2, 2
            v_lshl_add_u32 v23, v24, 7, v23
            v_and_b32 v24, 1, {vr(V_G4)}
            v_lshl_add_u32 v23, v24, 5, v23
            v_and_b32 v24, 3, v0
            v_lshl_add_u32 v23, v24, 3, v23
            v_add_u32 v23, {sr(S_M0)}, v23
            """)
            for ph in range(2):
                for q in range(2):
                    e.lds(f"ds_read_b64_tr_b16 {vr(108 + 4 * ph + 2 * q, 2)}, v23 offset:{q * 512 + ph * 64}", "jr")
        return [f]

    def side_job_store(self):
        return [self.vm(f"buffer_store_dwordx4 {vr(108 + 4 * ph, 4)}, v22, {sr(R_WS, 4)}, {sr(S_JST)} offen offset:{1024 * ph} sc1",
                        "js") for ph in range(2)]

    def side_gate(self):
        e = self.e

        def a():
            e.wait(vm="gate")
            e.i("v_dot2_f32_bf16 v23, v96, v101, 0")
            for i in range(1, 5):
                e.i(f"v_dot2_f32_bf16 v23, {vr(96 + i)}, {vr(101 + i)}, v23")
            e.i("s_nop 2")
            for sh in (8, 4, 2, 1):
                e.i(f"v_add_f32_dpp v23, v23, v23 row_ror:{sh} row_mask:0xf bank_mask:0xf\ns_nop 1")

        def b():
            e.i(f"""
            v_readlane_b32 {sr(T1)}, v23, 16
            v_readlane_b32 {sr(T2)}, v23, 32
            v_readlane_b32 {sr(T3)}, v23, 48
            v_add_f32 v23, {sr(T1)}, v23
            v_add_f32 v23, {sr(T2)}, v23
            v_add_f32 v23, {sr(T3)}, v23
            v_mul_f32 v23, {f32(-math.log2(math.e))}, v23
            v_exp_f32 v23, v23
            s_lshl_b32 {sr(T1)}, {sr(S_RB)}, 4
            v_add_f32 v23, 1.0, v23
            v_rcp_f32 v23, v23
            s_add_u32 {sr(T1)}, {sr(T1)}, {sr(S_CG)}
            s_lshl_b32 {sr(T1)}, {sr(T1)}, 7
            s_lshl_b32 {sr(T2)}, {sr(S_WV)}, 2
            s_add_u32 {sr(T1)}, {sr(T1)}, {sr(T2)}
            s_add_u32 {sr(T1)}, {sr(T1)}, {OFF_G}
            s_mov_b64 exec, 1
            """)
            e.vmem(f"buffer_store_dword v23, off, {sr(R_WS, 4)}, {sr(T1)} sc1", "gs")
            e.i("s_mov_b64 exec, -1")
        return [a, b]

    def poll(self, vaddr, vdat, val, nlanes, tag):
        e = self.e
        mask = (1 << nlanes) - 1
        setx = "s_mov_b32 exec_hi, 0" if nlanes == 32 else f"s_mov_b64 exec, {mask:#x}"

        def issue():
            e.i(setx)
            e.vmem(f"buffer_load_dword {vr(vdat)}, {vr(vaddr)}, {sr(R_WS, 4)}, 0 offen sc1", tag)
            e.i("s_mov_b64 exec, -1")

        def check():
            ok, lp = self.lab("pok"), self.lab("plp")
            e.wait(vm=tag)
            e.i(f"""
            v_cmp_gt_u32 vcc, {val}, {vr(vdat)}
            s_and_b32 {sr(T1)}, vcc_lo, {mask:#x}
            s_cbranch_scc1 {lp}
            """)
            e.label(ok)
            self.cold.append(f"""
            {lp}:
            s_mov_b32 {sr(S_SPIN)}, {SPIN}
            {lp}_a:
            {setx}
            buffer_load_dword {vr(vdat)}, {vr(vaddr)}, {sr(R_WS, 4)}, 0 offen sc1
            s_mov_b64 exec, -1
            s_waitcnt vmcnt(0)
            v_cmp_gt_u32 vcc, {val}, {vr(vdat)}
            s_and_b32 {sr(T1)}, vcc_lo, {mask:#x}
            s_cbranch_scc0 {ok}
            s_sub_u32 {sr(S_SPIN)}, {sr(S_SPIN)}, 1
            s_cmp_lg_u32 {sr(S_SPIN)}, 0
            s_cbranch_scc1 {lp}_a
            s_branch {ok}
            """)
        return issue, check

    def poll1_addr(self):
        return self.ii(f"""
        s_mul_i32 {sr(T1)}, {sr(S_HD)}, 20
        v_and_b32 v23, 1, v0
        v_mul_u32_u24 v23, 19, v23
        v_add_u32 v23, {sr(T1)}, v23
        v_lshrrev_b32 v23, 7, v23
        v_lshrrev_b32 v24, 2, v0
        v_mul_u32_u24 v25, 5, v24
        v_add_u32 v23, v23, v25
        v_bfe_u32 v25, v0, 1, 1
        v_lshlrev_b32 v25, 3, v25
        v_add_u32 v25, {sr(S_WV)}, v25
        s_lshr_b32 {sr(T1)}, {sr(S_RTQ)}, 2
        v_cmp_eq_u32 vcc, 0, v24
        v_mov_b32 v24, {sr(T1)}
        s_nop 0
        v_cndmask_b32 v25, v25, v24, vcc
        v_lshl_add_u32 v23, v23, 4, v25
        v_lshlrev_b32 {vr(A_P)}, 7, v23
        """)

    def kv_dma(self, half):
        out = []
        for i in range(10):
            o = half * 81920 + i * 1024
            out.append(self.vm(f"s_mul_i32 {sr(T2)}, {sr(S_WV)}, 10240\ns_add_u32 m0, {sr(T2)}, {o}\n"
                               f"s_add_u32 {sr(T2)}, {sr(S_KVB)}, {o}\n"
                               f"buffer_load_dwordx4 {vr(A_L16)}, {sr(R_WS, 4)}, {sr(T2)} offen sc1 lds", f"kv{half}"))
        return out

    def att_setup(self):
        e = self.e

        def a():
            e.i(f"""
            v_lshlrev_b32 {vr(A_L16)}, 4, v0
            v_lshrrev_b32 v23, 5, v0
            v_bfe_u32 v24, v0, 3, 2
            v_and_b32 v25, 3, v0
            v_lshl_add_u32 v24, v24, 2, v25
            v_bfe_u32 v25, v0, 2, 1
            v_lshlrev_b32 v26, 9, v23
            v_lshl_add_u32 v26, v25, 8, v26
            v_lshl_add_u32 {vr(A_AK)}, v24, 4, v26
            v_mul_u32_u24 v26, 2560, v23
            v_lshl_add_u32 v26, v24, 4, v26
            v_lshl_add_u32 {vr(A_AKR)}, v25, 3, v26
            v_and_b32 v24, 31, v0
            v_mul_u32_u24 v26, 320, v23
            v_lshl_add_u32 {vr(A_AV)}, v24, 4, v26
            v_mov_b32 {vr(A_IDX)}, 0xdddddddd
            """)

        def b():
            for r in range(A_VLO, A_VLO + 12):
                e.i(f"v_mov_b32 {vr(r)}, 0x3f803f80")

        def c():
            for r in range(A_O, A_O + 16):
                e.i(f"v_mov_b32 {vr(r)}, 0")
        return [a, b, c]

    def q_loads(self):
        e = self.e

        def f():
            e.i(f"""
            s_lshl_b32 {sr(T1)}, {sr(S_HD)}, 6
            s_add_u32 {sr(T1)}, {sr(T1)}, {sr(S_RTQ)}
            s_mul_i32 {sr(T1)}, {sr(T1)}, 1280
            s_add_u32 {sr(T1)}, {sr(T1)}, {OFF_Q}
            v_bfe_u32 v23, v0, 4, 1
            v_lshlrev_b32 v23, 3, v23
            v_lshl_add_u32 v23, {vr(V_L15)}, 4, v23
            """)
            e.vmem(f"buffer_load_dwordx4 {vr(A_QM, 4)}, {vr(A_L16)}, {sr(R_WS, 4)}, {sr(T1)} offen sc1", "q")
            e.vmem(f"buffer_load_dwordx2 {vr(A_QLO, 2)}, v23, {sr(R_WS, 4)}, {sr(T1)} offen offset:1024 sc1", "q")
        return [f]

    def pass2(self, ch):
        e = self.e
        nt = 3 if ch else 4
        p_issue, p_check = self.poll(A_P, A_P + 1, 1, 12, "p1")
        prev = self.mfmas(0, nt, 0, False, False)
        for u in range(1, 20):
            s, ksl = 10 + (u >> 2), u & 3
            extra = []
            if ksl == 0:
                self.stage_sync(s, ["e1", "dbg"] if s == 12 else [])
                if s == 12:
                    self.flag_store(1, True)
            else:
                e.wait(lg="all")
            if u == 5:
                extra = self.side_issue()
            if u == 10:
                extra = self.side_job_read()
            if u == 11:
                extra = self.side_job_store()
            if u == 12:
                extra = self.side_gate()
            if u == 13:
                extra = [self.poll1_addr()]
            if u == 14:
                extra = self.att_setup()
            if u == 15:
                extra = [p_issue]
            if u == 18:
                extra = [p_check] + self.q_loads() + self.kv_dma(0)
            self.unit(prev, self.reads(s, ksl, nt, u & 1), extra)
            prev = self.mfmas(u, nt, u & 1, False, False)
        e.wait(lg="all")
        e.i("s_barrier")
        self.unit(prev, [], self.kv_dma(1))
        self.stamp(3)
        e.i(f"""
        v_lshlrev_b32 v23, 9, {vr(V_G4)}
        v_lshl_add_u32 v23, {vr(V_L15)}, 4, v23
        v_lshrrev_b32 v24, 1, {vr(V_G4)}
        v_lshlrev_b32 v24, 9, v24
        v_lshl_add_u32 v24, {vr(V_L15)}, 4, v24
        v_and_b32 v25, 1, {vr(V_G4)}
        v_lshl_add_u32 v24, v25, 3, v24
        s_nop 0
        """)
        pk = V_WB[0]
        for p in range(2):
            tiles = [n for n in (2 * p, 2 * p + 1) if n < nt]
            for n in tiles:
                for k in range(8):
                    r = acc(n, 0) + k
                    e.i(f"v_max_f32 {vr(r)}, 0, {vr(r)}")
                for k in range(8):
                    r = acc(n, 0) + k
                    e.i(f"v_mul_f32 {vr(r)}, {vr(r)}, {vr(r)}")
            for rt in range(2):
                b = pk + 8 * p + 4 * rt
                for ab, n in enumerate(tiles):
                    for h in range(2):
                        a = acc(n, rt) + 2 * h
                        e.i(f"v_cvt_pk_bf16_f32 {vr(b + 2 * ab + h)}, {vr(a)}, {vr(a + 1)}")
                if len(tiles) == 2:
                    e.vmem(f"buffer_store_dwordx4 {vr(b, 4)}, v23, {sr(R_WS, 4)}, {sr(S_HST)} offen "
                           f"offset:{2048 * p + 256 * rt} sc1", "hs")
                else:
                    e.vmem(f"buffer_store_dwordx2 {vr(b, 2)}, v24, {sr(R_WS, 4)}, {sr(S_HST)} offen "
                           f"offset:{2048 * p + 256 * rt} sc1", "hs")

    def lds_off(self, reg, off):
        base = self.win[reg]
        while off - base > 65535 - 2560:
            base += 61440
            self.e.i(f"v_add_u32 {vr(reg)}, 61440, {vr(reg)}")
        self.win[reg] = base
        return off - base

    def rd_k(self, t):
        if t < 64:
            o = self.lds_off(A_AK, t * 2560)
            self.e.lds(f"ds_read_b128 {vr(A_KM, 4)}, {vr(A_AK)} offset:{o}", f"k{t}")

    def rd_kr(self, t):
        if t < 64:
            o = self.lds_off(A_AKR, t * 2560)
            self.e.lds(f"ds_read_b64 {vr(A_KR, 2)}, {vr(A_AKR)} offset:{o + 1024}", f"r{t}")

    def rd_v(self, t):
        if t < 64:
            e = self.e
            o = self.lds_off(A_AV, t * 2560)
            e.i(f"s_mov_b64 exec, {sr(S_VMASK, 2)}")
            e.lds(f"ds_read_b128 {vr(A_VLO, 4)}, {vr(A_AV)} offset:{o + 1280}", f"vl{t}")
            e.lds(f"ds_read_b128 {vr(A_VHI[t & 1], 4)}, {vr(A_AV)} offset:{o + 1920}", f"vh{t}")
            e.i("s_mov_b64 exec, -1")

    def qk1(self, t):
        self.e.wait(lg=f"k{t}")
        self.e.i(f"v_mfma_f32_32x32x16_bf16 {vr(A_S[t & 1], 16)}, {vr(A_KM, 4)}, {vr(A_QM, 4)}, 0")
        self.rd_k(t + 1)

    def qk2(self, t):
        self.e.wait(lg=f"r{t & ~1}")
        s = vr(A_S[t & 1], 16)
        self.e.i(f"v_mfma_f32_32x32x8_bf16 {s}, {vr(A_KR, 2)}, {vr((A_QLO, A_QHI)[t & 1], 2)}, {s}")
        if t & 1:
            self.rd_kr(t + 1)

    def pvlo(self, t):
        self.e.wait(lg=f"vl{t}")
        self.e.i(f"v_smfmac_f32_32x32x32_bf16 {vr(A_O, 16)}, {vr(A_VLO, 4)}, {vr(A_S[t & 1], 8)}, {vr(A_IDX)}")
        self.rd_v(t + 1)

    def pvhi(self, t):
        self.e.wait(lg=f"vh{t}")
        self.e.i(f"v_smfmac_f32_32x32x32_bf16 {vr(A_O, 16)}, {vr(A_VHI[t & 1], 4)}, {vr(A_S[t & 1] + 8, 8)}, {vr(A_IDX)}")

    def ring_h(self, i):
        return A_RING + (i % NB) * 24

    def ring_w(self, i, n):
        if i >= 14 + NB:
            return [[152, 156, 160, 164, 168], [172, 176, 180, 116, 120]][i - 14 - NB][n]
        return A_RING + (i % NB) * 24 + 4 + 4 * n

    def ld_w(self, i, n):
        e = self.e
        if i < 14:
            e.i(f"s_add_u32 {sr(T2)}, {sr(S_WB)}, {i * 20480 + n * 1024}")
        else:
            e.i(f"s_add_u32 {sr(T2)}, {sr(S_EPI)}, {(i - 14) * 20480 + n * 1024}")
        e.vmem(f"buffer_load_dwordx4 {vr(self.ring_w(i, n), 4)}, {vr(A_L16)}, {sr(R_WS, 4)}, {sr(T2)} offen sc1", f"w{i}_{n}")

    def ld_h(self, i):
        e = self.e
        e.i(f"s_add_u32 {sr(T2)}, {sr(S_HB)}, {i * 1024}")
        e.vmem(f"buffer_load_dwordx4 {vr(self.ring_h(i), 4)}, {vr(A_L16)}, {sr(R_WS, 4)}, {sr(T2)} offen sc1", f"h{i}")

    def ffn_mfma(self, i, n):
        e = self.e
        e.wait(vm=[f"w{i}_{n}", f"h{i}"])
        d = vr(A_FACC + 16 * n, 16)
        e.i(f"v_mfma_f32_32x32x16_bf16 {d}, {vr(self.ring_w(i, n), 4)}, {vr(self.ring_h(i), 4)}, {'0' if i == 0 else d}")
        self.ld_w(i + NB, n)
        if n == 4 and i + NB < 14:
            self.ld_h(i + NB)

    def attention(self):
        e, c = self.e, self.c
        self.win = {A_AK: 0, A_AKR: 0, A_AV: 0}
        p_issue, p_check = self.poll(A_P, A_P + 1, 2, 32, "p2")
        e.i(f"""
        s_lshl_b32 {sr(T1)}, {sr(S_WV)}, 12
        v_lshlrev_b32 {vr(A_P)}, 7, v0
        v_add_u32 {vr(A_P)}, {sr(T1)}, {vr(A_P)}
        s_mul_i32 {sr(T1)}, {sr(S_WV)}, 100
        s_mul_i32 {sr(T2)}, {sr(S_CT)}, 5
        s_add_u32 {sr(T1)}, {sr(T1)}, {sr(T2)}
        s_lshl_b32 {sr(T1)}, {sr(T1)}, 10
        s_add_u32 {sr(S_EPI)}, {sr(T1)}, {OFF_WT + 112 * 20480}
        """)
        e.wait(vm=["kv0", "q"])
        e.i(f"""
        v_mov_b32 {vr(A_QHI)}, {vr(A_QLO)}
        v_mov_b32 {vr(A_QHI + 1)}, {vr(A_QLO + 1)}
        s_mov_b32 exec_hi, 0
        v_mov_b32 {vr(A_QHI)}, 0
        v_mov_b32 {vr(A_QHI + 1)}, 0
        s_not_b64 exec, exec
        v_mov_b32 {vr(A_QLO)}, 0
        v_mov_b32 {vr(A_QLO + 1)}, 0
        s_mov_b64 exec, -1
        s_barrier
        """)
        self.stamp(4)
        self.rd_k(0)
        self.rd_kr(0)
        self.rd_v(0)
        self.qk1(0)
        self.qk2(0)
        e.i("s_nop 11")
        ffn = [(i, n) for i in range(14) for n in range(5)]
        nemb = c.ffn_end - c.ffn_start
        done = 0
        for t in range(64):
            nf = 0
            if c.ffn_start <= t < c.ffn_end:
                nf = min(2, (70 * (t - c.ffn_start + 1) + nemb - 1) // nemb - done)
            fs = ffn[done:done + nf]
            done += nf
            if t == c.t_flag2:
                e.wait(vm="all")
                e.i("s_barrier")
                self.flag_store(2, False)
            if t == c.t_poll2:
                p_issue()
            if t == c.t_chk2:
                p_check()
                e.i("s_barrier")
                self.stamp(5)
                self.after_flags2()
            self.tile(t, fs)
        e.i("s_nop 1")
        self.pvhi(63)
        self.stamp(6)
        for i, n in ffn[done:]:
            self.ffn_mfma(i, n)

    def after_flags2(self):
        e = self.e
        for i in range(NB):
            self.ld_h(i)
            for n in range(5):
                self.ld_w(i, n)
        e.i(f"""
        v_bfe_u32 {vr(A_T)}, v0, 3, 2
        v_and_b32 {vr(A_T + 1)}, 7, v0
        v_lshlrev_b32 {vr(A_T + 1)}, 2, {vr(A_T + 1)}
        v_lshl_add_u32 {vr(A_T)}, {vr(A_T)}, 7, {vr(A_T + 1)}
        s_lshl_b32 {sr(T1)}, {sr(S_RTQ)}, 9
        s_add_u32 {sr(T1)}, {sr(T1)}, {OFF_G}
        s_lshl_b32 {sr(T2)}, {sr(S_RT)}, 9
        s_add_u32 {sr(T2)}, {sr(T2)}, {OFF_G}
        """)
        e.vmem(f"buffer_load_dword {vr(A_GA)}, {vr(A_T)}, {sr(R_WS, 4)}, {sr(T1)} offen sc1", "g")
        e.vmem(f"buffer_load_dword {vr(A_GF)}, {vr(A_T)}, {sr(R_WS, 4)}, {sr(T2)} offen sc1", "g")

    def tile(self, t, fs):
        e = self.e
        x = A_S[t & 1]
        slots = {0: {2: "hi", 6: "q1", 10: "q2", 14: "lo"},
                 1: {2: "hi", 5: "q1", 9: "q2", 12: "lo", 15: "f"},
                 2: {2: "hi", 4: "q1", 7: "f", 10: "q2", 13: "lo", 15: "f"}}[len(fs)]
        fs = list(fs)
        for k in range(16):
            op = slots.get(k)
            if op == "hi" and t > 0:
                self.pvhi(t - 1)
            elif op == "q1" and t < 63:
                self.qk1(t + 1)
            elif op == "q2" and t < 63:
                self.qk2(t + 1)
            elif op == "lo":
                self.pvlo(t)
            elif op == "f":
                self.ffn_mfma(*fs.pop(0))
            e.i(f"v_exp_f32 {vr(x + k)}, {vr(x + k)}")
            if k in (11, 12):
                e.i("s_nop 0")

    def fallback(self, back):
        x, m = A_S[0], A_S[1]
        L = []
        A = L.append
        A(f"""
        L_fb:
        v_add_u32 {vr(A_AK)}, {(-self.win[A_AK]) & 0xffffffff:#x}, {vr(A_AK)}
        v_add_u32 {vr(A_AKR)}, {(-self.win[A_AKR]) & 0xffffffff:#x}, {vr(A_AKR)}
        v_add_u32 {vr(A_AV)}, {(-self.win[A_AV]) & 0xffffffff:#x}, {vr(A_AV)}
        v_mov_b32 {vr(m)}, 0xff800000
        """)
        for ps in range(2):
            A(f"s_mov_b32 {sr(T1)}, 0\nL_fb{ps}:")
            for par in range(2):
                A(f"""
                ds_read_b128 {vr(A_KM, 4)}, {vr(A_AK)} offset:{par * 2560}
                ds_read_b64 {vr(A_KR, 2)}, {vr(A_AKR)} offset:1024
                """)
                if ps:
                    A(f"""
                    s_mov_b64 exec, {sr(S_VMASK, 2)}
                    ds_read_b128 {vr(A_VLO, 4)}, {vr(A_AV)} offset:{par * 2560 + 1280}
                    ds_read_b128 {vr(A_VHI[0], 4)}, {vr(A_AV)} offset:{par * 2560 + 1920}
                    s_mov_b64 exec, -1
                    """)
                A(f"""
                s_waitcnt lgkmcnt(0)
                v_mfma_f32_32x32x16_bf16 {vr(x, 16)}, {vr(A_KM, 4)}, {vr(A_QM, 4)}, 0
                v_mfma_f32_32x32x8_bf16 {vr(x, 16)}, {vr(A_KR, 2)}, {vr((A_QLO, A_QHI)[par], 2)}, {vr(x, 16)}
                s_nop 11
                """)
                if ps == 0:
                    for k in range(0, 16, 2):
                        A(f"v_max3_f32 {vr(m)}, {vr(m)}, {vr(x + k)}, {vr(x + k + 1)}")
                else:
                    for k in range(16):
                        A(f"v_sub_f32 {vr(x + k)}, {vr(x + k)}, {vr(m)}\nv_exp_f32 {vr(x + k)}, {vr(x + k)}")
                    A(f"""
                    s_nop 1
                    v_smfmac_f32_32x32x32_bf16 {vr(A_O, 16)}, {vr(A_VLO, 4)}, {vr(x, 8)}, {vr(A_IDX)}
                    v_smfmac_f32_32x32x32_bf16 {vr(A_O, 16)}, {vr(A_VHI[0], 4)}, {vr(x + 8, 8)}, {vr(A_IDX)}
                    s_nop 7
                    """)
            A(f"""
            v_add_u32 {vr(A_AK)}, 5120, {vr(A_AK)}
            v_add_u32 {vr(A_AKR)}, 5120, {vr(A_AKR)}
            """)
            if ps:
                A(f"v_add_u32 {vr(A_AV)}, 5120, {vr(A_AV)}")
            A(f"""
            s_add_u32 {sr(T1)}, {sr(T1)}, 1
            s_cmp_lt_u32 {sr(T1)}, 32
            s_cbranch_scc1 L_fb{ps}
            """)
            if ps == 0:
                A(f"""
                v_mov_b32 {vr(m + 1)}, {vr(m)}
                v_add_u32 {vr(A_AK)}, {(-163840) & 0xffffffff:#x}, {vr(A_AK)}
                v_add_u32 {vr(A_AKR)}, {(-163840) & 0xffffffff:#x}, {vr(A_AKR)}
                v_permlane32_swap_b32 {vr(m)}, {vr(m + 1)}
                s_nop 1
                v_max_f32 {vr(m)}, {vr(m)}, {vr(m + 1)}
                """)
                for r in range(A_O, A_O + 16):
                    A(f"v_mov_b32 {vr(r)}, 0")
        A(f"s_nop 7\ns_branch {back}")
        self.cold.append("\n".join(L))

    def tail(self):
        e, c = self.e, self.c
        o, t0 = A_O, A_T
        back = "L_fb_back"
        e.i("s_nop 11")
        e.i(f"v_mov_b32 {vr(t0)}, {vr(o + 12)}")
        for k in range(12):
            e.i(f"v_fma_f32 {vr(t0)}, {vr(o + k)}, 0, {vr(t0)}")
        lo, hi = (2.0 ** 40, 2.0 ** -20) if c.force_fallback else (2.0 ** -20, 2.0 ** 40)
        e.i(f"""
        v_cmp_nle_f32 vcc, {f32(lo)}, {vr(t0)}
        s_mov_b64 {sr(S_MA, 2)}, vcc
        v_cmp_nge_f32 vcc, {f32(hi)}, {vr(t0)}
        s_or_b64 vcc, vcc, {sr(S_MA, 2)}
        s_cbranch_scc1 L_fb
        """)
        e.label(back)
        self.fallback(back)
        e.wait(vm="g")
        e.i(f"""
        v_rcp_f32 {vr(t0)}, {vr(o + 12)}
        v_and_b32 {vr(t0 + 1)}, 31, v0
        v_mul_f32 {vr(t0)}, {vr(t0)}, {vr(A_GA)}
        v_lshlrev_b32 {vr(t0 + 1)}, 3, {vr(t0 + 1)}
        """)
        for k in range(12):
            e.i(f"v_mul_f32 {vr(o + k)}, {vr(o + k)}, {vr(t0)}")
        for k in range(6):
            e.i(f"v_cvt_pk_bf16_f32 {vr(o + k)}, {vr(o + 2 * k)}, {vr(o + 2 * k + 1)}")
        for k in range(6):
            e.i(f"v_min_u32 {vr(o + k)}, -2, {vr(o + k)}")
        e.vmem(f"buffer_store_dwordx4 {vr(o, 4)}, {vr(A_L16)}, {sr(R_WS, 4)}, {sr(S_OBLK)} offen sc1", "os")
        e.i("s_mov_b32 exec_hi, 0")
        e.vmem(f"buffer_store_dwordx2 {vr(o + 4, 2)}, {vr(t0 + 1)}, {sr(R_WS, 4)}, {sr(S_OBLK)} offen offset:1024 sc1", "os")
        e.i("s_mov_b64 exec, -1")
        for i in range(14 + NB, 19):
            for n in range(5):
                self.ld_w(i, n)
        e.i(f"""
        v_lshrrev_b32 v1, 5, v0
        v_lshlrev_b32 v1, 3, v1
        s_mul_i32 {sr(T1)}, {sr(S_CT)}, 320
        s_lshl_b32 {sr(T2)}, {sr(S_WV)}, 4
        s_add_u32 {sr(T1)}, {sr(T1)}, {sr(T2)}
        """)
        for k in range(3):
            e.vmem(f"buffer_load_dwordx2 {vr(2 + 2 * k, 2)}, v1, {sr(R_B2, 4)}, {sr(T1)} offen offset:{128 * k}", "b2")
        e.i(f"v_sub_f32 {vr(A_GF)}, 1.0, {vr(A_GF)}")
        e.i("s_barrier")
        for k in range(80):
            e.i(f"v_mul_f32 {vr(A_FACC + k)}, {vr(A_FACC + k)}, {vr(A_GF)}")
        of = [self.ring_h(0), self.ring_h(1), self.ring_h(2), 124, 128]
        e.i(f"""
        v_lshrrev_b32 v8, 5, v0
        v_mul_u32_u24 v8, 2560, v8
        v_add_u32 v8, v8, {vr(t0 + 1)}
        s_lshl_b32 {sr(T3)}, {sr(S_RT)}, 5
        s_lshl_b32 {sr(T2)}, {sr(S_WV)}, 2
        s_add_u32 {sr(T3)}, {sr(T3)}, {sr(T2)}
        s_mul_i32 {sr(T3)}, {sr(T3)}, 1280
        s_add_u32 {sr(T3)}, {sr(T3)}, {OFF_O}
        s_mov_b32 {sr(S_SPIN)}, {SPIN}
        """)
        e.wait(vm="os")
        self.stamp(7)
        e.label("L_opoll")
        for m in range(4):
            e.vmem(f"buffer_load_dwordx4 {vr(of[m], 4)}, {vr(A_L16)}, {sr(R_WS, 4)}, {sr(T3)} offen offset:{1280 * m} sc1", "o")
        for a in range(2):
            e.vmem(f"buffer_load_dwordx2 {vr(of[4] + 2 * a, 2)}, v8, {sr(R_WS, 4)}, {sr(T3)} offen offset:{1024 + 1280 * a} sc1", "o")
        e.wait(vm="all")
        rs = [of[m] + k for m in range(5) for k in range(4)]
        e.i(f"v_max_u32 v9, {vr(rs[0])}, {vr(rs[1])}")
        for k in range(2, 20, 2):
            e.i(f"v_max3_u32 v9, v9, {vr(rs[k])}, {vr(rs[k + 1])}")
        e.i(f"""
        v_cmp_eq_u32 vcc, -1, v9
        s_sub_u32 {sr(S_SPIN)}, {sr(S_SPIN)}, 1
        s_cmp_eq_u32 {sr(S_SPIN)}, 0
        s_cbranch_scc1 L_odone
        s_cbranch_vccnz L_opoll
        """)
        e.label("L_odone")
        self.stamp(8)
        e.i(f"""
        s_mul_i32 {sr(T1)}, {sr(S_WV)}, 20480
        v_add_u32 v9, {sr(T1)}, {vr(A_L16)}
        """)

        def dump(n):
            for i in range(4):
                e.lds(f"ds_write_b128 v9, {vr(A_FACC + 16 * n + 4 * i, 4)} offset:{(4 * n + i) * 1024}", "dw")
        for n in range(5):
            d = vr(A_FACC + 16 * n, 16)
            for m in range(5):
                e.i(f"v_mfma_f32_32x32x16_bf16 {d}, {vr(self.ring_w(14 + m, n), 4)}, {vr(of[m], 4)}, {d}")
            if n:
                e.i("s_nop 6")
                dump(n - 1)
        e.i("s_nop 7")
        dump(4)
        e.i(f"""
        s_lshl_b32 {sr(T1)}, {sr(S_WV)}, 10
        v_add_u32 v9, {sr(T1)}, {vr(A_L16)}
        v_add_u32 v10, 81920, v9
        v_and_b32 v11, 31, v0
        v_mul_u32_u24 v11, 1280, v11
        v_add_u32 v11, v11, v1
        s_mul_i32 {sr(T1)}, {sr(S_RT)}, {32 * 1280}
        s_mul_i32 {sr(T2)}, {sr(S_CT)}, 320
        s_add_u32 {sr(T1)}, {sr(T1)}, {sr(T2)}
        s_lshl_b32 {sr(T2)}, {sr(S_WV)}, 4
        s_add_u32 {sr(T1)}, {sr(T1)}, {sr(T2)}
        """)
        e.wait(lg="all")
        e.i("s_barrier")
        self.stamp(9)
        for k in range(3):
            if k == 2:
                e.i(f"s_cmp_ge_u32 {sr(S_WV)}, 4\ns_cbranch_scc1 L_fin")
            if k:
                e.i("v_add_u32 v9, 8192, v9\nv_add_u32 v10, 8192, v10")
            b = 16 + 32 * (k & 1)
            for w in range(8):
                e.lds(f"ds_read_b128 {vr(b + 4 * w, 4)}, {vr(9 + (w >> 2))} offset:{(w & 3) * 20480}", f"rr{w}")
            for j in range(4):
                src = 2 + 2 * k + (j >> 1)
                e.i(f"v_and_b32 {vr(12 + j)}, 0xffff0000, {vr(src)}" if j & 1 else f"v_lshlrev_b32 {vr(12 + j)}, 16, {vr(src)}")
            for w in range(8):
                e.wait(lg=f"rr{w}")
                for j in range(4):
                    if w == 0:
                        e.i(f"v_fma_f32 {vr(12 + j)}, {vr(12 + j)}, {vr(A_GF)}, {vr(b + j)}")
                    else:
                        e.i(f"v_add_f32 {vr(12 + j)}, {vr(12 + j)}, {vr(b + 4 * w + j)}")
            e.i(f"""
            v_cvt_pk_bf16_f32 {vr(b)}, v12, v13
            v_cvt_pk_bf16_f32 {vr(b + 1)}, v14, v15
            buffer_store_dwordx2 {vr(b, 2)}, v11, {sr(R_OUT, 4)}, {sr(T1)} offen offset:{128 * k}
            """)
        e.label("L_fin")
        if c.dev:
            self.dev_dump()

    def dev_dump(self):
        e = self.e
        e.i(f"""
        s_waitcnt vmcnt(0)
        s_memtime s[36:37]
        s_memrealtime s[12:13]
        s_lshl_b32 {sr(T0)}, s2, 3
        s_add_u32 {sr(T0)}, {sr(T0)}, {sr(S_WV)}
        s_lshl_b32 {sr(T0)}, {sr(T0)}, 7
        s_add_u32 {sr(T0)}, {sr(T0)}, {OFF_DEV}
        s_waitcnt lgkmcnt(0)
        s_mov_b64 exec, 1
        """)
        for k in range(12):
            e.i(f"v_mov_b32 v1, {sr(16 + 2 * k)}\nbuffer_store_dword v1, off, {sr(R_WS, 4)}, {sr(T0)} offset:{4 * k}")
        e.i(f"v_mov_b32 v1, s12\nbuffer_store_dword v1, off, {sr(R_WS, 4)}, {sr(T0)} offset:48")
        e.i(f"v_mov_b32 v1, {sr(S_SPIN)}\nbuffer_store_dword v1, off, {sr(R_WS, 4)}, {sr(T0)} offset:52")

    def build(self):
        e = self.e
        self.prologue()
        e.i(f"s_cmp_ge_u32 {sr(S_SEC)}, 2\ns_cbranch_scc1 L_p1v")
        snap = e.snapshot()
        self.pass1(False)
        after = e.snapshot()
        e.i("s_branch L_p2")
        e.label("L_p1v")
        e.restore(snap)
        self.pass1(True)
        assert e.snapshot() == after
        e.label("L_p2")
        e.i(f"s_cmp_lg_u32 {sr(S_CH)}, 0\ns_cbranch_scc1 L_p2b")
        self.pass2(0)
        after2 = e.snapshot()
        e.i("s_branch L_att")
        e.label("L_p2b")
        e.restore(after)
        self.pass2(1)
        assert e.snapshot() == after2
        e.label("L_att")
        self.attention()
        self.tail()
        e.label("L_end")
        e.i("s_endpgm")
        for blk in self.cold:
            e.i(blk)
        return e


HEADER = """; Fused gate + multi-head attention block + squared-ReLU FFN, one persistent launch (generated by gen/gen.py).
; @launch grid=(256,1,1) block=(512,1,1) lds=163840
.amdgcn_target "amdgcn-amd-amdhsa--gfx950"
.text
.globl {n}_kernel
.p2align 8
.type {n}_kernel,@function
{n}_kernel:
"""
FOOTER = """
.section .rodata,"a"
.p2align 6
.amdhsa_kernel {n}_kernel
  .amdhsa_next_free_vgpr 256
  .amdhsa_next_free_sgpr 102
  .amdhsa_accum_offset 256
  .amdhsa_group_segment_fixed_size 0
  .amdhsa_kernarg_size 96
  .amdhsa_user_sgpr_count 2
  .amdhsa_user_sgpr_kernarg_segment_ptr 1
  .amdhsa_system_sgpr_workgroup_id_x 1
  .amdhsa_float_denorm_mode_32 3
.end_amdhsa_kernel
"""


def generate(**kw):
    cfg = Cfg()
    for k, v in kw.items():
        assert hasattr(cfg, k), k
        setattr(cfg, k, v)
    e = Gen(cfg).build()
    errs = check_hazards(e.lines)
    if errs:
        for x in errs[:40]:
            print("HAZARD", x, file=sys.stderr)
        raise SystemExit(f"{len(errs)} hazards")
    return HEADER.format(n=NAME) + e.text() + "\n" + FOOTER.format(n=NAME)


if __name__ == "__main__":
    out = sys.argv[1]
    kw = {}
    for a in sys.argv[2:]:
        k, v = a.split("=")
        kw[k] = int(v)
    open(out, "w").write(generate(**kw))
```

```python
import math
import struct
import sys

from asmlib import Emit, check_hazards, sr, vr

NAME = "gated_mix__mha_block__dense_activation_squared_relu__prompt"

OFF_FLG = 0
OFF_G = 32768
OFF_Q = 65536
OFF_KV = OFF_Q + 32 * 64 * 1280
OFF_H = OFF_KV + 32 * 64 * 2560
OFF_WT = OFF_H + 64 * 112 * 1024
OFF_O = OFF_WT + 152 * 20 * 1024
OFF_DEV = OFF_O + 64 * 32 * 1280
WS_SIZE = OFF_DEV + 2048 * 128
OOB = 0x40000000
SPIN = 400000


def f32(x):
    return "0x%08x" % struct.unpack("<I", struct.pack("<f", x))[0]


S_WV, S_XCD, S_J, S_RB, S_CG, S_RQ, S_CH, S_M0 = 3, 4, 5, 6, 7, 8, 9, 10
T0, T1, T2, T3, T4 = 11, 12, 13, 14, 15
P_X, P_WQ, P_WO, P_W1, P_B1, P_W2, P_B2, P_GW, P_OUT, P_DBG, P_WS = 16, 18, 20, 24, 26, 28, 30, 32, 34, 36, 38
R_X, R_WQ, R_W1, R_WS, R_JOB, R_B1, R_B2, R_GW, R_OUT, R_DBG = 40, 44, 48, 52, 56, 60, 64, 68, 72, 76
S_HD, S_RTQ, S_RT, S_CT, S_BLK, S_SCALE = 80, 81, 82, 83, 84, 85
S_VMASK = 86
S_EPI, S_JST, S_OBLK, S_HB, S_WB, S_SEC, S_GAM, S_HST = 88, 89, 90, 91, 92, 93, 94, 95
S_MA, S_MB = 96, 98
S_SPIN = 100
S_KVB = 101

V_LANE = 0
V_X0, V_X1, V_W, V_W1 = 1, 2, 3, 4
V_XR = 5
V_WR = 7
V_ST = 11
V_L15, V_G4 = 15, 16
V_WR2 = 17
V_T = 21
V_BIAS = 24
V_ACC = 32
V_WB = (64, 80)
V_XF = 96

A_AK, A_AKR, A_AV, A_IDX, A_L16, A_GA, A_GF = 97, 98, 99, 100, 101, 102, 103
A_T = 104
A_QLO, A_QHI, A_KR, A_QM, A_KM, A_VLO = 106, 108, 110, 112, 116, 120
A_VHI = (124, 128)
A_P = 132
A_O = 136
A_S = (152, 168)
A_RING = 184
A_FACC = 16
NB = 3


STAMPSETS = {
    0: [],
    1: ["pro", "b0", "p1end", "p2end", "att0", "chk2", "attend", "odrain", "oload", "dumped"],
    2: ["pro", "b0", "b2", "b4", "b6", "b8", "p1end", "e1end", "b11", "b12"],
    3: ["pro", "p1end", "b11", "b12", "b13", "b14", "u18", "chk1", "p2end", "att0"],
    4: ["pro", "att0", "fl2a", "fl2b", "chk2a", "chk2", "t16", "t32", "t48", "attend"],
}


class Cfg:
    dev = 0
    dbgwg = -1
    ffn_start = 16
    ffn_end = 64
    t_flag2 = 4
    t_poll2 = 8
    t_chk2 = 11
    force_fallback = False


def acc(n, rt):
    return V_ACC + (n * 2 + rt) * 4


def xf(ks, rt):
    return V_XF + (ks * 2 + rt) * 4


def srd(e, r, p, size):
    e.i(f"s_mov_b32 {sr(r)}, {sr(p)}")
    e.i(f"s_mov_b32 {sr(r + 1)}, {sr(p + 1)}")
    e.i(f"s_mov_b32 {sr(r + 2)}, {size}")
    e.i(f"s_mov_b32 {sr(r + 3)}, 0x20000")


class Gen:
    def __init__(self, cfg):
        self.c = cfg
        self.e = Emit()
        self.cold = []
        self.nlab = 0

    def stamp(self, name):
        names = STAMPSETS[self.c.dev]
        if name in names:
            self.e.i(f"s_memtime {sr(16 + 2 * names.index(name), 2)}")

    def lab(self, base):
        self.nlab += 1
        return f"L_{base}_{self.nlab}"

    def dma_stage(self, s):
        slot = (s % 5) * 32768
        out = []
        for i in range(4):
            m0 = slot + (i & 1) * 1024 + (i >> 1) * 16384
            if s < 10:
                if i < 2:
                    va, r, so = (V_X0, V_X1)[i], R_X, s * 128
                else:
                    va, r, so = V_W, R_WQ, (s * 64 + (i & 1) * 4) * 3840
            else:
                va, r, so = V_W1, R_W1, ((s - 10) * 128 + (i & 1) * 4 + (i >> 1) * 64) * 3456
            out.append((f"s_add_u32 m0, {sr(S_M0)}, {m0}\ns_mov_b32 {sr(T0)}, {so}\n"
                        f"buffer_load_dwordx4 {vr(va)}, {sr(r, 4)}, {sr(T0)} offen lds", f"st{s}"))
        return out

    def prologue(self):
        e = self.e
        e.i(f"""
        s_cmp_ge_u32 s2, 256
        s_cbranch_scc1 L_end
        s_load_dwordx16 s[16:31], s[0:1], 0
        s_load_dwordx8 s[32:39], s[0:1], 64
        {"s_memrealtime vcc" if self.c.dev else ""}
        v_lshrrev_b32 v21, 6, v0
        v_and_b32 v0, 63, v0
        v_readfirstlane_b32 {sr(S_WV)}, v21
        s_and_b32 {sr(S_XCD)}, s2, 7
        s_lshr_b32 {sr(S_J)}, s2, 3
        s_and_b32 {sr(T0)}, {sr(S_XCD)}, 1
        s_lshl_b32 {sr(T0)}, {sr(T0)}, 3
        s_and_b32 {sr(T1)}, {sr(S_J)}, 7
        s_add_u32 {sr(S_RB)}, {sr(T0)}, {sr(T1)}
        s_lshr_b32 {sr(T0)}, {sr(S_XCD)}, 1
        s_lshl_b32 {sr(T0)}, {sr(T0)}, 2
        s_lshr_b32 {sr(T1)}, {sr(S_J)}, 3
        s_add_u32 {sr(S_CG)}, {sr(T0)}, {sr(T1)}
        s_and_b32 {sr(S_RQ)}, {sr(S_WV)}, 3
        s_lshr_b32 {sr(S_CH)}, {sr(S_WV)}, 2
        s_lshl_b32 {sr(S_M0)}, {sr(S_WV)}, 11
        v_and_b32 {vr(V_L15)}, 15, v0
        v_lshrrev_b32 {vr(V_G4)}, 4, v0
        """)
        e.i(f"""
        v_lshrrev_b32 v21, 3, v0
        v_and_b32 v22, 7, v0
        v_xor_b32 v22, v22, {vr(V_G4)}
        v_lshlrev_b32 v22, 4, v22
        s_lshl_b32 {sr(T0)}, {sr(S_RB)}, 7
        s_lshl_b32 {sr(T1)}, {sr(S_WV)}, 4
        s_add_u32 {sr(T0)}, {sr(T0)}, {sr(T1)}
        v_add_u32 v21, {sr(T0)}, v21
        v_mul_u32_u24 v21, 1280, v21
        v_add_u32 {vr(V_X0)}, v21, v22
        v_xor_b32 {vr(V_X1)}, 64, {vr(V_X0)}
        v_add_u32 {vr(V_X1)}, 10240, {vr(V_X1)}
        """)
        e.i(f"""
        s_and_b32 {sr(T0)}, {sr(S_WV)}, 1
        s_lshl_b32 {sr(T0)}, {sr(T0)}, 3
        v_lshlrev_b32 v23, 1, {vr(V_G4)}
        v_or_b32 v23, {sr(T0)}, v23
        v_xor_b32 v23, v23, {vr(V_L15)}
        s_lshl_b32 {sr(T0)}, {sr(S_WV)}, 3
        v_add_u32 v21, {sr(T0)}, {vr(V_G4)}
        v_mul_u32_u24 v22, 3840, v21
        v_lshl_add_u32 v22, v23, 4, v22
        s_lshl_b32 {sr(T0)}, {sr(S_CG)}, 8
        v_add_u32 {vr(V_W)}, {sr(T0)}, v22
        s_waitcnt lgkmcnt(0)
        """)
        if self.c.dev:
            e.i("s_mov_b32 s0, vcc_lo")
        srd(e, R_X, P_X, 2048 * 1280)
        srd(e, R_WQ, P_WQ, 640 * 3840)
        e.i(f"""
        s_cmp_eq_u32 {sr(S_CG)}, 15
        s_cselect_b32 {sr(R_WQ + 2)}, 0, {sr(R_WQ + 2)}
        """)
        srd(e, R_WS, P_WS, WS_SIZE)
        skip = self.lab("noinit")
        e.i(f"""
        s_lshl_b32 {sr(T0)}, s2, 3
        s_add_u32 {sr(T0)}, {sr(T0)}, {sr(S_WV)}
        s_cmp_lg_u32 {sr(T0)}, 7
        s_cbranch_scc1 {skip}
        v_lshlrev_b32 v24, 7, v0
        v_mov_b32 v25, 0
        s_mov_b32 {sr(T0)}, 8192
        s_mov_b32 {sr(T1)}, 16384
        s_mov_b32 {sr(T2)}, 24576
        buffer_store_dword v25, v24, {sr(R_WS, 4)}, 0 offen sc1
        buffer_store_dword v25, v24, {sr(R_WS, 4)}, {sr(T0)} offen sc1
        buffer_store_dword v25, v24, {sr(R_WS, 4)}, {sr(T1)} offen sc1
        buffer_store_dword v25, v24, {sr(R_WS, 4)}, {sr(T2)} offen sc1
        """)
        e.label(skip)
        for s in range(5):
            for txt, tag in self.dma_stage(s):
                e.vmem(txt, tag)
        srd(e, R_W1, P_W1, 640 * 3456)
        srd(e, R_B1, P_B1, 3456)
        srd(e, R_B2, P_B2, 1280)
        srd(e, R_GW, P_GW, 1280)
        srd(e, R_OUT, P_OUT, 2048 * 1280)
        srd(e, R_DBG, P_DBG, 256)
        e.i(f"""
        v_mul_u32_u24 v22, 3456, v21
        v_lshl_add_u32 v22, v23, 4, v22
        s_mul_i32 {sr(T0)}, {sr(S_CG)}, 224
        v_add_u32 {vr(V_W1)}, {sr(T0)}, v22
        s_cmp_eq_u32 {sr(S_CG)}, 15
        s_cselect_b32 {sr(T0)}, 6, 14
        v_cmp_gt_u32 vcc, {sr(T0)}, v23
        v_mov_b32 v22, {OOB}
        s_nop 0
        v_cndmask_b32 {vr(V_W1)}, v22, {vr(V_W1)}, vcc
        """)
        e.i(f"""
        s_lshl_b32 {sr(T0)}, {sr(S_XCD)}, 2
        s_lshr_b32 {sr(S_CT)}, {sr(S_J)}, 3
        s_add_u32 {sr(S_HD)}, {sr(T0)}, {sr(S_CT)}
        s_and_b32 {sr(T1)}, {sr(S_J)}, 7
        s_lshl_b32 {sr(T0)}, {sr(T1)}, 3
        s_add_u32 {sr(S_RTQ)}, {sr(T0)}, {sr(S_WV)}
        s_lshl_b32 {sr(T0)}, {sr(S_XCD)}, 3
        s_add_u32 {sr(S_RT)}, {sr(T0)}, {sr(T1)}
        s_lshl_b32 {sr(T0)}, {sr(S_RB)}, 2
        s_add_u32 {sr(S_BLK)}, {sr(T0)}, {sr(S_RQ)}
        s_mul_i32 {sr(S_SEC)}, {sr(S_CG)}, 52
        s_lshr_b32 {sr(S_SEC)}, {sr(S_SEC)}, 8
        s_mul_i32 {sr(T0)}, {sr(S_SEC)}, 5
        s_sub_u32 {sr(S_GAM)}, {sr(S_CG)}, {sr(T0)}
        s_mov_b32 {sr(S_VMASK)}, 0x000fffff
        s_mov_b32 {sr(S_VMASK + 1)}, 0x000fffff
        s_lshl_b32 {sr(T0)}, {sr(S_RTQ)}, 5
        s_add_u32 {sr(T0)}, {sr(T0)}, {sr(S_HD)}
        s_mul_i32 {sr(T0)}, {sr(T0)}, 1280
        s_add_u32 {sr(S_OBLK)}, {sr(T0)}, {OFF_O}
        s_mul_i32 {sr(T0)}, {sr(S_BLK)}, 112
        s_mul_i32 {sr(T1)}, {sr(S_CG)}, 7
        s_add_u32 {sr(T0)}, {sr(T0)}, {sr(T1)}
        s_lshl_b32 {sr(T1)}, {sr(S_CH)}, 2
        s_add_u32 {sr(T0)}, {sr(T0)}, {sr(T1)}
        s_lshl_b32 {sr(T0)}, {sr(T0)}, 10
        s_add_u32 {sr(S_HST)}, {sr(T0)}, {OFF_H}
        s_mul_i32 {sr(T0)}, {sr(S_RT)}, 112
        s_mul_i32 {sr(T1)}, {sr(S_WV)}, 14
        s_add_u32 {sr(T0)}, {sr(T0)}, {sr(T1)}
        s_lshl_b32 {sr(T0)}, {sr(T0)}, 10
        s_add_u32 {sr(S_HB)}, {sr(T0)}, {OFF_H}
        s_mul_i32 {sr(T0)}, {sr(T1)}, 20
        s_mul_i32 {sr(T1)}, {sr(S_CT)}, 5
        s_add_u32 {sr(T0)}, {sr(T0)}, {sr(T1)}
        s_lshl_b32 {sr(T0)}, {sr(T0)}, 10
        s_add_u32 {sr(S_WB)}, {sr(T0)}, {OFF_WT}
        s_mul_i32 {sr(T0)}, {sr(S_HD)}, {64 * 2560}
        s_mul_i32 {sr(T1)}, {sr(S_WV)}, 10240
        s_add_u32 {sr(T0)}, {sr(T0)}, {sr(T1)}
        s_add_u32 {sr(S_KVB)}, {sr(T0)}, {OFF_KV}
        """)
        self.job_setup()
        e.i(f"""
        s_lshl_b32 {sr(T0)}, {sr(S_RQ)}, 12
        v_lshrrev_b32 v21, 1, {vr(V_L15)}
        v_xor_b32 v21, v21, {vr(V_G4)}
        v_lshlrev_b32 v21, 4, v21
        v_lshl_add_u32 v21, {vr(V_L15)}, 7, v21
        v_add_u32 {vr(V_XR)}, {sr(T0)}, v21
        v_xor_b32 {vr(V_XR + 1)}, 64, {vr(V_XR)}
        """)
        e.i(f"""
        v_lshrrev_b32 v22, 2, {vr(V_L15)}
        v_lshl_add_u32 v21, {vr(V_G4)}, 3, v22
        v_lshlrev_b32 v21, 8, v21
        v_and_b32 v23, 1, {vr(V_G4)}
        v_lshl_add_u32 v22, v23, 2, v22
        v_lshlrev_b32 v22, 1, v22
        v_and_b32 v23, 3, {vr(V_L15)}
        s_lshl_b32 {sr(T0)}, {sr(S_CH)}, 3
        """)
        for n in range(4):
            e.i(f"""
            v_lshrrev_b32 v24, 1, v23
            v_add_u32 v24, {2 * n}, v24
            v_add_u32 v24, {sr(T0)}, v24
            v_xor_b32 v24, v24, v22
            v_lshl_add_u32 v24, v24, 4, v21
            v_and_b32 v25, 1, v23
            v_lshl_add_u32 {vr(V_WR2 + n)}, v25, 3, v24
            """)
        if self.c.dev:
            e.i("s_mov_b32 s38, s0")
        self.stamp("pro")

    def job_setup(self):
        e = self.e
        kap, cp, base, a1, a2 = T0, T1, T2, T3, T4
        wo, done, odd, rem = self.lab("jwo"), self.lab("jdone"), self.lab("jodd"), self.lab("jrem")
        e.i(f"""
        s_lshl_b32 {sr(cp)}, s2, 3
        s_add_u32 {sr(cp)}, {sr(cp)}, {sr(S_WV)}
        s_mul_i32 {sr(kap)}, {sr(cp)}, 6554
        s_lshr_b32 {sr(kap)}, {sr(kap)}, 16
        s_lshl_b32 {sr(S_JST)}, {sr(cp)}, 11
        s_add_u32 {sr(S_JST)}, {sr(S_JST)}, {OFF_WT}
        s_cmp_ge_u32 {sr(kap)}, 152
        s_cselect_b32 {sr(S_JST)}, {OOB}, {sr(S_JST)}
        s_mul_i32 {sr(base)}, {sr(kap)}, 10
        s_sub_u32 {sr(cp)}, {sr(cp)}, {sr(base)}
        s_cmp_ge_u32 {sr(kap)}, 112
        s_cselect_b32 {sr(R_JOB)}, {sr(P_WO)}, {sr(P_W2)}
        s_cselect_b32 {sr(R_JOB + 1)}, {sr(P_WO + 1)}, {sr(P_W2 + 1)}
        s_mov_b32 {sr(R_JOB + 2)}, {1728 * 1280}
        s_cselect_b32 {sr(R_JOB + 2)}, {640 * 1280}, {sr(R_JOB + 2)}
        s_mov_b32 {sr(R_JOB + 3)}, 0x20000
        s_cbranch_scc1 {wo}
        s_mul_i32 {sr(a1)}, {sr(kap)}, 9363
        s_lshr_b32 {sr(a1)}, {sr(a1)}, 16
        s_mul_i32 {sr(base)}, {sr(a1)}, 112
        s_mul_i32 {sr(a1)}, {sr(a1)}, 7
        s_sub_u32 {sr(kap)}, {sr(kap)}, {sr(a1)}
        s_lshr_b32 {sr(a1)}, {sr(kap)}, 1
        s_lshl_b32 {sr(a1)}, {sr(a1)}, 5
        s_add_u32 {sr(base)}, {sr(base)}, {sr(a1)}
        s_and_b32 {sr(a1)}, {sr(kap)}, 1
        s_lshl_b32 {sr(a1)}, {sr(a1)}, 3
        s_add_u32 {sr(base)}, {sr(base)}, {sr(a1)}
        s_cmp_eq_u32 {sr(kap)}, 6
        s_cselect_b32 {sr(a1)}, 8, 4
        s_cselect_b32 {sr(a2)}, 4, 16
        s_branch {done}
        """)
        e.label(wo)
        e.i(f"""
        s_sub_u32 {sr(kap)}, {sr(kap)}, 112
        s_mul_i32 {sr(a1)}, {sr(kap)}, 13108
        s_lshr_b32 {sr(a1)}, {sr(a1)}, 16
        s_mul_i32 {sr(base)}, {sr(a1)}, 80
        s_mul_i32 {sr(a1)}, {sr(a1)}, 5
        s_sub_u32 {sr(kap)}, {sr(kap)}, {sr(a1)}
        s_mul_i32 {sr(a1)}, {sr(kap)}, 20
        s_cmp_eq_u32 {sr(kap)}, 4
        s_cselect_b32 {sr(a1)}, 16, {sr(a1)}
        s_add_u32 {sr(base)}, {sr(base)}, {sr(a1)}
        s_cmp_eq_u32 {sr(kap)}, 4
        s_cselect_b32 {sr(a1)}, 40, 4
        s_cselect_b32 {sr(a2)}, 20, 8
        """)
        e.label(done)
        e.i(f"""
        v_lshrrev_b32 v21, 5, v0
        v_mul_u32_u24 v21, {sr(a2)}, v21
        v_bfe_u32 v22, v0, 3, 2
        v_add3_u32 v21, v21, v22, {sr(base)}
        v_mul_u32_u24 v21, 1280, v21
        v_and_b32 v22, 7, v0
        v_lshl_add_u32 v21, v22, 4, v21
        s_lshl_b32 {sr(cp)}, {sr(cp)}, 7
        v_add_u32 v30, {sr(cp)}, v21
        s_mul_i32 {sr(a1)}, {sr(a1)}, 1280
        v_add_u32 v31, {sr(a1)}, v30
        """)

    def reads(self, s, ksl, ntiles, buf):
        off = (s % 5) * 32768 - ((s % 5) >> 1) * 65536
        out = []
        if s < 10:
            ks = 2 * s + ksl
            for rt in range(2):
                out.append(f"ds_read_b128 {vr(xf(ks, rt), 4)}, {vr(V_XR + ksl)} offset:{off + rt * 2048}")
            wbase, wr = off + 16384, V_WR
        else:
            wbase, wr = off, V_WR2
        for n in range(ntiles):
            for q in range(2):
                out.append(f"ds_read_b64_tr_b16 {vr(V_WB[buf] + 4 * n + 2 * q, 2)}, {vr(wr + n)} "
                           f"offset:{wbase + ksl * 8192 + q * 1024}")
        return out

    def window(self, s):
        slot = s % 5
        if s in (0, 10) or slot in (1, 3):
            return []
        d = 65536 if slot in (2, 4) else -131072
        rs = [V_XR, V_XR + 1] + [V_WR + n for n in range(4)] if s < 10 else [V_WR2 + n for n in range(4)]
        return [f"v_add_u32 {vr(r)}, {d & 0xffffffff:#x}, {vr(r)}" for r in rs]

    def mfmas(self, ks, ntiles, buf, vtype, first):
        out = []
        for n in range(ntiles):
            for rt in range(2):
                w, x, d = vr(V_WB[buf] + 4 * n, 4), vr(xf(ks, rt), 4), vr(acc(n, rt), 4)
                a, b = (x, w) if vtype else (w, x)
                out.append(f"v_mfma_f32_16x16x32_bf16 {d}, {a}, {b}, {'0' if first else d}")
        return out

    def unit(self, mf, rd, extra):
        e = self.e
        rd, extra = list(rd), list(extra)
        if not mf:
            for r in rd:
                e.lds(r, "rd")
            for x in extra:
                x()
            return
        for k, m in enumerate(mf):
            for _ in range(2):
                if rd:
                    e.lds(rd.pop(0), "rd")
            e.i(m)
            if extra and (not rd or k >= 3):
                extra.pop(0)()
        for r in rd:
            e.lds(r, "rd")
        for x in extra:
            x()

    def vm(self, txt, tag):
        return lambda: self.e.vmem(txt, tag)

    def ii(self, txt):
        return lambda: self.e.i(txt)

    def stage_sync(self, s, vmtags=()):
        e = self.e
        for w in self.window(s):
            e.i(w)
        e.wait(vm=[f"st{s}"] + list(vmtags), lg="all")
        e.i("s_barrier")
        self.stamp(f"b{s}")

    def pass1(self, vtype):
        e = self.e
        if vtype:
            for n in range(4):
                e.i(f"v_mov_b32 {vr(V_WR + n)}, {vr(V_WR2 + n)}")
        else:
            for n in range(4):
                e.i(f"""
                v_add_u32 v24, {4 * (n >> 1)}, v23
                v_add_u32 v24, {sr(T0)}, v24
                v_xor_b32 v24, v24, v22
                v_lshl_add_u32 v24, v24, 4, v21
                v_lshrrev_b32 v25, 1, v23
                v_xor_b32 v25, {n & 1}, v25
                v_lshl_add_u32 {vr(V_WR + n)}, v25, 3, v24
                """)
        self.epi1_addr(vtype)
        prev = []
        for s in range(10):
            for ksl in range(2):
                extra = []
                if ksl == 0:
                    self.stage_sync(s)
                    if s == 0:
                        self.publish_init()
                    else:
                        extra = [self.vm(t, g) for t, g in self.dma_stage(s + 4)]
                else:
                    e.wait(lg="all")
                if s == 8 and ksl == 1:
                    extra += self.bias_loads()
                self.unit(prev, self.reads(s, ksl, 4, ksl), extra)
                prev = self.mfmas(2 * s + ksl, 4, ksl, vtype, s == 0 and ksl == 0)
        self.stage_sync(10)
        self.unit(prev, self.reads(10, 0, 4, 0), [])
        self.stamp("p1end")
        self.epi1(vtype)
        self.stamp("e1end")
        for t, g in self.dma_stage(14):
            e.vmem(t, g)

    def publish_init(self):
        e = self.e
        skip = self.lab("nopub")
        e.i(f"""
        s_lshl_b32 {sr(T0)}, s2, 3
        s_add_u32 {sr(T0)}, {sr(T0)}, {sr(S_WV)}
        s_cmp_lg_u32 {sr(T0)}, 7
        s_cbranch_scc1 {skip}
        v_mov_b32 v25, 1
        s_mov_b64 exec, 1
        buffer_store_dword v25, off, {sr(R_DBG, 4)}, 0 sc1
        s_mov_b64 exec, -1
        """)
        e.label(skip)

    def bias_loads(self):
        out = [self.ii(f"""
        s_mul_i32 {sr(T1)}, {sr(S_CG)}, 224
        s_lshl_b32 {sr(T2)}, {sr(S_CH)}, 7
        s_add_u32 {sr(T1)}, {sr(T1)}, {sr(T2)}
        v_lshlrev_b32 v21, 3, {vr(V_G4)}
        """)]
        regs = (22, 24, 26, 28)
        for n in range(4):
            out.append(self.vm(f"buffer_load_dwordx2 {vr(regs[n], 2)}, v21, {sr(R_B1, 4)}, {sr(T1)} offen offset:{32 * n}",
                               "bias"))
        out.append(self.vm(f"buffer_load_dword v2, off, {sr(R_DBG, 4)}, 0 sc1", "dbg"))
        return out

    def epi1_addr(self, vtype):
        e = self.e
        if vtype:
            e.i(f"""
            s_lshl_b32 {sr(T1)}, {sr(S_GAM)}, 7
            s_lshl_b32 {sr(T2)}, {sr(S_CH)}, 6
            s_add_u32 {sr(T1)}, {sr(T1)}, {sr(T2)}
            s_mov_b32 {sr(T2)}, {64 * 2560}
            v_mul_u32_u24 v26, 320, {vr(V_G4)}
            """)
            for n in range(4):
                e.i(f"""
                v_add3_u32 v24, {vr(V_L15)}, {sr(T1)}, {16 * n}
                v_mul_u32_u24 v25, 3277, v24
                v_lshrrev_b32 v25, 16, v25
                v_mul_u32_u24 v27, 20, v25
                v_sub_u32 v24, v24, v27
                v_mul_u32_u24 v25, {sr(T2)}, v25
                v_lshl_add_u32 v24, v24, 4, v25
                v_add_u32 {vr(V_ST + n)}, v24, v26
                """)
            e.i(f"""
            s_mul_i32 {sr(T1)}, {sr(S_BLK)}, 2560
            s_add_u32 {sr(S_EPI)}, {sr(T1)}, {OFF_KV + 1280}
            s_cmp_eq_u32 {sr(S_CG)}, 15
            s_cselect_b32 {sr(S_EPI)}, {OOB}, {sr(S_EPI)}
            """)
            return
        e.i(f"""
        s_lshl_b32 {sr(T1)}, {sr(S_GAM)}, 4
        s_lshl_b32 {sr(T2)}, {sr(S_CH)}, 3
        s_add_u32 {sr(T1)}, {sr(T1)}, {sr(T2)}
        s_lshl_b32 {sr(T3)}, 1280, {sr(S_SEC)}
        s_lshl_b32 {sr(T2)}, {sr(T3)}, 6
        s_mul_i32 {sr(T3)}, {sr(T3)}, {sr(S_BLK)}
        s_cmp_eq_u32 {sr(S_SEC)}, 0
        s_mov_b32 {sr(T4)}, {OFF_KV}
        s_cselect_b32 {sr(T4)}, {OFF_Q}, {sr(T4)}
        s_cselect_b32 {sr(S_SCALE)}, {f32(math.log2(math.e) / math.sqrt(20.0))}, 1.0
        s_add_u32 {sr(S_EPI)}, {sr(T3)}, {sr(T4)}
        """)
        for p in range(2):
            mask = (S_MA, S_MB)[p]
            e.i(f"""
            v_add3_u32 v24, {vr(V_G4)}, {sr(T1)}, {4 * p}
            v_mul_u32_u24 v25, 205, v24
            v_lshrrev_b32 v25, 10, v25
            v_mul_u32_u24 v26, 5, v25
            v_sub_u32 v26, v24, v26
            v_cmp_eq_u32 {sr(mask, 2)}, 2, v26
            v_cmp_lt_u32 vcc, 2, v26
            v_lshrrev_b32 v27, 1, {vr(V_G4)}
            v_subrev_u32 v28, 3, v26
            v_cndmask_b32 v26, v26, v28, vcc
            v_cndmask_b32 v28, 0, 1, vcc
            v_lshlrev_b32 v26, 9, v26
            v_lshl_add_u32 v26, {vr(V_L15)}, 4, v26
            v_cndmask_b32 v29, v28, v27, {sr(mask, 2)}
            v_lshl_add_u32 v29, v25, 1, v29
            v_mul_lo_u32 v29, v29, {sr(T2)}
            v_add_u32 {vr(V_ST + 2 * p)}, v29, v26
            v_xor_b32 v27, 1, v27
            v_cndmask_b32 v29, v28, v27, {sr(mask, 2)}
            v_lshl_add_u32 v29, v25, 1, v29
            v_mul_lo_u32 v29, v29, {sr(T2)}
            v_mov_b32 v27, 256
            v_cndmask_b32 v27, v27, 0, {sr(mask, 2)}
            v_add3_u32 {vr(V_ST + 2 * p + 1)}, v29, v26, v27
            """)

    def epi1(self, vtype):
        e = self.e
        pk = V_WB[1]
        e.i("s_nop 7")
        if vtype:
            for n in range(4):
                for rt in range(2):
                    for h in range(2):
                        a = acc(n, rt) + 2 * h
                        e.i(f"v_cvt_pk_bf16_f32 {vr(pk + 4 * n + 2 * rt + h)}, {vr(a)}, {vr(a + 1)}")
                e.vmem(f"buffer_store_dwordx4 {vr(pk + 4 * n, 4)}, {vr(V_ST + n)}, {sr(R_WS, 4)}, {sr(S_EPI)} offen sc1",
                       "e1")
        else:
            for p in range(2):
                for k in range(16):
                    r = acc(2 * p, 0) + k
                    e.i(f"v_mul_f32 {vr(r)}, {sr(S_SCALE)}, {vr(r)}")
                for rt in range(2):
                    for ab in range(2):
                        for h in range(2):
                            a = acc(2 * p + ab, rt) + 2 * h
                            e.i(f"v_cvt_pk_bf16_f32 {vr(pk + 8 * p + 4 * rt + 2 * ab + h)}, {vr(a)}, {vr(a + 1)}")
                b = pk + 8 * p
                e.i(f"""
                s_mov_b64 exec, {sr((S_MA, S_MB)[p], 2)}
                v_swap_b32 {vr(b + 2)}, {vr(b + 4)}
                v_swap_b32 {vr(b + 3)}, {vr(b + 5)}
                s_mov_b64 exec, -1
                """)
                for k in range(2):
                    e.vmem(f"buffer_store_dwordx4 {vr(b + 4 * k, 4)}, {vr(V_ST + 2 * p + k)}, {sr(R_WS, 4)}, "
                           f"{sr(S_EPI)} offen sc1", "e1")
        e.wait(vm="bias")
        for n, r in enumerate((22, 24, 26, 28)):
            for h in range(2):
                for rt in range(2):
                    e.i(f"v_lshlrev_b32 {vr(acc(n, rt) + 2 * h)}, 16, {vr(r + h)}")
                    e.i(f"v_and_b32 {vr(acc(n, rt) + 2 * h + 1)}, 0xffff0000, {vr(r + h)}")

    def side_issue(self):
        out = [self.ii(f"""
        s_lshl_b32 {sr(T1)}, {sr(S_RB)}, 4
        s_add_u32 {sr(T1)}, {sr(T1)}, {sr(S_CG)}
        s_lshl_b32 {sr(T1)}, {sr(T1)}, 3
        s_add_u32 {sr(T1)}, {sr(T1)}, {sr(S_WV)}
        s_mul_i32 {sr(T1)}, {sr(T1)}, 1280
        v_lshlrev_b32 v21, 2, v0
        v_lshlrev_b32 v22, 4, v0
        v_mov_b32 v116, -1
        v_mov_b32 v117, -1
        v_mov_b32 v118, -1
        v_mov_b32 v119, -1
        """)]
        for h in range(2):
            out.append(self.vm(f"s_add_u32 m0, {sr(S_M0)}, {h * 1024}\ns_nop 0\n"
                               f"buffer_load_dwordx4 {vr(30 + h)}, {sr(R_JOB, 4)}, 0 offen lds", "job"))
        for i in range(5):
            out.append(self.vm(f"buffer_load_dword {vr(96 + i)}, v21, {sr(R_X, 4)}, {sr(T1)} offen offset:{256 * i}", "gate"))
            out.append(self.vm(f"buffer_load_dword {vr(101 + i)}, v21, {sr(R_GW, 4)}, 0 offen offset:{256 * i}", "gate"))
        out.append(self.vm(f"buffer_store_dwordx4 v[116:119], v22, {sr(R_WS, 4)}, {sr(S_OBLK)} offen sc1", "sent"))
        out.append(self.vm(f"buffer_store_dword v116, v21, {sr(R_WS, 4)}, {sr(S_OBLK)} offen offset:1024 sc1", "sent"))
        return out

    def flag_store(self, val, check_init):
        e = self.e
        skip = self.lab("nofl")
        e.i(f"s_cmp_lg_u32 {sr(S_WV)}, 0\ns_cbranch_scc1 {skip}")
        if check_init:
            ok, lp = self.lab("iok"), self.lab("ilp")
            e.i(f"v_readfirstlane_b32 {sr(T1)}, v2\ns_cmp_eq_u32 {sr(T1)}, 0\ns_cbranch_scc1 {lp}")
            e.label(ok)
            self.cold.append(f"""
            {lp}:
            s_mov_b32 {sr(S_SPIN)}, {SPIN}
            {lp}_a:
            buffer_load_dword v2, off, {sr(R_DBG, 4)}, 0 sc1
            s_waitcnt vmcnt(0)
            v_readfirstlane_b32 {sr(T1)}, v2
            s_cmp_lg_u32 {sr(T1)}, 0
            s_cbranch_scc1 {ok}
            s_sleep 8
            s_sub_u32 {sr(S_SPIN)}, {sr(S_SPIN)}, 1
            s_cmp_lg_u32 {sr(S_SPIN)}, 0
            s_cbranch_scc1 {lp}_a
            s_branch {ok}
            """)
        e.i(f"""
        s_lshl_b32 {sr(T1)}, {sr(S_CG)}, 4
        s_add_u32 {sr(T1)}, {sr(T1)}, {sr(S_RB)}
        s_lshl_b32 {sr(T1)}, {sr(T1)}, 7
        v_mov_b32 v1, {val}
        s_mov_b64 exec, 1
        buffer_store_dword v1, off, {sr(R_WS, 4)}, {sr(T1)} sc1
        s_mov_b64 exec, -1
        """)
        e.label(skip)

    def side_job_read(self):
        e = self.e

        def f():
            e.wait(vm="job")
            e.i(f"""
            v_lshrrev_b32 v23, 5, v0
            v_lshlrev_b32 v23, 10, v23
            v_bfe_u32 v24, v0, 2, 2
            v_lshl_add_u32 v23, v24, 7, v23
            v_and_b32 v24, 1, {vr(V_G4)}
            v_lshl_add_u32 v23, v24, 5, v23
            v_and_b32 v24, 3, v0
            v_lshl_add_u32 v23, v24, 3, v23
            v_add_u32 v23, {sr(S_M0)}, v23
            """)
            for ph in range(2):
                for q in range(2):
                    e.lds(f"ds_read_b64_tr_b16 {vr(108 + 4 * ph + 2 * q, 2)}, v23 offset:{q * 512 + ph * 64}", "jr")
        return [f]

    def side_job_store(self):
        return [self.vm(f"buffer_store_dwordx4 {vr(108 + 4 * ph, 4)}, v22, {sr(R_WS, 4)}, {sr(S_JST)} offen offset:{1024 * ph} sc1",
                        "js") for ph in range(2)]

    def side_gate(self):
        e = self.e

        def a():
            e.wait(vm="gate")
            e.i("v_dot2_f32_bf16 v23, v96, v101, 0")
            for i in range(1, 5):
                e.i(f"v_dot2_f32_bf16 v23, {vr(96 + i)}, {vr(101 + i)}, v23")
            e.i("s_nop 2")
            for sh in (8, 4, 2, 1):
                e.i(f"v_add_f32_dpp v23, v23, v23 row_ror:{sh} row_mask:0xf bank_mask:0xf\ns_nop 1")

        def b():
            e.i(f"""
            v_readlane_b32 {sr(T1)}, v23, 16
            v_readlane_b32 {sr(T2)}, v23, 32
            v_readlane_b32 {sr(T3)}, v23, 48
            v_add_f32 v23, {sr(T1)}, v23
            v_add_f32 v23, {sr(T2)}, v23
            v_add_f32 v23, {sr(T3)}, v23
            v_mul_f32 v23, {f32(-math.log2(math.e))}, v23
            v_exp_f32 v23, v23
            s_lshl_b32 {sr(T1)}, {sr(S_RB)}, 4
            v_add_f32 v23, 1.0, v23
            v_rcp_f32 v23, v23
            s_add_u32 {sr(T1)}, {sr(T1)}, {sr(S_CG)}
            s_lshl_b32 {sr(T1)}, {sr(T1)}, 7
            s_lshl_b32 {sr(T2)}, {sr(S_WV)}, 2
            s_add_u32 {sr(T1)}, {sr(T1)}, {sr(T2)}
            s_add_u32 {sr(T1)}, {sr(T1)}, {OFF_G}
            s_mov_b64 exec, 1
            """)
            e.vmem(f"buffer_store_dword v23, off, {sr(R_WS, 4)}, {sr(T1)} sc1", "gs")
            e.i("s_mov_b64 exec, -1")
        return [a, b]

    def poll(self, vaddr, vdat, val, nlanes, tag):
        e = self.e
        mask = (1 << nlanes) - 1
        setx = "s_mov_b32 exec_hi, 0" if nlanes == 32 else f"s_mov_b64 exec, {mask:#x}"

        def issue():
            e.i(setx)
            e.vmem(f"buffer_load_dword {vr(vdat)}, {vr(vaddr)}, {sr(R_WS, 4)}, 0 offen sc1", tag)
            e.i("s_mov_b64 exec, -1")

        def check():
            ok, lp = self.lab("pok"), self.lab("plp")
            e.wait(vm=tag)
            e.i(f"""
            v_cmp_gt_u32 vcc, {val}, {vr(vdat)}
            s_and_b32 {sr(T1)}, vcc_lo, {mask:#x}
            s_cbranch_scc1 {lp}
            """)
            e.label(ok)
            self.cold.append(f"""
            {lp}:
            s_mov_b32 {sr(S_SPIN)}, {SPIN}
            {lp}_a:
            {setx}
            buffer_load_dword {vr(vdat)}, {vr(vaddr)}, {sr(R_WS, 4)}, 0 offen sc1
            s_mov_b64 exec, -1
            s_waitcnt vmcnt(0)
            v_cmp_gt_u32 vcc, {val}, {vr(vdat)}
            s_and_b32 {sr(T1)}, vcc_lo, {mask:#x}
            s_cbranch_scc0 {ok}
            s_sub_u32 {sr(S_SPIN)}, {sr(S_SPIN)}, 1
            s_cmp_lg_u32 {sr(S_SPIN)}, 0
            s_cbranch_scc1 {lp}_a
            s_branch {ok}
            """)
        return issue, check

    def poll1_addr(self):
        return self.ii(f"""
        s_mul_i32 {sr(T1)}, {sr(S_HD)}, 20
        v_and_b32 v23, 1, v0
        v_mul_u32_u24 v23, 19, v23
        v_add_u32 v23, {sr(T1)}, v23
        v_lshrrev_b32 v23, 7, v23
        v_lshrrev_b32 v24, 2, v0
        v_mul_u32_u24 v25, 5, v24
        v_add_u32 v23, v23, v25
        v_bfe_u32 v25, v0, 1, 1
        v_lshlrev_b32 v25, 3, v25
        v_add_u32 v25, {sr(S_WV)}, v25
        s_lshr_b32 {sr(T1)}, {sr(S_RTQ)}, 2
        v_cmp_eq_u32 vcc, 0, v24
        v_mov_b32 v24, {sr(T1)}
        s_nop 0
        v_cndmask_b32 v25, v25, v24, vcc
        v_lshl_add_u32 v23, v23, 4, v25
        v_lshlrev_b32 {vr(A_P)}, 7, v23
        """)

    def kv_dma(self, half):
        out = []
        for i in range(10):
            o = half * 81920 + i * 1024
            out.append(self.vm(f"s_mul_i32 {sr(T2)}, {sr(S_WV)}, 10240\ns_add_u32 m0, {sr(T2)}, {o}\n"
                               f"s_add_u32 {sr(T2)}, {sr(S_KVB)}, {o}\n"
                               f"buffer_load_dwordx4 {vr(A_L16)}, {sr(R_WS, 4)}, {sr(T2)} offen sc1 lds", f"kv{half}"))
        return out

    def att_setup(self):
        e = self.e

        def a():
            e.i(f"""
            v_lshlrev_b32 {vr(A_L16)}, 4, v0
            v_lshrrev_b32 v23, 5, v0
            v_bfe_u32 v24, v0, 3, 2
            v_and_b32 v25, 3, v0
            v_lshl_add_u32 v24, v24, 2, v25
            v_bfe_u32 v25, v0, 2, 1
            v_lshlrev_b32 v26, 9, v23
            v_lshl_add_u32 v26, v25, 8, v26
            v_lshl_add_u32 {vr(A_AK)}, v24, 4, v26
            v_mul_u32_u24 v26, 2560, v23
            v_lshl_add_u32 v26, v24, 4, v26
            v_lshl_add_u32 {vr(A_AKR)}, v25, 3, v26
            v_and_b32 v24, 31, v0
            v_mul_u32_u24 v26, 320, v23
            v_lshl_add_u32 {vr(A_AV)}, v24, 4, v26
            v_mov_b32 {vr(A_IDX)}, 0xdddddddd
            """)

        def b():
            for r in range(A_VLO, A_VLO + 12):
                e.i(f"v_mov_b32 {vr(r)}, 0x3f803f80")

        def c():
            for r in range(A_O, A_O + 16):
                e.i(f"v_mov_b32 {vr(r)}, 0")
        return [a, b, c]

    def q_loads(self):
        e = self.e

        def f():
            e.i(f"""
            s_lshl_b32 {sr(T1)}, {sr(S_HD)}, 6
            s_add_u32 {sr(T1)}, {sr(T1)}, {sr(S_RTQ)}
            s_mul_i32 {sr(T1)}, {sr(T1)}, 1280
            s_add_u32 {sr(T1)}, {sr(T1)}, {OFF_Q}
            v_bfe_u32 v23, v0, 4, 1
            v_lshlrev_b32 v23, 3, v23
            v_lshl_add_u32 v23, {vr(V_L15)}, 4, v23
            """)
            e.vmem(f"buffer_load_dwordx4 {vr(A_QM, 4)}, {vr(A_L16)}, {sr(R_WS, 4)}, {sr(T1)} offen sc1", "q")
            e.vmem(f"buffer_load_dwordx2 {vr(A_QLO, 2)}, v23, {sr(R_WS, 4)}, {sr(T1)} offen offset:1024 sc1", "q")
        return [f]

    def pass2(self, ch):
        e = self.e
        nt = 3 if ch else 4
        p_issue, p_check = self.poll(A_P, A_P + 1, 1, 12, "p1")
        prev = self.mfmas(0, nt, 0, False, False)
        for u in range(1, 20):
            s, ksl = 10 + (u >> 2), u & 3
            extra = []
            if ksl == 0:
                self.stage_sync(s, ["e1", "dbg"] if s == 12 else [])
                if s == 12:
                    self.flag_store(1, True)
            else:
                e.wait(lg="all")
            if u == 5:
                extra = self.side_issue()
            if u == 10:
                extra = self.side_job_read()
            if u == 11:
                extra = self.side_job_store()
            if u == 12:
                extra = self.side_gate()
            if u == 13:
                extra = [self.poll1_addr()]
            if u == 14:
                extra = self.att_setup()
            if u == 15:
                extra = [p_issue]
            if u == 18:
                extra = [lambda: self.stamp("u18"), p_check, lambda: self.stamp("chk1")] + self.q_loads() + self.kv_dma(0)
            self.unit(prev, self.reads(s, ksl, nt, u & 1), extra)
            prev = self.mfmas(u, nt, u & 1, False, False)
        e.wait(lg="all")
        e.i("s_barrier")
        self.unit(prev, [], self.kv_dma(1))
        self.stamp("p2end")
        e.i(f"""
        v_lshlrev_b32 v23, 9, {vr(V_G4)}
        v_lshl_add_u32 v23, {vr(V_L15)}, 4, v23
        v_lshrrev_b32 v24, 1, {vr(V_G4)}
        v_lshlrev_b32 v24, 9, v24
        v_lshl_add_u32 v24, {vr(V_L15)}, 4, v24
        v_and_b32 v25, 1, {vr(V_G4)}
        v_lshl_add_u32 v24, v25, 3, v24
        s_nop 0
        """)
        pk = V_WB[0]
        for p in range(2):
            tiles = [n for n in (2 * p, 2 * p + 1) if n < nt]
            for n in tiles:
                for k in range(8):
                    r = acc(n, 0) + k
                    e.i(f"v_max_f32 {vr(r)}, 0, {vr(r)}")
                for k in range(8):
                    r = acc(n, 0) + k
                    e.i(f"v_mul_f32 {vr(r)}, {vr(r)}, {vr(r)}")
            for rt in range(2):
                b = pk + 8 * p + 4 * rt
                for ab, n in enumerate(tiles):
                    for h in range(2):
                        a = acc(n, rt) + 2 * h
                        e.i(f"v_cvt_pk_bf16_f32 {vr(b + 2 * ab + h)}, {vr(a)}, {vr(a + 1)}")
                if len(tiles) == 2:
                    e.vmem(f"buffer_store_dwordx4 {vr(b, 4)}, v23, {sr(R_WS, 4)}, {sr(S_HST)} offen "
                           f"offset:{2048 * p + 256 * rt} sc1", "hs")
                else:
                    e.vmem(f"buffer_store_dwordx2 {vr(b, 2)}, v24, {sr(R_WS, 4)}, {sr(S_HST)} offen "
                           f"offset:{2048 * p + 256 * rt} sc1", "hs")

    def lds_off(self, reg, off):
        base = self.win[reg]
        while off - base > 65535 - 2560:
            base += 61440
            self.e.i(f"v_add_u32 {vr(reg)}, 61440, {vr(reg)}")
        self.win[reg] = base
        return off - base

    def rd_k(self, t):
        if t < 64:
            o = self.lds_off(A_AK, t * 2560)
            self.e.lds(f"ds_read_b128 {vr(A_KM, 4)}, {vr(A_AK)} offset:{o}", f"k{t}")

    def rd_kr(self, t):
        if t < 64:
            o = self.lds_off(A_AKR, t * 2560)
            self.e.lds(f"ds_read_b64 {vr(A_KR, 2)}, {vr(A_AKR)} offset:{o + 1024}", f"r{t}")

    def rd_v(self, t):
        if t < 64:
            e = self.e
            o = self.lds_off(A_AV, t * 2560)
            e.i(f"s_mov_b64 exec, {sr(S_VMASK, 2)}")
            e.lds(f"ds_read_b128 {vr(A_VLO, 4)}, {vr(A_AV)} offset:{o + 1280}", f"vl{t}")
            e.lds(f"ds_read_b128 {vr(A_VHI[t & 1], 4)}, {vr(A_AV)} offset:{o + 1920}", f"vh{t}")
            e.i("s_mov_b64 exec, -1")

    def qk1(self, t):
        self.e.wait(lg=f"k{t}")
        self.e.i(f"v_mfma_f32_32x32x16_bf16 {vr(A_S[t & 1], 16)}, {vr(A_KM, 4)}, {vr(A_QM, 4)}, 0")
        self.rd_k(t + 1)

    def qk2(self, t):
        self.e.wait(lg=f"r{t & ~1}")
        s = vr(A_S[t & 1], 16)
        self.e.i(f"v_mfma_f32_32x32x8_bf16 {s}, {vr(A_KR, 2)}, {vr((A_QLO, A_QHI)[t & 1], 2)}, {s}")
        if t & 1:
            self.rd_kr(t + 1)

    def pvlo(self, t):
        self.e.wait(lg=f"vl{t}")
        self.e.i(f"v_smfmac_f32_32x32x32_bf16 {vr(A_O, 16)}, {vr(A_VLO, 4)}, {vr(A_S[t & 1], 8)}, {vr(A_IDX)}")
        self.rd_v(t + 1)

    def pvhi(self, t):
        self.e.wait(lg=f"vh{t}")
        self.e.i(f"v_smfmac_f32_32x32x32_bf16 {vr(A_O, 16)}, {vr(A_VHI[t & 1], 4)}, {vr(A_S[t & 1] + 8, 8)}, {vr(A_IDX)}")

    def ring_h(self, i):
        return A_RING + (i % NB) * 24

    def ring_w(self, i, n):
        if i >= 14 + NB:
            return [[152, 156, 160, 164, 168], [172, 176, 180, 116, 120]][i - 14 - NB][n]
        return A_RING + (i % NB) * 24 + 4 + 4 * n

    def ld_w(self, i, n):
        e = self.e
        if i < 14:
            e.i(f"s_add_u32 {sr(T2)}, {sr(S_WB)}, {i * 20480 + n * 1024}")
        else:
            e.i(f"s_add_u32 {sr(T2)}, {sr(S_EPI)}, {(i - 14) * 20480 + n * 1024}")
        e.vmem(f"buffer_load_dwordx4 {vr(self.ring_w(i, n), 4)}, {vr(A_L16)}, {sr(R_WS, 4)}, {sr(T2)} offen sc1", f"w{i}_{n}")

    def ld_h(self, i):
        e = self.e
        e.i(f"s_add_u32 {sr(T2)}, {sr(S_HB)}, {i * 1024}")
        e.vmem(f"buffer_load_dwordx4 {vr(self.ring_h(i), 4)}, {vr(A_L16)}, {sr(R_WS, 4)}, {sr(T2)} offen sc1", f"h{i}")

    def ffn_mfma(self, i, n):
        e = self.e
        e.wait(vm=[f"w{i}_{n}", f"h{i}"])
        d = vr(A_FACC + 16 * n, 16)
        e.i(f"v_mfma_f32_32x32x16_bf16 {d}, {vr(self.ring_w(i, n), 4)}, {vr(self.ring_h(i), 4)}, {'0' if i == 0 else d}")
        self.ld_w(i + NB, n)
        if n == 4 and i + NB < 14:
            self.ld_h(i + NB)

    def attention(self):
        e, c = self.e, self.c
        self.win = {A_AK: 0, A_AKR: 0, A_AV: 0}
        p_issue, p_check = self.poll(A_P, A_P + 1, 2, 32, "p2")
        e.i(f"""
        s_lshl_b32 {sr(T1)}, {sr(S_WV)}, 12
        v_lshlrev_b32 {vr(A_P)}, 7, v0
        v_add_u32 {vr(A_P)}, {sr(T1)}, {vr(A_P)}
        s_mul_i32 {sr(T1)}, {sr(S_WV)}, 100
        s_mul_i32 {sr(T2)}, {sr(S_CT)}, 5
        s_add_u32 {sr(T1)}, {sr(T1)}, {sr(T2)}
        s_lshl_b32 {sr(T1)}, {sr(T1)}, 10
        s_add_u32 {sr(S_EPI)}, {sr(T1)}, {OFF_WT + 112 * 20480}
        """)
        e.wait(vm=["kv0", "q"])
        e.i(f"""
        v_mov_b32 {vr(A_QHI)}, {vr(A_QLO)}
        v_mov_b32 {vr(A_QHI + 1)}, {vr(A_QLO + 1)}
        s_mov_b32 exec_hi, 0
        v_mov_b32 {vr(A_QHI)}, 0
        v_mov_b32 {vr(A_QHI + 1)}, 0
        s_not_b64 exec, exec
        v_mov_b32 {vr(A_QLO)}, 0
        v_mov_b32 {vr(A_QLO + 1)}, 0
        s_mov_b64 exec, -1
        s_barrier
        """)
        self.stamp("att0")
        self.rd_k(0)
        self.rd_kr(0)
        self.rd_v(0)
        self.qk1(0)
        self.qk2(0)
        e.i("s_nop 11")
        ffn = [(i, n) for i in range(14) for n in range(5)]
        nemb = c.ffn_end - c.ffn_start
        done = 0
        for t in range(64):
            nf = 0
            if c.ffn_start <= t < c.ffn_end:
                nf = min(2, (70 * (t - c.ffn_start + 1) + nemb - 1) // nemb - done)
            fs = ffn[done:done + nf]
            done += nf
            if t == c.t_flag2:
                self.stamp("fl2a")
                e.wait(vm="all")
                e.i("s_barrier")
                self.stamp("fl2b")
                self.flag_store(2, False)
            if t == c.t_poll2:
                p_issue()
            if t == c.t_chk2:
                self.stamp("chk2a")
                p_check()
                e.i("s_barrier")
                self.stamp("chk2")
                self.after_flags2()
            self.stamp(f"t{t}")
            self.tile(t, fs)
        e.i("s_nop 1")
        self.pvhi(63)
        self.stamp("attend")
        for i, n in ffn[done:]:
            self.ffn_mfma(i, n)

    def after_flags2(self):
        e = self.e
        for i in range(NB):
            self.ld_h(i)
            for n in range(5):
                self.ld_w(i, n)
        e.i(f"""
        v_bfe_u32 {vr(A_T)}, v0, 3, 2
        v_and_b32 {vr(A_T + 1)}, 7, v0
        v_lshlrev_b32 {vr(A_T + 1)}, 2, {vr(A_T + 1)}
        v_lshl_add_u32 {vr(A_T)}, {vr(A_T)}, 7, {vr(A_T + 1)}
        s_lshl_b32 {sr(T1)}, {sr(S_RTQ)}, 9
        s_add_u32 {sr(T1)}, {sr(T1)}, {OFF_G}
        s_lshl_b32 {sr(T2)}, {sr(S_RT)}, 9
        s_add_u32 {sr(T2)}, {sr(T2)}, {OFF_G}
        """)
        e.vmem(f"buffer_load_dword {vr(A_GA)}, {vr(A_T)}, {sr(R_WS, 4)}, {sr(T1)} offen sc1", "g")
        e.vmem(f"buffer_load_dword {vr(A_GF)}, {vr(A_T)}, {sr(R_WS, 4)}, {sr(T2)} offen sc1", "g")

    def tile(self, t, fs):
        e = self.e
        x = A_S[t & 1]
        slots = {0: {2: "hi", 6: "q1", 10: "q2", 14: "lo"},
                 1: {2: "hi", 5: "q1", 9: "q2", 12: "lo", 15: "f"},
                 2: {2: "hi", 4: "q1", 7: "f", 10: "q2", 13: "lo", 15: "f"}}[len(fs)]
        fs = list(fs)
        for k in range(16):
            op = slots.get(k)
            if op == "hi" and t > 0:
                self.pvhi(t - 1)
            elif op == "q1" and t < 63:
                self.qk1(t + 1)
            elif op == "q2" and t < 63:
                self.qk2(t + 1)
            elif op == "lo":
                self.pvlo(t)
            elif op == "f":
                self.ffn_mfma(*fs.pop(0))
            e.i(f"v_exp_f32 {vr(x + k)}, {vr(x + k)}")
            if k in (11, 12):
                e.i("s_nop 0")

    def fallback(self, back):
        x, m = A_S[0], A_S[1]
        L = []
        A = L.append
        A(f"""
        L_fb:
        v_add_u32 {vr(A_AK)}, {(-self.win[A_AK]) & 0xffffffff:#x}, {vr(A_AK)}
        v_add_u32 {vr(A_AKR)}, {(-self.win[A_AKR]) & 0xffffffff:#x}, {vr(A_AKR)}
        v_add_u32 {vr(A_AV)}, {(-self.win[A_AV]) & 0xffffffff:#x}, {vr(A_AV)}
        v_mov_b32 {vr(m)}, 0xff800000
        """)
        for ps in range(2):
            A(f"s_mov_b32 {sr(T1)}, 0\nL_fb{ps}:")
            for par in range(2):
                A(f"""
                ds_read_b128 {vr(A_KM, 4)}, {vr(A_AK)} offset:{par * 2560}
                ds_read_b64 {vr(A_KR, 2)}, {vr(A_AKR)} offset:1024
                """)
                if ps:
                    A(f"""
                    s_mov_b64 exec, {sr(S_VMASK, 2)}
                    ds_read_b128 {vr(A_VLO, 4)}, {vr(A_AV)} offset:{par * 2560 + 1280}
                    ds_read_b128 {vr(A_VHI[0], 4)}, {vr(A_AV)} offset:{par * 2560 + 1920}
                    s_mov_b64 exec, -1
                    """)
                A(f"""
                s_waitcnt lgkmcnt(0)
                v_mfma_f32_32x32x16_bf16 {vr(x, 16)}, {vr(A_KM, 4)}, {vr(A_QM, 4)}, 0
                v_mfma_f32_32x32x8_bf16 {vr(x, 16)}, {vr(A_KR, 2)}, {vr((A_QLO, A_QHI)[par], 2)}, {vr(x, 16)}
                s_nop 11
                """)
                if ps == 0:
                    for k in range(0, 16, 2):
                        A(f"v_max3_f32 {vr(m)}, {vr(m)}, {vr(x + k)}, {vr(x + k + 1)}")
                else:
                    for k in range(16):
                        A(f"v_sub_f32 {vr(x + k)}, {vr(x + k)}, {vr(m)}\nv_exp_f32 {vr(x + k)}, {vr(x + k)}")
                    A(f"""
                    s_nop 1
                    v_smfmac_f32_32x32x32_bf16 {vr(A_O, 16)}, {vr(A_VLO, 4)}, {vr(x, 8)}, {vr(A_IDX)}
                    v_smfmac_f32_32x32x32_bf16 {vr(A_O, 16)}, {vr(A_VHI[0], 4)}, {vr(x + 8, 8)}, {vr(A_IDX)}
                    s_nop 7
                    """)
            A(f"""
            v_add_u32 {vr(A_AK)}, 5120, {vr(A_AK)}
            v_add_u32 {vr(A_AKR)}, 5120, {vr(A_AKR)}
            """)
            if ps:
                A(f"v_add_u32 {vr(A_AV)}, 5120, {vr(A_AV)}")
            A(f"""
            s_add_u32 {sr(T1)}, {sr(T1)}, 1
            s_cmp_lt_u32 {sr(T1)}, 32
            s_cbranch_scc1 L_fb{ps}
            """)
            if ps == 0:
                A(f"""
                v_mov_b32 {vr(m + 1)}, {vr(m)}
                v_add_u32 {vr(A_AK)}, {(-163840) & 0xffffffff:#x}, {vr(A_AK)}
                v_add_u32 {vr(A_AKR)}, {(-163840) & 0xffffffff:#x}, {vr(A_AKR)}
                v_permlane32_swap_b32 {vr(m)}, {vr(m + 1)}
                s_nop 1
                v_max_f32 {vr(m)}, {vr(m)}, {vr(m + 1)}
                """)
                for r in range(A_O, A_O + 16):
                    A(f"v_mov_b32 {vr(r)}, 0")
        A(f"s_nop 7\ns_branch {back}")
        self.cold.append("\n".join(L))

    def tail(self):
        e, c = self.e, self.c
        o, t0 = A_O, A_T
        back = "L_fb_back"
        e.i("s_nop 11")
        e.i(f"v_mov_b32 {vr(t0)}, {vr(o + 12)}")
        for k in range(12):
            e.i(f"v_fma_f32 {vr(t0)}, {vr(o + k)}, 0, {vr(t0)}")
        lo, hi = (2.0 ** 40, 2.0 ** -20) if c.force_fallback else (2.0 ** -20, 2.0 ** 40)
        e.i(f"""
        v_cmp_nle_f32 vcc, {f32(lo)}, {vr(t0)}
        s_mov_b64 {sr(S_MA, 2)}, vcc
        v_cmp_nge_f32 vcc, {f32(hi)}, {vr(t0)}
        s_or_b64 vcc, vcc, {sr(S_MA, 2)}
        s_cbranch_scc1 L_fb
        """)
        e.label(back)
        self.fallback(back)
        e.wait(vm="g")
        e.i(f"""
        v_rcp_f32 {vr(t0)}, {vr(o + 12)}
        v_and_b32 {vr(t0 + 1)}, 31, v0
        v_mul_f32 {vr(t0)}, {vr(t0)}, {vr(A_GA)}
        v_lshlrev_b32 {vr(t0 + 1)}, 3, {vr(t0 + 1)}
        """)
        for k in range(12):
            e.i(f"v_mul_f32 {vr(o + k)}, {vr(o + k)}, {vr(t0)}")
        for k in range(6):
            e.i(f"v_cvt_pk_bf16_f32 {vr(o + k)}, {vr(o + 2 * k)}, {vr(o + 2 * k + 1)}")
        for k in range(6):
            e.i(f"v_min_u32 {vr(o + k)}, -2, {vr(o + k)}")
        e.vmem(f"buffer_store_dwordx4 {vr(o, 4)}, {vr(A_L16)}, {sr(R_WS, 4)}, {sr(S_OBLK)} offen sc1", "os")
        e.i("s_mov_b32 exec_hi, 0")
        e.vmem(f"buffer_store_dwordx2 {vr(o + 4, 2)}, {vr(t0 + 1)}, {sr(R_WS, 4)}, {sr(S_OBLK)} offen offset:1024 sc1", "os")
        e.i("s_mov_b64 exec, -1")
        for i in range(14 + NB, 19):
            for n in range(5):
                self.ld_w(i, n)
        e.i(f"""
        v_lshrrev_b32 v1, 5, v0
        v_lshlrev_b32 v1, 3, v1
        s_mul_i32 {sr(T1)}, {sr(S_CT)}, 320
        s_lshl_b32 {sr(T2)}, {sr(S_WV)}, 4
        s_add_u32 {sr(T1)}, {sr(T1)}, {sr(T2)}
        """)
        for k in range(3):
            e.vmem(f"buffer_load_dwordx2 {vr(2 + 2 * k, 2)}, v1, {sr(R_B2, 4)}, {sr(T1)} offen offset:{128 * k}", "b2")
        e.i(f"v_sub_f32 {vr(A_GF)}, 1.0, {vr(A_GF)}")
        e.i("s_barrier")
        for k in range(80):
            e.i(f"v_mul_f32 {vr(A_FACC + k)}, {vr(A_FACC + k)}, {vr(A_GF)}")
        of = [self.ring_h(0), self.ring_h(1), self.ring_h(2), 124, 128]
        e.i(f"""
        v_lshrrev_b32 v8, 5, v0
        v_mul_u32_u24 v8, 2560, v8
        v_add_u32 v8, v8, {vr(t0 + 1)}
        s_lshl_b32 {sr(T3)}, {sr(S_RT)}, 5
        s_lshl_b32 {sr(T2)}, {sr(S_WV)}, 2
        s_add_u32 {sr(T3)}, {sr(T3)}, {sr(T2)}
        s_mul_i32 {sr(T3)}, {sr(T3)}, 1280
        s_add_u32 {sr(T3)}, {sr(T3)}, {OFF_O}
        s_mov_b32 {sr(S_SPIN)}, {SPIN}
        """)
        e.wait(vm="os")
        self.stamp("odrain")
        e.label("L_opoll")
        for m in range(4):
            e.vmem(f"buffer_load_dwordx4 {vr(of[m], 4)}, {vr(A_L16)}, {sr(R_WS, 4)}, {sr(T3)} offen offset:{1280 * m} sc1", "o")
        for a in range(2):
            e.vmem(f"buffer_load_dwordx2 {vr(of[4] + 2 * a, 2)}, v8, {sr(R_WS, 4)}, {sr(T3)} offen offset:{1024 + 1280 * a} sc1", "o")
        e.wait(vm="all")
        rs = [of[m] + k for m in range(5) for k in range(4)]
        e.i(f"v_max_u32 v9, {vr(rs[0])}, {vr(rs[1])}")
        for k in range(2, 20, 2):
            e.i(f"v_max3_u32 v9, v9, {vr(rs[k])}, {vr(rs[k + 1])}")
        e.i(f"""
        v_cmp_eq_u32 vcc, -1, v9
        s_sub_u32 {sr(S_SPIN)}, {sr(S_SPIN)}, 1
        s_cmp_eq_u32 {sr(S_SPIN)}, 0
        s_cbranch_scc1 L_odone
        s_cbranch_vccnz L_opoll
        """)
        e.label("L_odone")
        self.stamp("oload")
        e.i(f"""
        s_mul_i32 {sr(T1)}, {sr(S_WV)}, 20480
        v_add_u32 v9, {sr(T1)}, {vr(A_L16)}
        """)

        def dump(n):
            for i in range(4):
                e.lds(f"ds_write_b128 v9, {vr(A_FACC + 16 * n + 4 * i, 4)} offset:{(4 * n + i) * 1024}", "dw")
        for n in range(5):
            d = vr(A_FACC + 16 * n, 16)
            for m in range(5):
                e.i(f"v_mfma_f32_32x32x16_bf16 {d}, {vr(self.ring_w(14 + m, n), 4)}, {vr(of[m], 4)}, {d}")
            if n:
                e.i("s_nop 6")
                dump(n - 1)
        e.i("s_nop 7")
        dump(4)
        e.i(f"""
        s_lshl_b32 {sr(T1)}, {sr(S_WV)}, 10
        v_add_u32 v9, {sr(T1)}, {vr(A_L16)}
        v_add_u32 v10, 81920, v9
        v_and_b32 v11, 31, v0
        v_mul_u32_u24 v11, 1280, v11
        v_add_u32 v11, v11, v1
        s_mul_i32 {sr(T1)}, {sr(S_RT)}, {32 * 1280}
        s_mul_i32 {sr(T2)}, {sr(S_CT)}, 320
        s_add_u32 {sr(T1)}, {sr(T1)}, {sr(T2)}
        s_lshl_b32 {sr(T2)}, {sr(S_WV)}, 4
        s_add_u32 {sr(T1)}, {sr(T1)}, {sr(T2)}
        """)
        e.wait(lg="all")
        e.i("s_barrier")
        self.stamp("dumped")
        for k in range(3):
            if k == 2:
                e.i(f"s_cmp_ge_u32 {sr(S_WV)}, 4\ns_cbranch_scc1 L_fin")
            if k:
                e.i("v_add_u32 v9, 8192, v9\nv_add_u32 v10, 8192, v10")
            b = 16 + 32 * (k & 1)
            for w in range(8):
                e.lds(f"ds_read_b128 {vr(b + 4 * w, 4)}, {vr(9 + (w >> 2))} offset:{(w & 3) * 20480}", f"rr{w}")
            for j in range(4):
                src = 2 + 2 * k + (j >> 1)
                e.i(f"v_and_b32 {vr(12 + j)}, 0xffff0000, {vr(src)}" if j & 1 else f"v_lshlrev_b32 {vr(12 + j)}, 16, {vr(src)}")
            for w in range(8):
                e.wait(lg=f"rr{w}")
                for j in range(4):
                    if w == 0:
                        e.i(f"v_fma_f32 {vr(12 + j)}, {vr(12 + j)}, {vr(A_GF)}, {vr(b + j)}")
                    else:
                        e.i(f"v_add_f32 {vr(12 + j)}, {vr(12 + j)}, {vr(b + 4 * w + j)}")
            e.i(f"""
            v_cvt_pk_bf16_f32 {vr(b)}, v12, v13
            v_cvt_pk_bf16_f32 {vr(b + 1)}, v14, v15
            buffer_store_dwordx2 {vr(b, 2)}, v11, {sr(R_OUT, 4)}, {sr(T1)} offen offset:{128 * k}
            """)
        e.label("L_fin")
        if c.dev:
            self.dev_dump()

    def dev_dump(self):
        e = self.e
        e.i(f"""
        s_waitcnt vmcnt(0)
        s_memtime s[36:37]
        s_memrealtime s[12:13]
        s_lshl_b32 {sr(T0)}, s2, 3
        s_add_u32 {sr(T0)}, {sr(T0)}, {sr(S_WV)}
        s_lshl_b32 {sr(T0)}, {sr(T0)}, 7
        s_add_u32 {sr(T0)}, {sr(T0)}, {OFF_DEV}
        s_waitcnt lgkmcnt(0)
        s_mov_b64 exec, 1
        """)
        for k in range(12):
            e.i(f"v_mov_b32 v1, {sr(16 + 2 * k)}\nbuffer_store_dword v1, off, {sr(R_WS, 4)}, {sr(T0)} offset:{4 * k}")
        e.i(f"v_mov_b32 v1, s12\nbuffer_store_dword v1, off, {sr(R_WS, 4)}, {sr(T0)} offset:48")
        e.i(f"v_mov_b32 v1, {sr(S_SPIN)}\nbuffer_store_dword v1, off, {sr(R_WS, 4)}, {sr(T0)} offset:52")
        if self.c.dbgwg >= 0:
            e.i(f"s_sub_u32 s12, s12, s38\nv_mov_b32 v1, s12\nbuffer_atomic_umax v1, off, {sr(R_DBG, 4)}, 0 offset:52")
            e.i(f"s_add_u32 s12, s12, s38\nv_mov_b32 v1, s12\nbuffer_atomic_umax v1, off, {sr(R_DBG, 4)}, 0 offset:56")
            e.i(f"s_not_b32 s13, s38\nv_mov_b32 v1, s13\nbuffer_atomic_umax v1, off, {sr(R_DBG, 4)}, 0 offset:60")
            e.i(f"s_cmp_lg_u32 {sr(T0)}, {OFF_DEV + self.c.dbgwg * 128}\ns_cbranch_scc1 L_end")
            for k in range(1, 11):
                e.i(f"s_sub_u32 s13, {sr(16 + 2 * k)}, s16\nv_mov_b32 v1, s13\nbuffer_store_dword v1, off, {sr(R_DBG, 4)}, 0 offset:{4 * k}")
            e.i(f"s_sub_u32 s13, s12, s38\nv_mov_b32 v1, s13\nbuffer_store_dword v1, off, {sr(R_DBG, 4)}, 0 offset:44")

    def build(self):
        e = self.e
        self.prologue()
        e.i(f"s_cmp_ge_u32 {sr(S_SEC)}, 2\ns_cbranch_scc1 L_p1v")
        snap = e.snapshot()
        self.pass1(False)
        after = e.snapshot()
        e.i("s_branch L_p2")
        e.label("L_p1v")
        e.restore(snap)
        self.pass1(True)
        assert e.snapshot() == after
        e.label("L_p2")
        e.i(f"s_cmp_lg_u32 {sr(S_CH)}, 0\ns_cbranch_scc1 L_p2b")
        self.pass2(0)
        after2 = e.snapshot()
        e.i("s_branch L_att")
        e.label("L_p2b")
        e.restore(after)
        self.pass2(1)
        assert e.snapshot() == after2
        e.label("L_att")
        self.attention()
        self.tail()
        e.label("L_end")
        e.i("s_endpgm")
        for blk in self.cold:
            e.i(blk)
        return e


HEADER = """; Fused gate + multi-head attention block + squared-ReLU FFN, one persistent launch (generated by gen/gen.py).
; @launch grid=(256,1,1) block=(512,1,1) lds=163840
.amdgcn_target "amdgcn-amd-amdhsa--gfx950"
.text
.globl {n}_kernel
.p2align 8
.type {n}_kernel,@function
{n}_kernel:
"""
FOOTER = """
.section .rodata,"a"
.p2align 6
.amdhsa_kernel {n}_kernel
  .amdhsa_next_free_vgpr 256
  .amdhsa_next_free_sgpr 102
  .amdhsa_accum_offset 256
  .amdhsa_group_segment_fixed_size 0
  .amdhsa_kernarg_size 96
  .amdhsa_user_sgpr_count 2
  .amdhsa_user_sgpr_kernarg_segment_ptr 1
  .amdhsa_system_sgpr_workgroup_id_x 1
  .amdhsa_float_denorm_mode_32 3
.end_amdhsa_kernel
"""


def generate(**kw):
    cfg = Cfg()
    for k, v in kw.items():
        assert hasattr(cfg, k), k
        setattr(cfg, k, v)
    e = Gen(cfg).build()
    errs = check_hazards(e.lines)
    if errs:
        for x in errs[:40]:
            print("HAZARD", x, file=sys.stderr)
        raise SystemExit(f"{len(errs)} hazards")
    return HEADER.format(n=NAME) + e.text() + "\n" + FOOTER.format(n=NAME)


if __name__ == "__main__":
    out = sys.argv[1]
    kw = {}
    for a in sys.argv[2:]:
        k, v = a.split("=")
        kw[k] = int(v)
    open(out, "w").write(generate(**kw))
```

```python
import math
import struct
import sys

from asmlib import Emit, check_hazards, sr, vr

NAME = "gated_mix__mha_block__dense_activation_squared_relu__prompt"

OFF_FLG = 0
OFF_G = 32768
OFF_Q = 65536
OFF_KV = OFF_Q + 32 * 64 * 1280
OFF_H = OFF_KV + 32 * 64 * 2560
OFF_WT = OFF_H + 64 * 112 * 1024
OFF_O = OFF_WT + 152 * 20 * 1024
OFF_DEV = OFF_O + 64 * 32 * 1280
WS_SIZE = OFF_DEV + 2048 * 128
OOB = 0x40000000
SPIN = 400000


def f32(x):
    return "0x%08x" % struct.unpack("<I", struct.pack("<f", x))[0]


S_WV, S_XCD, S_J, S_RB, S_CG, S_RQ, S_CH, S_M0 = 3, 4, 5, 6, 7, 8, 9, 10
T0, T1, T2, T3, T4 = 11, 12, 13, 14, 15
P_X, P_WQ, P_WO, P_W1, P_B1, P_W2, P_B2, P_GW, P_OUT, P_DBG, P_WS = 16, 18, 20, 24, 26, 28, 30, 32, 34, 36, 38
R_X, R_WQ, R_W1, R_WS, R_JOB, R_B1, R_B2, R_GW, R_OUT, R_DBG = 40, 44, 48, 52, 56, 60, 64, 68, 72, 76
S_HD, S_RTQ, S_RT, S_CT, S_BLK, S_SCALE = 80, 81, 82, 83, 84, 85
S_VMASK = 86
S_EPI, S_JST, S_OBLK, S_HB, S_WB, S_SEC, S_GAM, S_HST = 88, 89, 90, 91, 92, 93, 94, 95
S_MA, S_MB = 96, 98
S_SPIN = 100
S_KVB = 101

V_LANE = 0
V_X0, V_X1, V_W, V_W1 = 1, 2, 3, 4
V_XR = 5
V_WR = 7
V_ST = 11
V_L15, V_G4 = 15, 16
V_WR2 = 17
V_T = 21
V_BIAS = 24
V_ACC = 32
V_WB = (64, 80)
V_XF = 96

A_AK, A_AKR, A_AV, A_IDX, A_L16, A_GA, A_GF = 97, 98, 99, 100, 101, 102, 103
A_T = 104
A_QLO, A_QHI, A_KR, A_QM, A_KM, A_VLO = 106, 108, 110, 112, 116, 120
A_VHI = (124, 128)
A_P = 132
A_O = 136
A_S = (152, 168)
A_RING = 184
A_FACC = 16
NB = 3


STAMPSETS = {
    0: [],
    1: ["pro", "b0", "p1end", "p2end", "att0", "chk2", "attend", "odrain", "oload", "dumped"],
    2: ["pro", "b0", "b2", "b4", "b6", "b8", "p1end", "e1end", "b11", "b12"],
    3: ["pro", "p1end", "b11", "b12", "b13", "b14", "u18", "chk1", "p2end", "att0"],
    4: ["pro", "att0", "fl2a", "fl2b", "chk2a", "chk2", "t16", "t32", "t48", "attend"],
}


class Cfg:
    dev = 0
    dbgwg = -1
    rt = 0
    ffn_start = 16
    ffn_end = 64
    t_flag2 = 4
    t_poll2 = 8
    t_chk2 = 11
    force_fallback = False


def acc(n, rt):
    return V_ACC + (n * 2 + rt) * 4


def xf(ks, rt):
    return V_XF + (ks * 2 + rt) * 4


def srd(e, r, p, size):
    e.i(f"s_mov_b32 {sr(r)}, {sr(p)}")
    e.i(f"s_mov_b32 {sr(r + 1)}, {sr(p + 1)}")
    e.i(f"s_mov_b32 {sr(r + 2)}, {size}")
    e.i(f"s_mov_b32 {sr(r + 3)}, 0x20000")


class Gen:
    def __init__(self, cfg):
        self.c = cfg
        self.e = Emit()
        self.cold = []
        self.nlab = 0

    def stamp(self, name):
        names = STAMPSETS[self.c.dev]
        if name in names:
            op = "s_memrealtime" if self.c.rt else "s_memtime"
            self.e.i(f"{op} {sr(16 + 2 * names.index(name), 2)}")

    def lab(self, base):
        self.nlab += 1
        return f"L_{base}_{self.nlab}"

    def dma_stage(self, s):
        slot = (s % 5) * 32768
        out = []
        for i in range(4):
            m0 = slot + (i & 1) * 1024 + (i >> 1) * 16384
            if s < 10:
                if i < 2:
                    va, r, so = (V_X0, V_X1)[i], R_X, s * 128
                else:
                    va, r, so = V_W, R_WQ, (s * 64 + (i & 1) * 4) * 3840
            else:
                va, r, so = V_W1, R_W1, ((s - 10) * 128 + (i & 1) * 4 + (i >> 1) * 64) * 3456
            out.append((f"s_add_u32 m0, {sr(S_M0)}, {m0}\ns_mov_b32 {sr(T0)}, {so}\n"
                        f"buffer_load_dwordx4 {vr(va)}, {sr(r, 4)}, {sr(T0)} offen lds", f"st{s}"))
        return out

    def prologue(self):
        e = self.e
        e.i(f"""
        s_cmp_ge_u32 s2, 256
        s_cbranch_scc1 L_end
        s_load_dwordx16 s[16:31], s[0:1], 0
        s_load_dwordx8 s[32:39], s[0:1], 64
        {"s_memrealtime vcc" if self.c.dev else ""}
        v_lshrrev_b32 v21, 6, v0
        v_and_b32 v0, 63, v0
        v_readfirstlane_b32 {sr(S_WV)}, v21
        s_and_b32 {sr(S_XCD)}, s2, 7
        s_lshr_b32 {sr(S_J)}, s2, 3
        s_and_b32 {sr(T0)}, {sr(S_XCD)}, 1
        s_lshl_b32 {sr(T0)}, {sr(T0)}, 3
        s_and_b32 {sr(T1)}, {sr(S_J)}, 7
        s_add_u32 {sr(S_RB)}, {sr(T0)}, {sr(T1)}
        s_lshr_b32 {sr(T0)}, {sr(S_XCD)}, 1
        s_lshl_b32 {sr(T0)}, {sr(T0)}, 2
        s_lshr_b32 {sr(T1)}, {sr(S_J)}, 3
        s_add_u32 {sr(S_CG)}, {sr(T0)}, {sr(T1)}
        s_and_b32 {sr(S_RQ)}, {sr(S_WV)}, 3
        s_lshr_b32 {sr(S_CH)}, {sr(S_WV)}, 2
        s_lshl_b32 {sr(S_M0)}, {sr(S_WV)}, 11
        v_and_b32 {vr(V_L15)}, 15, v0
        v_lshrrev_b32 {vr(V_G4)}, 4, v0
        """)
        e.i(f"""
        v_lshrrev_b32 v21, 3, v0
        v_and_b32 v22, 7, v0
        v_xor_b32 v22, v22, {vr(V_G4)}
        v_lshlrev_b32 v22, 4, v22
        s_lshl_b32 {sr(T0)}, {sr(S_RB)}, 7
        s_lshl_b32 {sr(T1)}, {sr(S_WV)}, 4
        s_add_u32 {sr(T0)}, {sr(T0)}, {sr(T1)}
        v_add_u32 v21, {sr(T0)}, v21
        v_mul_u32_u24 v21, 1280, v21
        v_add_u32 {vr(V_X0)}, v21, v22
        v_xor_b32 {vr(V_X1)}, 64, {vr(V_X0)}
        v_add_u32 {vr(V_X1)}, 10240, {vr(V_X1)}
        """)
        e.i(f"""
        s_and_b32 {sr(T0)}, {sr(S_WV)}, 1
        s_lshl_b32 {sr(T0)}, {sr(T0)}, 3
        v_lshlrev_b32 v23, 1, {vr(V_G4)}
        v_or_b32 v23, {sr(T0)}, v23
        v_xor_b32 v23, v23, {vr(V_L15)}
        s_lshl_b32 {sr(T0)}, {sr(S_WV)}, 3
        v_add_u32 v21, {sr(T0)}, {vr(V_G4)}
        v_mul_u32_u24 v22, 3840, v21
        v_lshl_add_u32 v22, v23, 4, v22
        s_lshl_b32 {sr(T0)}, {sr(S_CG)}, 8
        v_add_u32 {vr(V_W)}, {sr(T0)}, v22
        s_waitcnt lgkmcnt(0)
        """)
        if self.c.dev:
            e.i("s_mov_b32 s0, vcc_lo")
        srd(e, R_X, P_X, 2048 * 1280)
        srd(e, R_WQ, P_WQ, 640 * 3840)
        e.i(f"""
        s_cmp_eq_u32 {sr(S_CG)}, 15
        s_cselect_b32 {sr(R_WQ + 2)}, 0, {sr(R_WQ + 2)}
        """)
        srd(e, R_WS, P_WS, WS_SIZE)
        skip = self.lab("noinit")
        e.i(f"""
        s_lshl_b32 {sr(T0)}, s2, 3
        s_add_u32 {sr(T0)}, {sr(T0)}, {sr(S_WV)}
        s_cmp_lg_u32 {sr(T0)}, 7
        s_cbranch_scc1 {skip}
        v_lshlrev_b32 v24, 7, v0
        v_mov_b32 v25, 0
        s_mov_b32 {sr(T0)}, 8192
        s_mov_b32 {sr(T1)}, 16384
        s_mov_b32 {sr(T2)}, 24576
        buffer_store_dword v25, v24, {sr(R_WS, 4)}, 0 offen sc1
        buffer_store_dword v25, v24, {sr(R_WS, 4)}, {sr(T0)} offen sc1
        buffer_store_dword v25, v24, {sr(R_WS, 4)}, {sr(T1)} offen sc1
        buffer_store_dword v25, v24, {sr(R_WS, 4)}, {sr(T2)} offen sc1
        """)
        e.label(skip)
        for s in range(5):
            for txt, tag in self.dma_stage(s):
                e.vmem(txt, tag)
        srd(e, R_W1, P_W1, 640 * 3456)
        srd(e, R_B1, P_B1, 3456)
        srd(e, R_B2, P_B2, 1280)
        srd(e, R_GW, P_GW, 1280)
        srd(e, R_OUT, P_OUT, 2048 * 1280)
        srd(e, R_DBG, P_DBG, 256)
        e.i(f"""
        v_mul_u32_u24 v22, 3456, v21
        v_lshl_add_u32 v22, v23, 4, v22
        s_mul_i32 {sr(T0)}, {sr(S_CG)}, 224
        v_add_u32 {vr(V_W1)}, {sr(T0)}, v22
        s_cmp_eq_u32 {sr(S_CG)}, 15
        s_cselect_b32 {sr(T0)}, 6, 14
        v_cmp_gt_u32 vcc, {sr(T0)}, v23
        v_mov_b32 v22, {OOB}
        s_nop 0
        v_cndmask_b32 {vr(V_W1)}, v22, {vr(V_W1)}, vcc
        """)
        e.i(f"""
        s_lshl_b32 {sr(T0)}, {sr(S_XCD)}, 2
        s_lshr_b32 {sr(S_CT)}, {sr(S_J)}, 3
        s_add_u32 {sr(S_HD)}, {sr(T0)}, {sr(S_CT)}
        s_and_b32 {sr(T1)}, {sr(S_J)}, 7
        s_lshl_b32 {sr(T0)}, {sr(T1)}, 3
        s_add_u32 {sr(S_RTQ)}, {sr(T0)}, {sr(S_WV)}
        s_lshl_b32 {sr(T0)}, {sr(S_XCD)}, 3
        s_add_u32 {sr(S_RT)}, {sr(T0)}, {sr(T1)}
        s_lshl_b32 {sr(T0)}, {sr(S_RB)}, 2
        s_add_u32 {sr(S_BLK)}, {sr(T0)}, {sr(S_RQ)}
        s_mul_i32 {sr(S_SEC)}, {sr(S_CG)}, 52
        s_lshr_b32 {sr(S_SEC)}, {sr(S_SEC)}, 8
        s_mul_i32 {sr(T0)}, {sr(S_SEC)}, 5
        s_sub_u32 {sr(S_GAM)}, {sr(S_CG)}, {sr(T0)}
        s_mov_b32 {sr(S_VMASK)}, 0x000fffff
        s_mov_b32 {sr(S_VMASK + 1)}, 0x000fffff
        s_lshl_b32 {sr(T0)}, {sr(S_RTQ)}, 5
        s_add_u32 {sr(T0)}, {sr(T0)}, {sr(S_HD)}
        s_mul_i32 {sr(T0)}, {sr(T0)}, 1280
        s_add_u32 {sr(S_OBLK)}, {sr(T0)}, {OFF_O}
        s_mul_i32 {sr(T0)}, {sr(S_BLK)}, 112
        s_mul_i32 {sr(T1)}, {sr(S_CG)}, 7
        s_add_u32 {sr(T0)}, {sr(T0)}, {sr(T1)}
        s_lshl_b32 {sr(T1)}, {sr(S_CH)}, 2
        s_add_u32 {sr(T0)}, {sr(T0)}, {sr(T1)}
        s_lshl_b32 {sr(T0)}, {sr(T0)}, 10
        s_add_u32 {sr(S_HST)}, {sr(T0)}, {OFF_H}
        s_mul_i32 {sr(T0)}, {sr(S_RT)}, 112
        s_mul_i32 {sr(T1)}, {sr(S_WV)}, 14
        s_add_u32 {sr(T0)}, {sr(T0)}, {sr(T1)}
        s_lshl_b32 {sr(T0)}, {sr(T0)}, 10
        s_add_u32 {sr(S_HB)}, {sr(T0)}, {OFF_H}
        s_mul_i32 {sr(T0)}, {sr(T1)}, 20
        s_mul_i32 {sr(T1)}, {sr(S_CT)}, 5
        s_add_u32 {sr(T0)}, {sr(T0)}, {sr(T1)}
        s_lshl_b32 {sr(T0)}, {sr(T0)}, 10
        s_add_u32 {sr(S_WB)}, {sr(T0)}, {OFF_WT}
        s_mul_i32 {sr(T0)}, {sr(S_HD)}, {64 * 2560}
        s_mul_i32 {sr(T1)}, {sr(S_WV)}, 10240
        s_add_u32 {sr(T0)}, {sr(T0)}, {sr(T1)}
        s_add_u32 {sr(S_KVB)}, {sr(T0)}, {OFF_KV}
        """)
        self.job_setup()
        e.i(f"""
        s_lshl_b32 {sr(T0)}, {sr(S_RQ)}, 12
        v_lshrrev_b32 v21, 1, {vr(V_L15)}
        v_xor_b32 v21, v21, {vr(V_G4)}
        v_lshlrev_b32 v21, 4, v21
        v_lshl_add_u32 v21, {vr(V_L15)}, 7, v21
        v_add_u32 {vr(V_XR)}, {sr(T0)}, v21
        v_xor_b32 {vr(V_XR + 1)}, 64, {vr(V_XR)}
        """)
        e.i(f"""
        v_lshrrev_b32 v22, 2, {vr(V_L15)}
        v_lshl_add_u32 v21, {vr(V_G4)}, 3, v22
        v_lshlrev_b32 v21, 8, v21
        v_and_b32 v23, 1, {vr(V_G4)}
        v_lshl_add_u32 v22, v23, 2, v22
        v_lshlrev_b32 v22, 1, v22
        v_and_b32 v23, 3, {vr(V_L15)}
        s_lshl_b32 {sr(T0)}, {sr(S_CH)}, 3
        """)
        for n in range(4):
            e.i(f"""
            v_lshrrev_b32 v24, 1, v23
            v_add_u32 v24, {2 * n}, v24
            v_add_u32 v24, {sr(T0)}, v24
            v_xor_b32 v24, v24, v22
            v_lshl_add_u32 v24, v24, 4, v21
            v_and_b32 v25, 1, v23
            v_lshl_add_u32 {vr(V_WR2 + n)}, v25, 3, v24
            """)
        if self.c.dev:
            e.i("s_mov_b32 s38, s0")
        self.stamp("pro")

    def job_setup(self):
        e = self.e
        kap, cp, base, a1, a2 = T0, T1, T2, T3, T4
        wo, done, odd, rem = self.lab("jwo"), self.lab("jdone"), self.lab("jodd"), self.lab("jrem")
        e.i(f"""
        s_lshl_b32 {sr(cp)}, s2, 3
        s_add_u32 {sr(cp)}, {sr(cp)}, {sr(S_WV)}
        s_mul_i32 {sr(kap)}, {sr(cp)}, 6554
        s_lshr_b32 {sr(kap)}, {sr(kap)}, 16
        s_lshl_b32 {sr(S_JST)}, {sr(cp)}, 11
        s_add_u32 {sr(S_JST)}, {sr(S_JST)}, {OFF_WT}
        s_cmp_ge_u32 {sr(kap)}, 152
        s_cselect_b32 {sr(S_JST)}, {OOB}, {sr(S_JST)}
        s_mul_i32 {sr(base)}, {sr(kap)}, 10
        s_sub_u32 {sr(cp)}, {sr(cp)}, {sr(base)}
        s_cmp_ge_u32 {sr(kap)}, 112
        s_cselect_b32 {sr(R_JOB)}, {sr(P_WO)}, {sr(P_W2)}
        s_cselect_b32 {sr(R_JOB + 1)}, {sr(P_WO + 1)}, {sr(P_W2 + 1)}
        s_mov_b32 {sr(R_JOB + 2)}, {1728 * 1280}
        s_cselect_b32 {sr(R_JOB + 2)}, {640 * 1280}, {sr(R_JOB + 2)}
        s_mov_b32 {sr(R_JOB + 3)}, 0x20000
        s_cbranch_scc1 {wo}
        s_mul_i32 {sr(a1)}, {sr(kap)}, 9363
        s_lshr_b32 {sr(a1)}, {sr(a1)}, 16
        s_mul_i32 {sr(base)}, {sr(a1)}, 112
        s_mul_i32 {sr(a1)}, {sr(a1)}, 7
        s_sub_u32 {sr(kap)}, {sr(kap)}, {sr(a1)}
        s_lshr_b32 {sr(a1)}, {sr(kap)}, 1
        s_lshl_b32 {sr(a1)}, {sr(a1)}, 5
        s_add_u32 {sr(base)}, {sr(base)}, {sr(a1)}
        s_and_b32 {sr(a1)}, {sr(kap)}, 1
        s_lshl_b32 {sr(a1)}, {sr(a1)}, 3
        s_add_u32 {sr(base)}, {sr(base)}, {sr(a1)}
        s_cmp_eq_u32 {sr(kap)}, 6
        s_cselect_b32 {sr(a1)}, 8, 4
        s_cselect_b32 {sr(a2)}, 4, 16
        s_branch {done}
        """)
        e.label(wo)
        e.i(f"""
        s_sub_u32 {sr(kap)}, {sr(kap)}, 112
        s_mul_i32 {sr(a1)}, {sr(kap)}, 13108
        s_lshr_b32 {sr(a1)}, {sr(a1)}, 16
        s_mul_i32 {sr(base)}, {sr(a1)}, 80
        s_mul_i32 {sr(a1)}, {sr(a1)}, 5
        s_sub_u32 {sr(kap)}, {sr(kap)}, {sr(a1)}
        s_mul_i32 {sr(a1)}, {sr(kap)}, 20
        s_cmp_eq_u32 {sr(kap)}, 4
        s_cselect_b32 {sr(a1)}, 16, {sr(a1)}
        s_add_u32 {sr(base)}, {sr(base)}, {sr(a1)}
        s_cmp_eq_u32 {sr(kap)}, 4
        s_cselect_b32 {sr(a1)}, 40, 4
        s_cselect_b32 {sr(a2)}, 20, 8
        """)
        e.label(done)
        e.i(f"""
        v_lshrrev_b32 v21, 5, v0
        v_mul_u32_u24 v21, {sr(a2)}, v21
        v_bfe_u32 v22, v0, 3, 2
        v_add3_u32 v21, v21, v22, {sr(base)}
        v_mul_u32_u24 v21, 1280, v21
        v_and_b32 v22, 7, v0
        v_lshl_add_u32 v21, v22, 4, v21
        s_lshl_b32 {sr(cp)}, {sr(cp)}, 7
        v_add_u32 v30, {sr(cp)}, v21
        s_mul_i32 {sr(a1)}, {sr(a1)}, 1280
        v_add_u32 v31, {sr(a1)}, v30
        """)

    def reads(self, s, ksl, ntiles, buf):
        off = (s % 5) * 32768 - ((s % 5) >> 1) * 65536
        out = []
        if s < 10:
            ks = 2 * s + ksl
            for rt in range(2):
                out.append(f"ds_read_b128 {vr(xf(ks, rt), 4)}, {vr(V_XR + ksl)} offset:{off + rt * 2048}")
            wbase, wr = off + 16384, V_WR
        else:
            wbase, wr = off, V_WR2
        for n in range(ntiles):
            for q in range(2):
                out.append(f"ds_read_b64_tr_b16 {vr(V_WB[buf] + 4 * n + 2 * q, 2)}, {vr(wr + n)} "
                           f"offset:{wbase + ksl * 8192 + q * 1024}")
        return out

    def window(self, s):
        slot = s % 5
        if s in (0, 10) or slot in (1, 3):
            return []
        d = 65536 if slot in (2, 4) else -131072
        rs = [V_XR, V_XR + 1] + [V_WR + n for n in range(4)] if s < 10 else [V_WR2 + n for n in range(4)]
        return [f"v_add_u32 {vr(r)}, {d & 0xffffffff:#x}, {vr(r)}" for r in rs]

    def mfmas(self, ks, ntiles, buf, vtype, first):
        out = []
        for n in range(ntiles):
            for rt in range(2):
                w, x, d = vr(V_WB[buf] + 4 * n, 4), vr(xf(ks, rt), 4), vr(acc(n, rt), 4)
                a, b = (x, w) if vtype else (w, x)
                out.append(f"v_mfma_f32_16x16x32_bf16 {d}, {a}, {b}, {'0' if first else d}")
        return out

    def unit(self, mf, rd, extra):
        e = self.e
        rd, extra = list(rd), list(extra)
        if not mf:
            for r in rd:
                e.lds(r, "rd")
            for x in extra:
                x()
            return
        for k, m in enumerate(mf):
            for _ in range(2):
                if rd:
                    e.lds(rd.pop(0), "rd")
            e.i(m)
            if extra and (not rd or k >= 3):
                extra.pop(0)()
        for r in rd:
            e.lds(r, "rd")
        for x in extra:
            x()

    def vm(self, txt, tag):
        return lambda: self.e.vmem(txt, tag)

    def ii(self, txt):
        return lambda: self.e.i(txt)

    def stage_sync(self, s, vmtags=()):
        e = self.e
        for w in self.window(s):
            e.i(w)
        e.wait(vm=[f"st{s}"] + list(vmtags), lg="all")
        e.i("s_barrier")
        self.stamp(f"b{s}")

    def pass1(self, vtype):
        e = self.e
        if vtype:
            for n in range(4):
                e.i(f"v_mov_b32 {vr(V_WR + n)}, {vr(V_WR2 + n)}")
        else:
            for n in range(4):
                e.i(f"""
                v_add_u32 v24, {4 * (n >> 1)}, v23
                v_add_u32 v24, {sr(T0)}, v24
                v_xor_b32 v24, v24, v22
                v_lshl_add_u32 v24, v24, 4, v21
                v_lshrrev_b32 v25, 1, v23
                v_xor_b32 v25, {n & 1}, v25
                v_lshl_add_u32 {vr(V_WR + n)}, v25, 3, v24
                """)
        self.epi1_addr(vtype)
        prev = []
        for s in range(10):
            for ksl in range(2):
                extra = []
                if ksl == 0:
                    self.stage_sync(s)
                    if s == 0:
                        self.publish_init()
                    else:
                        extra = [self.vm(t, g) for t, g in self.dma_stage(s + 4)]
                else:
                    e.wait(lg="all")
                if s == 8 and ksl == 1:
                    extra += self.bias_loads()
                self.unit(prev, self.reads(s, ksl, 4, ksl), extra)
                prev = self.mfmas(2 * s + ksl, 4, ksl, vtype, s == 0 and ksl == 0)
        self.stage_sync(10)
        self.unit(prev, self.reads(10, 0, 4, 0), [])
        self.stamp("p1end")
        self.epi1(vtype)
        self.stamp("e1end")
        for t, g in self.dma_stage(14):
            e.vmem(t, g)

    def publish_init(self):
        e = self.e
        skip = self.lab("nopub")
        e.i(f"""
        s_lshl_b32 {sr(T0)}, s2, 3
        s_add_u32 {sr(T0)}, {sr(T0)}, {sr(S_WV)}
        s_cmp_lg_u32 {sr(T0)}, 7
        s_cbranch_scc1 {skip}
        v_mov_b32 v25, 1
        s_mov_b64 exec, 1
        buffer_store_dword v25, off, {sr(R_DBG, 4)}, 0 sc1
        s_mov_b64 exec, -1
        """)
        e.label(skip)

    def bias_loads(self):
        out = [self.ii(f"""
        s_mul_i32 {sr(T1)}, {sr(S_CG)}, 224
        s_lshl_b32 {sr(T2)}, {sr(S_CH)}, 7
        s_add_u32 {sr(T1)}, {sr(T1)}, {sr(T2)}
        v_lshlrev_b32 v21, 3, {vr(V_G4)}
        """)]
        regs = (22, 24, 26, 28)
        for n in range(4):
            out.append(self.vm(f"buffer_load_dwordx2 {vr(regs[n], 2)}, v21, {sr(R_B1, 4)}, {sr(T1)} offen offset:{32 * n}",
                               "bias"))
        out.append(self.vm(f"buffer_load_dword v2, off, {sr(R_DBG, 4)}, 0 sc1", "dbg"))
        return out

    def epi1_addr(self, vtype):
        e = self.e
        if vtype:
            e.i(f"""
            s_lshl_b32 {sr(T1)}, {sr(S_GAM)}, 7
            s_lshl_b32 {sr(T2)}, {sr(S_CH)}, 6
            s_add_u32 {sr(T1)}, {sr(T1)}, {sr(T2)}
            s_mov_b32 {sr(T2)}, {64 * 2560}
            v_mul_u32_u24 v26, 320, {vr(V_G4)}
            """)
            for n in range(4):
                e.i(f"""
                v_add3_u32 v24, {vr(V_L15)}, {sr(T1)}, {16 * n}
                v_mul_u32_u24 v25, 3277, v24
                v_lshrrev_b32 v25, 16, v25
                v_mul_u32_u24 v27, 20, v25
                v_sub_u32 v24, v24, v27
                v_mul_u32_u24 v25, {sr(T2)}, v25
                v_lshl_add_u32 v24, v24, 4, v25
                v_add_u32 {vr(V_ST + n)}, v24, v26
                """)
            e.i(f"""
            s_mul_i32 {sr(T1)}, {sr(S_BLK)}, 2560
            s_add_u32 {sr(S_EPI)}, {sr(T1)}, {OFF_KV + 1280}
            s_cmp_eq_u32 {sr(S_CG)}, 15
            s_cselect_b32 {sr(S_EPI)}, {OOB}, {sr(S_EPI)}
            """)
            return
        e.i(f"""
        s_lshl_b32 {sr(T1)}, {sr(S_GAM)}, 4
        s_lshl_b32 {sr(T2)}, {sr(S_CH)}, 3
        s_add_u32 {sr(T1)}, {sr(T1)}, {sr(T2)}
        s_lshl_b32 {sr(T3)}, 1280, {sr(S_SEC)}
        s_lshl_b32 {sr(T2)}, {sr(T3)}, 6
        s_mul_i32 {sr(T3)}, {sr(T3)}, {sr(S_BLK)}
        s_cmp_eq_u32 {sr(S_SEC)}, 0
        s_mov_b32 {sr(T4)}, {OFF_KV}
        s_cselect_b32 {sr(T4)}, {OFF_Q}, {sr(T4)}
        s_cselect_b32 {sr(S_SCALE)}, {f32(math.log2(math.e) / math.sqrt(20.0))}, 1.0
        s_add_u32 {sr(S_EPI)}, {sr(T3)}, {sr(T4)}
        """)
        for p in range(2):
            mask = (S_MA, S_MB)[p]
            e.i(f"""
            v_add3_u32 v24, {vr(V_G4)}, {sr(T1)}, {4 * p}
            v_mul_u32_u24 v25, 205, v24
            v_lshrrev_b32 v25, 10, v25
            v_mul_u32_u24 v26, 5, v25
            v_sub_u32 v26, v24, v26
            v_cmp_eq_u32 {sr(mask, 2)}, 2, v26
            v_cmp_lt_u32 vcc, 2, v26
            v_lshrrev_b32 v27, 1, {vr(V_G4)}
            v_subrev_u32 v28, 3, v26
            v_cndmask_b32 v26, v26, v28, vcc
            v_cndmask_b32 v28, 0, 1, vcc
            v_lshlrev_b32 v26, 9, v26
            v_lshl_add_u32 v26, {vr(V_L15)}, 4, v26
            v_cndmask_b32 v29, v28, v27, {sr(mask, 2)}
            v_lshl_add_u32 v29, v25, 1, v29
            v_mul_lo_u32 v29, v29, {sr(T2)}
            v_add_u32 {vr(V_ST + 2 * p)}, v29, v26
            v_xor_b32 v27, 1, v27
            v_cndmask_b32 v29, v28, v27, {sr(mask, 2)}
            v_lshl_add_u32 v29, v25, 1, v29
            v_mul_lo_u32 v29, v29, {sr(T2)}
            v_mov_b32 v27, 256
            v_cndmask_b32 v27, v27, 0, {sr(mask, 2)}
            v_add3_u32 {vr(V_ST + 2 * p + 1)}, v29, v26, v27
            """)

    def epi1(self, vtype):
        e = self.e
        pk = V_WB[1]
        e.i("s_nop 7")
        if vtype:
            for n in range(4):
                for rt in range(2):
                    for h in range(2):
                        a = acc(n, rt) + 2 * h
                        e.i(f"v_cvt_pk_bf16_f32 {vr(pk + 4 * n + 2 * rt + h)}, {vr(a)}, {vr(a + 1)}")
                e.vmem(f"buffer_store_dwordx4 {vr(pk + 4 * n, 4)}, {vr(V_ST + n)}, {sr(R_WS, 4)}, {sr(S_EPI)} offen sc1",
                       "e1")
        else:
            for p in range(2):
                for k in range(16):
                    r = acc(2 * p, 0) + k
                    e.i(f"v_mul_f32 {vr(r)}, {sr(S_SCALE)}, {vr(r)}")
                for rt in range(2):
                    for ab in range(2):
                        for h in range(2):
                            a = acc(2 * p + ab, rt) + 2 * h
                            e.i(f"v_cvt_pk_bf16_f32 {vr(pk + 8 * p + 4 * rt + 2 * ab + h)}, {vr(a)}, {vr(a + 1)}")
                b = pk + 8 * p
                e.i(f"""
                s_mov_b64 exec, {sr((S_MA, S_MB)[p], 2)}
                v_swap_b32 {vr(b + 2)}, {vr(b + 4)}
                v_swap_b32 {vr(b + 3)}, {vr(b + 5)}
                s_mov_b64 exec, -1
                """)
                for k in range(2):
                    e.vmem(f"buffer_store_dwordx4 {vr(b + 4 * k, 4)}, {vr(V_ST + 2 * p + k)}, {sr(R_WS, 4)}, "
                           f"{sr(S_EPI)} offen sc1", "e1")
        e.wait(vm="bias")
        for n, r in enumerate((22, 24, 26, 28)):
            for h in range(2):
                for rt in range(2):
                    e.i(f"v_lshlrev_b32 {vr(acc(n, rt) + 2 * h)}, 16, {vr(r + h)}")
                    e.i(f"v_and_b32 {vr(acc(n, rt) + 2 * h + 1)}, 0xffff0000, {vr(r + h)}")

    def side_issue(self):
        out = [self.ii(f"""
        s_lshl_b32 {sr(T1)}, {sr(S_RB)}, 4
        s_add_u32 {sr(T1)}, {sr(T1)}, {sr(S_CG)}
        s_lshl_b32 {sr(T1)}, {sr(T1)}, 3
        s_add_u32 {sr(T1)}, {sr(T1)}, {sr(S_WV)}
        s_mul_i32 {sr(T1)}, {sr(T1)}, 1280
        v_lshlrev_b32 v21, 2, v0
        v_lshlrev_b32 v22, 4, v0
        v_mov_b32 v116, -1
        v_mov_b32 v117, -1
        v_mov_b32 v118, -1
        v_mov_b32 v119, -1
        """)]
        for h in range(2):
            out.append(self.vm(f"s_add_u32 m0, {sr(S_M0)}, {h * 1024}\ns_nop 0\n"
                               f"buffer_load_dwordx4 {vr(30 + h)}, {sr(R_JOB, 4)}, 0 offen lds", "job"))
        for i in range(5):
            out.append(self.vm(f"buffer_load_dword {vr(96 + i)}, v21, {sr(R_X, 4)}, {sr(T1)} offen offset:{256 * i}", "gate"))
            out.append(self.vm(f"buffer_load_dword {vr(101 + i)}, v21, {sr(R_GW, 4)}, 0 offen offset:{256 * i}", "gate"))
        out.append(self.vm(f"buffer_store_dwordx4 v[116:119], v22, {sr(R_WS, 4)}, {sr(S_OBLK)} offen sc1", "sent"))
        out.append(self.vm(f"buffer_store_dword v116, v21, {sr(R_WS, 4)}, {sr(S_OBLK)} offen offset:1024 sc1", "sent"))
        return out

    def flag_store(self, val, check_init):
        e = self.e
        skip = self.lab("nofl")
        e.i(f"s_cmp_lg_u32 {sr(S_WV)}, 0\ns_cbranch_scc1 {skip}")
        if check_init:
            ok, lp = self.lab("iok"), self.lab("ilp")
            e.i(f"v_readfirstlane_b32 {sr(T1)}, v2\ns_cmp_eq_u32 {sr(T1)}, 0\ns_cbranch_scc1 {lp}")
            e.label(ok)
            self.cold.append(f"""
            {lp}:
            s_mov_b32 {sr(S_SPIN)}, {SPIN}
            {lp}_a:
            buffer_load_dword v2, off, {sr(R_DBG, 4)}, 0 sc1
            s_waitcnt vmcnt(0)
            v_readfirstlane_b32 {sr(T1)}, v2
            s_cmp_lg_u32 {sr(T1)}, 0
            s_cbranch_scc1 {ok}
            s_sleep 8
            s_sub_u32 {sr(S_SPIN)}, {sr(S_SPIN)}, 1
            s_cmp_lg_u32 {sr(S_SPIN)}, 0
            s_cbranch_scc1 {lp}_a
            s_branch {ok}
            """)
        e.i(f"""
        s_lshl_b32 {sr(T1)}, {sr(S_CG)}, 4
        s_add_u32 {sr(T1)}, {sr(T1)}, {sr(S_RB)}
        s_lshl_b32 {sr(T1)}, {sr(T1)}, 7
        v_mov_b32 v1, {val}
        s_mov_b64 exec, 1
        buffer_store_dword v1, off, {sr(R_WS, 4)}, {sr(T1)} sc1
        s_mov_b64 exec, -1
        """)
        e.label(skip)

    def side_job_read(self):
        e = self.e

        def f():
            e.wait(vm="job")
            e.i(f"""
            v_lshrrev_b32 v23, 5, v0
            v_lshlrev_b32 v23, 10, v23
            v_bfe_u32 v24, v0, 2, 2
            v_lshl_add_u32 v23, v24, 7, v23
            v_and_b32 v24, 1, {vr(V_G4)}
            v_lshl_add_u32 v23, v24, 5, v23
            v_and_b32 v24, 3, v0
            v_lshl_add_u32 v23, v24, 3, v23
            v_add_u32 v23, {sr(S_M0)}, v23
            """)
            for ph in range(2):
                for q in range(2):
                    e.lds(f"ds_read_b64_tr_b16 {vr(108 + 4 * ph + 2 * q, 2)}, v23 offset:{q * 512 + ph * 64}", "jr")
        return [f]

    def side_job_store(self):
        return [self.vm(f"buffer_store_dwordx4 {vr(108 + 4 * ph, 4)}, v22, {sr(R_WS, 4)}, {sr(S_JST)} offen offset:{1024 * ph} sc1",
                        "js") for ph in range(2)]

    def side_gate(self):
        e = self.e

        def a():
            e.wait(vm="gate")
            e.i("v_dot2_f32_bf16 v23, v96, v101, 0")
            for i in range(1, 5):
                e.i(f"v_dot2_f32_bf16 v23, {vr(96 + i)}, {vr(101 + i)}, v23")
            e.i("s_nop 2")
            for sh in (8, 4, 2, 1):
                e.i(f"v_add_f32_dpp v23, v23, v23 row_ror:{sh} row_mask:0xf bank_mask:0xf\ns_nop 1")

        def b():
            e.i(f"""
            v_readlane_b32 {sr(T1)}, v23, 16
            v_readlane_b32 {sr(T2)}, v23, 32
            v_readlane_b32 {sr(T3)}, v23, 48
            v_add_f32 v23, {sr(T1)}, v23
            v_add_f32 v23, {sr(T2)}, v23
            v_add_f32 v23, {sr(T3)}, v23
            v_mul_f32 v23, {f32(-math.log2(math.e))}, v23
            v_exp_f32 v23, v23
            s_lshl_b32 {sr(T1)}, {sr(S_RB)}, 4
            v_add_f32 v23, 1.0, v23
            v_rcp_f32 v23, v23
            s_add_u32 {sr(T1)}, {sr(T1)}, {sr(S_CG)}
            s_lshl_b32 {sr(T1)}, {sr(T1)}, 7
            s_lshl_b32 {sr(T2)}, {sr(S_WV)}, 2
            s_add_u32 {sr(T1)}, {sr(T1)}, {sr(T2)}
            s_add_u32 {sr(T1)}, {sr(T1)}, {OFF_G}
            s_mov_b64 exec, 1
            """)
            e.vmem(f"buffer_store_dword v23, off, {sr(R_WS, 4)}, {sr(T1)} sc1", "gs")
            e.i("s_mov_b64 exec, -1")
        return [a, b]

    def poll(self, vaddr, vdat, val, nlanes, tag):
        e = self.e
        mask = (1 << nlanes) - 1
        setx = "s_mov_b32 exec_hi, 0" if nlanes == 32 else f"s_mov_b64 exec, {mask:#x}"

        def issue():
            e.i(setx)
            e.vmem(f"buffer_load_dword {vr(vdat)}, {vr(vaddr)}, {sr(R_WS, 4)}, 0 offen sc1", tag)
            e.i("s_mov_b64 exec, -1")

        def check():
            ok, lp = self.lab("pok"), self.lab("plp")
            e.wait(vm=tag)
            e.i(f"""
            v_cmp_gt_u32 vcc, {val}, {vr(vdat)}
            s_and_b32 {sr(T1)}, vcc_lo, {mask:#x}
            s_cbranch_scc1 {lp}
            """)
            e.label(ok)
            self.cold.append(f"""
            {lp}:
            s_mov_b32 {sr(S_SPIN)}, {SPIN}
            {lp}_a:
            {setx}
            buffer_load_dword {vr(vdat)}, {vr(vaddr)}, {sr(R_WS, 4)}, 0 offen sc1
            s_mov_b64 exec, -1
            s_waitcnt vmcnt(0)
            v_cmp_gt_u32 vcc, {val}, {vr(vdat)}
            s_and_b32 {sr(T1)}, vcc_lo, {mask:#x}
            s_cbranch_scc0 {ok}
            s_sub_u32 {sr(S_SPIN)}, {sr(S_SPIN)}, 1
            s_cmp_lg_u32 {sr(S_SPIN)}, 0
            s_cbranch_scc1 {lp}_a
            s_branch {ok}
            """)
        return issue, check

    def poll1_addr(self):
        return self.ii(f"""
        s_mul_i32 {sr(T1)}, {sr(S_HD)}, 20
        v_and_b32 v23, 1, v0
        v_mul_u32_u24 v23, 19, v23
        v_add_u32 v23, {sr(T1)}, v23
        v_lshrrev_b32 v23, 7, v23
        v_lshrrev_b32 v24, 2, v0
        v_mul_u32_u24 v25, 5, v24
        v_add_u32 v23, v23, v25
        v_bfe_u32 v25, v0, 1, 1
        v_lshlrev_b32 v25, 3, v25
        v_add_u32 v25, {sr(S_WV)}, v25
        s_lshr_b32 {sr(T1)}, {sr(S_RTQ)}, 2
        v_cmp_eq_u32 vcc, 0, v24
        v_mov_b32 v24, {sr(T1)}
        s_nop 0
        v_cndmask_b32 v25, v25, v24, vcc
        v_lshl_add_u32 v23, v23, 4, v25
        v_lshlrev_b32 {vr(A_P)}, 7, v23
        """)

    def kv_dma(self, half):
        out = []
        for i in range(10):
            o = half * 81920 + i * 1024
            out.append(self.vm(f"s_mul_i32 {sr(T2)}, {sr(S_WV)}, 10240\ns_add_u32 m0, {sr(T2)}, {o}\n"
                               f"s_add_u32 {sr(T2)}, {sr(S_KVB)}, {o}\n"
                               f"buffer_load_dwordx4 {vr(A_L16)}, {sr(R_WS, 4)}, {sr(T2)} offen sc1 lds", f"kv{half}"))
        return out

    def att_setup(self):
        e = self.e

        def a():
            e.i(f"""
            v_lshlrev_b32 {vr(A_L16)}, 4, v0
            v_lshrrev_b32 v23, 5, v0
            v_bfe_u32 v24, v0, 3, 2
            v_and_b32 v25, 3, v0
            v_lshl_add_u32 v24, v24, 2, v25
            v_bfe_u32 v25, v0, 2, 1
            v_lshlrev_b32 v26, 9, v23
            v_lshl_add_u32 v26, v25, 8, v26
            v_lshl_add_u32 {vr(A_AK)}, v24, 4, v26
            v_mul_u32_u24 v26, 2560, v23
            v_lshl_add_u32 v26, v24, 4, v26
            v_lshl_add_u32 {vr(A_AKR)}, v25, 3, v26
            v_and_b32 v24, 31, v0
            v_mul_u32_u24 v26, 320, v23
            v_lshl_add_u32 {vr(A_AV)}, v24, 4, v26
            v_mov_b32 {vr(A_IDX)}, 0xdddddddd
            """)

        def b():
            for r in range(A_VLO, A_VLO + 12):
                e.i(f"v_mov_b32 {vr(r)}, 0x3f803f80")

        def c():
            for r in range(A_O, A_O + 16):
                e.i(f"v_mov_b32 {vr(r)}, 0")
        return [a, b, c]

    def q_loads(self):
        e = self.e

        def f():
            e.i(f"""
            s_lshl_b32 {sr(T1)}, {sr(S_HD)}, 6
            s_add_u32 {sr(T1)}, {sr(T1)}, {sr(S_RTQ)}
            s_mul_i32 {sr(T1)}, {sr(T1)}, 1280
            s_add_u32 {sr(T1)}, {sr(T1)}, {OFF_Q}
            v_bfe_u32 v23, v0, 4, 1
            v_lshlrev_b32 v23, 3, v23
            v_lshl_add_u32 v23, {vr(V_L15)}, 4, v23
            """)
            e.vmem(f"buffer_load_dwordx4 {vr(A_QM, 4)}, {vr(A_L16)}, {sr(R_WS, 4)}, {sr(T1)} offen sc1", "q")
            e.vmem(f"buffer_load_dwordx2 {vr(A_QLO, 2)}, v23, {sr(R_WS, 4)}, {sr(T1)} offen offset:1024 sc1", "q")
        return [f]

    def pass2(self, ch):
        e = self.e
        nt = 3 if ch else 4
        p_issue, p_check = self.poll(A_P, A_P + 1, 1, 12, "p1")
        prev = self.mfmas(0, nt, 0, False, False)
        for u in range(1, 20):
            s, ksl = 10 + (u >> 2), u & 3
            extra = []
            if ksl == 0:
                self.stage_sync(s, ["e1", "dbg"] if s == 12 else [])
                if s == 12:
                    self.flag_store(1, True)
            else:
                e.wait(lg="all")
            if u == 5:
                extra = self.side_issue()
            if u == 10:
                extra = self.side_job_read()
            if u == 11:
                extra = self.side_job_store()
            if u == 12:
                extra = self.side_gate()
            if u == 13:
                extra = [self.poll1_addr()]
            if u == 14:
                extra = self.att_setup()
            if u == 15:
                extra = [p_issue]
            if u == 18:
                extra = [lambda: self.stamp("u18"), p_check, lambda: self.stamp("chk1")] + self.q_loads() + self.kv_dma(0)
            self.unit(prev, self.reads(s, ksl, nt, u & 1), extra)
            prev = self.mfmas(u, nt, u & 1, False, False)
        e.wait(lg="all")
        e.i("s_barrier")
        self.unit(prev, [], self.kv_dma(1))
        self.stamp("p2end")
        e.i(f"""
        v_lshlrev_b32 v23, 9, {vr(V_G4)}
        v_lshl_add_u32 v23, {vr(V_L15)}, 4, v23
        v_lshrrev_b32 v24, 1, {vr(V_G4)}
        v_lshlrev_b32 v24, 9, v24
        v_lshl_add_u32 v24, {vr(V_L15)}, 4, v24
        v_and_b32 v25, 1, {vr(V_G4)}
        v_lshl_add_u32 v24, v25, 3, v24
        s_nop 0
        """)
        pk = V_WB[0]
        for p in range(2):
            tiles = [n for n in (2 * p, 2 * p + 1) if n < nt]
            for n in tiles:
                for k in range(8):
                    r = acc(n, 0) + k
                    e.i(f"v_max_f32 {vr(r)}, 0, {vr(r)}")
                for k in range(8):
                    r = acc(n, 0) + k
                    e.i(f"v_mul_f32 {vr(r)}, {vr(r)}, {vr(r)}")
            for rt in range(2):
                b = pk + 8 * p + 4 * rt
                for ab, n in enumerate(tiles):
                    for h in range(2):
                        a = acc(n, rt) + 2 * h
                        e.i(f"v_cvt_pk_bf16_f32 {vr(b + 2 * ab + h)}, {vr(a)}, {vr(a + 1)}")
                if len(tiles) == 2:
                    e.vmem(f"buffer_store_dwordx4 {vr(b, 4)}, v23, {sr(R_WS, 4)}, {sr(S_HST)} offen "
                           f"offset:{2048 * p + 256 * rt} sc1", "hs")
                else:
                    e.vmem(f"buffer_store_dwordx2 {vr(b, 2)}, v24, {sr(R_WS, 4)}, {sr(S_HST)} offen "
                           f"offset:{2048 * p + 256 * rt} sc1", "hs")

    def lds_off(self, reg, off):
        base = self.win[reg]
        while off - base > 65535 - 2560:
            base += 61440
            self.e.i(f"v_add_u32 {vr(reg)}, 61440, {vr(reg)}")
        self.win[reg] = base
        return off - base

    def rd_k(self, t):
        if t < 64:
            o = self.lds_off(A_AK, t * 2560)
            self.e.lds(f"ds_read_b128 {vr(A_KM, 4)}, {vr(A_AK)} offset:{o}", f"k{t}")

    def rd_kr(self, t):
        if t < 64:
            o = self.lds_off(A_AKR, t * 2560)
            self.e.lds(f"ds_read_b64 {vr(A_KR, 2)}, {vr(A_AKR)} offset:{o + 1024}", f"r{t}")

    def rd_v(self, t):
        if t < 64:
            e = self.e
            o = self.lds_off(A_AV, t * 2560)
            e.i(f"s_mov_b64 exec, {sr(S_VMASK, 2)}")
            e.lds(f"ds_read_b128 {vr(A_VLO, 4)}, {vr(A_AV)} offset:{o + 1280}", f"vl{t}")
            e.lds(f"ds_read_b128 {vr(A_VHI[t & 1], 4)}, {vr(A_AV)} offset:{o + 1920}", f"vh{t}")
            e.i("s_mov_b64 exec, -1")

    def qk1(self, t):
        self.e.wait(lg=f"k{t}")
        self.e.i(f"v_mfma_f32_32x32x16_bf16 {vr(A_S[t & 1], 16)}, {vr(A_KM, 4)}, {vr(A_QM, 4)}, 0")
        self.rd_k(t + 1)

    def qk2(self, t):
        self.e.wait(lg=f"r{t & ~1}")
        s = vr(A_S[t & 1], 16)
        self.e.i(f"v_mfma_f32_32x32x8_bf16 {s}, {vr(A_KR, 2)}, {vr((A_QLO, A_QHI)[t & 1], 2)}, {s}")
        if t & 1:
            self.rd_kr(t + 1)

    def pvlo(self, t):
        self.e.wait(lg=f"vl{t}")
        self.e.i(f"v_smfmac_f32_32x32x32_bf16 {vr(A_O, 16)}, {vr(A_VLO, 4)}, {vr(A_S[t & 1], 8)}, {vr(A_IDX)}")
        self.rd_v(t + 1)

    def pvhi(self, t):
        self.e.wait(lg=f"vh{t}")
        self.e.i(f"v_smfmac_f32_32x32x32_bf16 {vr(A_O, 16)}, {vr(A_VHI[t & 1], 4)}, {vr(A_S[t & 1] + 8, 8)}, {vr(A_IDX)}")

    def ring_h(self, i):
        return A_RING + (i % NB) * 24

    def ring_w(self, i, n):
        if i >= 14 + NB:
            return [[152, 156, 160, 164, 168], [172, 176, 180, 116, 120]][i - 14 - NB][n]
        return A_RING + (i % NB) * 24 + 4 + 4 * n

    def ld_w(self, i, n):
        e = self.e
        if i < 14:
            e.i(f"s_add_u32 {sr(T2)}, {sr(S_WB)}, {i * 20480 + n * 1024}")
        else:
            e.i(f"s_add_u32 {sr(T2)}, {sr(S_EPI)}, {(i - 14) * 20480 + n * 1024}")
        e.vmem(f"buffer_load_dwordx4 {vr(self.ring_w(i, n), 4)}, {vr(A_L16)}, {sr(R_WS, 4)}, {sr(T2)} offen sc1", f"w{i}_{n}")

    def ld_h(self, i):
        e = self.e
        e.i(f"s_add_u32 {sr(T2)}, {sr(S_HB)}, {i * 1024}")
        e.vmem(f"buffer_load_dwordx4 {vr(self.ring_h(i), 4)}, {vr(A_L16)}, {sr(R_WS, 4)}, {sr(T2)} offen sc1", f"h{i}")

    def ffn_mfma(self, i, n):
        e = self.e
        e.wait(vm=[f"w{i}_{n}", f"h{i}"])
        d = vr(A_FACC + 16 * n, 16)
        e.i(f"v_mfma_f32_32x32x16_bf16 {d}, {vr(self.ring_w(i, n), 4)}, {vr(self.ring_h(i), 4)}, {'0' if i == 0 else d}")
        self.ld_w(i + NB, n)
        if n == 4 and i + NB < 14:
            self.ld_h(i + NB)

    def attention(self):
        e, c = self.e, self.c
        self.win = {A_AK: 0, A_AKR: 0, A_AV: 0}
        p_issue, p_check = self.poll(A_P, A_P + 1, 2, 32, "p2")
        e.i(f"""
        s_lshl_b32 {sr(T1)}, {sr(S_WV)}, 12
        v_lshlrev_b32 {vr(A_P)}, 7, v0
        v_add_u32 {vr(A_P)}, {sr(T1)}, {vr(A_P)}
        s_mul_i32 {sr(T1)}, {sr(S_WV)}, 100
        s_mul_i32 {sr(T2)}, {sr(S_CT)}, 5
        s_add_u32 {sr(T1)}, {sr(T1)}, {sr(T2)}
        s_lshl_b32 {sr(T1)}, {sr(T1)}, 10
        s_add_u32 {sr(S_EPI)}, {sr(T1)}, {OFF_WT + 112 * 20480}
        """)
        e.wait(vm=["kv0", "q"])
        e.i(f"""
        v_mov_b32 {vr(A_QHI)}, {vr(A_QLO)}
        v_mov_b32 {vr(A_QHI + 1)}, {vr(A_QLO + 1)}
        s_mov_b32 exec_hi, 0
        v_mov_b32 {vr(A_QHI)}, 0
        v_mov_b32 {vr(A_QHI + 1)}, 0
        s_not_b64 exec, exec
        v_mov_b32 {vr(A_QLO)}, 0
        v_mov_b32 {vr(A_QLO + 1)}, 0
        s_mov_b64 exec, -1
        s_barrier
        """)
        self.stamp("att0")
        self.rd_k(0)
        self.rd_kr(0)
        self.rd_v(0)
        self.qk1(0)
        self.qk2(0)
        e.i("s_nop 11")
        ffn = [(i, n) for i in range(14) for n in range(5)]
        nemb = c.ffn_end - c.ffn_start
        done = 0
        for t in range(64):
            nf = 0
            if c.ffn_start <= t < c.ffn_end:
                nf = min(2, (70 * (t - c.ffn_start + 1) + nemb - 1) // nemb - done)
            fs = ffn[done:done + nf]
            done += nf
            if t == c.t_flag2:
                self.stamp("fl2a")
                e.wait(vm="all")
                e.i("s_barrier")
                self.stamp("fl2b")
                self.flag_store(2, False)
            if t == c.t_poll2:
                p_issue()
            if t == c.t_chk2:
                self.stamp("chk2a")
                p_check()
                e.i("s_barrier")
                self.stamp("chk2")
                self.after_flags2()
            self.stamp(f"t{t}")
            self.tile(t, fs)
        e.i("s_nop 1")
        self.pvhi(63)
        self.stamp("attend")
        for i, n in ffn[done:]:
            self.ffn_mfma(i, n)

    def after_flags2(self):
        e = self.e
        for i in range(NB):
            self.ld_h(i)
            for n in range(5):
                self.ld_w(i, n)
        e.i(f"""
        v_bfe_u32 {vr(A_T)}, v0, 3, 2
        v_and_b32 {vr(A_T + 1)}, 7, v0
        v_lshlrev_b32 {vr(A_T + 1)}, 2, {vr(A_T + 1)}
        v_lshl_add_u32 {vr(A_T)}, {vr(A_T)}, 7, {vr(A_T + 1)}
        s_lshl_b32 {sr(T1)}, {sr(S_RTQ)}, 9
        s_add_u32 {sr(T1)}, {sr(T1)}, {OFF_G}
        s_lshl_b32 {sr(T2)}, {sr(S_RT)}, 9
        s_add_u32 {sr(T2)}, {sr(T2)}, {OFF_G}
        """)
        e.vmem(f"buffer_load_dword {vr(A_GA)}, {vr(A_T)}, {sr(R_WS, 4)}, {sr(T1)} offen sc1", "g")
        e.vmem(f"buffer_load_dword {vr(A_GF)}, {vr(A_T)}, {sr(R_WS, 4)}, {sr(T2)} offen sc1", "g")

    def tile(self, t, fs):
        e = self.e
        x = A_S[t & 1]
        slots = {0: {2: "hi", 6: "q1", 10: "q2", 14: "lo"},
                 1: {2: "hi", 5: "q1", 9: "q2", 12: "lo", 15: "f"},
                 2: {2: "hi", 4: "q1", 7: "f", 10: "q2", 13: "lo", 15: "f"}}[len(fs)]
        fs = list(fs)
        for k in range(16):
            op = slots.get(k)
            if op == "hi" and t > 0:
                self.pvhi(t - 1)
            elif op == "q1" and t < 63:
                self.qk1(t + 1)
            elif op == "q2" and t < 63:
                self.qk2(t + 1)
            elif op == "lo":
                self.pvlo(t)
            elif op == "f":
                self.ffn_mfma(*fs.pop(0))
            e.i(f"v_exp_f32 {vr(x + k)}, {vr(x + k)}")
            if k in (11, 12):
                e.i("s_nop 0")

    def fallback(self, back):
        x, m = A_S[0], A_S[1]
        L = []
        A = L.append
        A(f"""
        L_fb:
        v_add_u32 {vr(A_AK)}, {(-self.win[A_AK]) & 0xffffffff:#x}, {vr(A_AK)}
        v_add_u32 {vr(A_AKR)}, {(-self.win[A_AKR]) & 0xffffffff:#x}, {vr(A_AKR)}
        v_add_u32 {vr(A_AV)}, {(-self.win[A_AV]) & 0xffffffff:#x}, {vr(A_AV)}
        v_mov_b32 {vr(m)}, 0xff800000
        """)
        for ps in range(2):
            A(f"s_mov_b32 {sr(T1)}, 0\nL_fb{ps}:")
            for par in range(2):
                A(f"""
                ds_read_b128 {vr(A_KM, 4)}, {vr(A_AK)} offset:{par * 2560}
                ds_read_b64 {vr(A_KR, 2)}, {vr(A_AKR)} offset:1024
                """)
                if ps:
                    A(f"""
                    s_mov_b64 exec, {sr(S_VMASK, 2)}
                    ds_read_b128 {vr(A_VLO, 4)}, {vr(A_AV)} offset:{par * 2560 + 1280}
                    ds_read_b128 {vr(A_VHI[0], 4)}, {vr(A_AV)} offset:{par * 2560 + 1920}
                    s_mov_b64 exec, -1
                    """)
                A(f"""
                s_waitcnt lgkmcnt(0)
                v_mfma_f32_32x32x16_bf16 {vr(x, 16)}, {vr(A_KM, 4)}, {vr(A_QM, 4)}, 0
                v_mfma_f32_32x32x8_bf16 {vr(x, 16)}, {vr(A_KR, 2)}, {vr((A_QLO, A_QHI)[par], 2)}, {vr(x, 16)}
                s_nop 11
                """)
                if ps == 0:
                    for k in range(0, 16, 2):
                        A(f"v_max3_f32 {vr(m)}, {vr(m)}, {vr(x + k)}, {vr(x + k + 1)}")
                else:
                    for k in range(16):
                        A(f"v_sub_f32 {vr(x + k)}, {vr(x + k)}, {vr(m)}\nv_exp_f32 {vr(x + k)}, {vr(x + k)}")
                    A(f"""
                    s_nop 1
                    v_smfmac_f32_32x32x32_bf16 {vr(A_O, 16)}, {vr(A_VLO, 4)}, {vr(x, 8)}, {vr(A_IDX)}
                    v_smfmac_f32_32x32x32_bf16 {vr(A_O, 16)}, {vr(A_VHI[0], 4)}, {vr(x + 8, 8)}, {vr(A_IDX)}
                    s_nop 7
                    """)
            A(f"""
            v_add_u32 {vr(A_AK)}, 5120, {vr(A_AK)}
            v_add_u32 {vr(A_AKR)}, 5120, {vr(A_AKR)}
            """)
            if ps:
                A(f"v_add_u32 {vr(A_AV)}, 5120, {vr(A_AV)}")
            A(f"""
            s_add_u32 {sr(T1)}, {sr(T1)}, 1
            s_cmp_lt_u32 {sr(T1)}, 32
            s_cbranch_scc1 L_fb{ps}
            """)
            if ps == 0:
                A(f"""
                v_mov_b32 {vr(m + 1)}, {vr(m)}
                v_add_u32 {vr(A_AK)}, {(-163840) & 0xffffffff:#x}, {vr(A_AK)}
                v_add_u32 {vr(A_AKR)}, {(-163840) & 0xffffffff:#x}, {vr(A_AKR)}
                v_permlane32_swap_b32 {vr(m)}, {vr(m + 1)}
                s_nop 1
                v_max_f32 {vr(m)}, {vr(m)}, {vr(m + 1)}
                """)
                for r in range(A_O, A_O + 16):
                    A(f"v_mov_b32 {vr(r)}, 0")
        A(f"s_nop 7\ns_branch {back}")
        self.cold.append("\n".join(L))

    def tail(self):
        e, c = self.e, self.c
        o, t0 = A_O, A_T
        back = "L_fb_back"
        e.i("s_nop 11")
        e.i(f"v_mov_b32 {vr(t0)}, {vr(o + 12)}")
        for k in range(12):
            e.i(f"v_fma_f32 {vr(t0)}, {vr(o + k)}, 0, {vr(t0)}")
        lo, hi = (2.0 ** 40, 2.0 ** -20) if c.force_fallback else (2.0 ** -20, 2.0 ** 40)
        e.i(f"""
        v_cmp_nle_f32 vcc, {f32(lo)}, {vr(t0)}
        s_mov_b64 {sr(S_MA, 2)}, vcc
        v_cmp_nge_f32 vcc, {f32(hi)}, {vr(t0)}
        s_or_b64 vcc, vcc, {sr(S_MA, 2)}
        s_cbranch_scc1 L_fb
        """)
        e.label(back)
        self.fallback(back)
        e.wait(vm="g")
        e.i(f"""
        v_rcp_f32 {vr(t0)}, {vr(o + 12)}
        v_and_b32 {vr(t0 + 1)}, 31, v0
        v_mul_f32 {vr(t0)}, {vr(t0)}, {vr(A_GA)}
        v_lshlrev_b32 {vr(t0 + 1)}, 3, {vr(t0 + 1)}
        """)
        for k in range(12):
            e.i(f"v_mul_f32 {vr(o + k)}, {vr(o + k)}, {vr(t0)}")
        for k in range(6):
            e.i(f"v_cvt_pk_bf16_f32 {vr(o + k)}, {vr(o + 2 * k)}, {vr(o + 2 * k + 1)}")
        for k in range(6):
            e.i(f"v_min_u32 {vr(o + k)}, -2, {vr(o + k)}")
        e.vmem(f"buffer_store_dwordx4 {vr(o, 4)}, {vr(A_L16)}, {sr(R_WS, 4)}, {sr(S_OBLK)} offen sc1", "os")
        e.i("s_mov_b32 exec_hi, 0")
        e.vmem(f"buffer_store_dwordx2 {vr(o + 4, 2)}, {vr(t0 + 1)}, {sr(R_WS, 4)}, {sr(S_OBLK)} offen offset:1024 sc1", "os")
        e.i("s_mov_b64 exec, -1")
        for i in range(14 + NB, 19):
            for n in range(5):
                self.ld_w(i, n)
        e.i(f"""
        v_lshrrev_b32 v1, 5, v0
        v_lshlrev_b32 v1, 3, v1
        s_mul_i32 {sr(T1)}, {sr(S_CT)}, 320
        s_lshl_b32 {sr(T2)}, {sr(S_WV)}, 4
        s_add_u32 {sr(T1)}, {sr(T1)}, {sr(T2)}
        """)
        for k in range(3):
            e.vmem(f"buffer_load_dwordx2 {vr(2 + 2 * k, 2)}, v1, {sr(R_B2, 4)}, {sr(T1)} offen offset:{128 * k}", "b2")
        e.i(f"v_sub_f32 {vr(A_GF)}, 1.0, {vr(A_GF)}")
        e.i("s_barrier")
        for k in range(80):
            e.i(f"v_mul_f32 {vr(A_FACC + k)}, {vr(A_FACC + k)}, {vr(A_GF)}")
        of = [self.ring_h(0), self.ring_h(1), self.ring_h(2), 124, 128]
        e.i(f"""
        v_lshrrev_b32 v8, 5, v0
        v_mul_u32_u24 v8, 2560, v8
        v_add_u32 v8, v8, {vr(t0 + 1)}
        s_lshl_b32 {sr(T3)}, {sr(S_RT)}, 5
        s_lshl_b32 {sr(T2)}, {sr(S_WV)}, 2
        s_add_u32 {sr(T3)}, {sr(T3)}, {sr(T2)}
        s_mul_i32 {sr(T3)}, {sr(T3)}, 1280
        s_add_u32 {sr(T3)}, {sr(T3)}, {OFF_O}
        s_mov_b32 {sr(S_SPIN)}, {SPIN}
        """)
        e.wait(vm="os")
        self.stamp("odrain")
        e.label("L_opoll")
        for m in range(4):
            e.vmem(f"buffer_load_dwordx4 {vr(of[m], 4)}, {vr(A_L16)}, {sr(R_WS, 4)}, {sr(T3)} offen offset:{1280 * m} sc1", "o")
        for a in range(2):
            e.vmem(f"buffer_load_dwordx2 {vr(of[4] + 2 * a, 2)}, v8, {sr(R_WS, 4)}, {sr(T3)} offen offset:{1024 + 1280 * a} sc1", "o")
        e.wait(vm="all")
        rs = [of[m] + k for m in range(5) for k in range(4)]
        e.i(f"v_max_u32 v9, {vr(rs[0])}, {vr(rs[1])}")
        for k in range(2, 20, 2):
            e.i(f"v_max3_u32 v9, v9, {vr(rs[k])}, {vr(rs[k + 1])}")
        e.i(f"""
        v_cmp_eq_u32 vcc, -1, v9
        s_sub_u32 {sr(S_SPIN)}, {sr(S_SPIN)}, 1
        s_cmp_eq_u32 {sr(S_SPIN)}, 0
        s_cbranch_scc1 L_odone
        s_cbranch_vccnz L_opoll
        """)
        e.label("L_odone")
        self.stamp("oload")
        e.i(f"""
        s_mul_i32 {sr(T1)}, {sr(S_WV)}, 20480
        v_add_u32 v9, {sr(T1)}, {vr(A_L16)}
        """)

        def dump(n):
            for i in range(4):
                e.lds(f"ds_write_b128 v9, {vr(A_FACC + 16 * n + 4 * i, 4)} offset:{(4 * n + i) * 1024}", "dw")
        for n in range(5):
            d = vr(A_FACC + 16 * n, 16)
            for m in range(5):
                e.i(f"v_mfma_f32_32x32x16_bf16 {d}, {vr(self.ring_w(14 + m, n), 4)}, {vr(of[m], 4)}, {d}")
            if n:
                e.i("s_nop 6")
                dump(n - 1)
        e.i("s_nop 7")
        dump(4)
        e.i(f"""
        s_lshl_b32 {sr(T1)}, {sr(S_WV)}, 10
        v_add_u32 v9, {sr(T1)}, {vr(A_L16)}
        v_add_u32 v10, 81920, v9
        v_and_b32 v11, 31, v0
        v_mul_u32_u24 v11, 1280, v11
        v_add_u32 v11, v11, v1
        s_mul_i32 {sr(T1)}, {sr(S_RT)}, {32 * 1280}
        s_mul_i32 {sr(T2)}, {sr(S_CT)}, 320
        s_add_u32 {sr(T1)}, {sr(T1)}, {sr(T2)}
        s_lshl_b32 {sr(T2)}, {sr(S_WV)}, 4
        s_add_u32 {sr(T1)}, {sr(T1)}, {sr(T2)}
        """)
        e.wait(lg="all")
        e.i("s_barrier")
        self.stamp("dumped")
        for k in range(3):
            if k == 2:
                e.i(f"s_cmp_ge_u32 {sr(S_WV)}, 4\ns_cbranch_scc1 L_fin")
            if k:
                e.i("v_add_u32 v9, 8192, v9\nv_add_u32 v10, 8192, v10")
            b = 16 + 32 * (k & 1)
            for w in range(8):
                e.lds(f"ds_read_b128 {vr(b + 4 * w, 4)}, {vr(9 + (w >> 2))} offset:{(w & 3) * 20480}", f"rr{w}")
            for j in range(4):
                src = 2 + 2 * k + (j >> 1)
                e.i(f"v_and_b32 {vr(12 + j)}, 0xffff0000, {vr(src)}" if j & 1 else f"v_lshlrev_b32 {vr(12 + j)}, 16, {vr(src)}")
            for w in range(8):
                e.wait(lg=f"rr{w}")
                for j in range(4):
                    if w == 0:
                        e.i(f"v_fma_f32 {vr(12 + j)}, {vr(12 + j)}, {vr(A_GF)}, {vr(b + j)}")
                    else:
                        e.i(f"v_add_f32 {vr(12 + j)}, {vr(12 + j)}, {vr(b + 4 * w + j)}")
            e.i(f"""
            v_cvt_pk_bf16_f32 {vr(b)}, v12, v13
            v_cvt_pk_bf16_f32 {vr(b + 1)}, v14, v15
            buffer_store_dwordx2 {vr(b, 2)}, v11, {sr(R_OUT, 4)}, {sr(T1)} offen offset:{128 * k}
            """)
        e.label("L_fin")
        if c.dev:
            self.dev_dump()

    def dev_dump(self):
        e = self.e
        e.i(f"""
        s_waitcnt vmcnt(0)
        {"s_memrealtime" if self.c.rt else "s_memtime"} s[36:37]
        s_memrealtime s[12:13]
        s_lshl_b32 {sr(T0)}, s2, 3
        s_add_u32 {sr(T0)}, {sr(T0)}, {sr(S_WV)}
        s_lshl_b32 {sr(T0)}, {sr(T0)}, 7
        s_add_u32 {sr(T0)}, {sr(T0)}, {OFF_DEV}
        s_waitcnt lgkmcnt(0)
        s_mov_b64 exec, 1
        """)
        for k in range(12):
            e.i(f"v_mov_b32 v1, {sr(16 + 2 * k)}\nbuffer_store_dword v1, off, {sr(R_WS, 4)}, {sr(T0)} offset:{4 * k}")
        e.i(f"v_mov_b32 v1, s12\nbuffer_store_dword v1, off, {sr(R_WS, 4)}, {sr(T0)} offset:48")
        e.i(f"v_mov_b32 v1, {sr(S_SPIN)}\nbuffer_store_dword v1, off, {sr(R_WS, 4)}, {sr(T0)} offset:52")
        if self.c.dbgwg >= 0:
            e.i(f"s_cmp_lg_u32 {sr(T0)}, {OFF_DEV + self.c.dbgwg * 128}\ns_cbranch_scc1 L_end")
            for k in range(1, 11):
                e.i(f"s_sub_u32 s13, {sr(16 + 2 * k)}, s16\nv_mov_b32 v1, s13\nbuffer_store_dword v1, off, {sr(R_DBG, 4)}, 0 offset:{4 * k}")
            e.i(f"s_sub_u32 s13, s12, s38\nv_mov_b32 v1, s13\nbuffer_store_dword v1, off, {sr(R_DBG, 4)}, 0 offset:44")

    def build(self):
        e = self.e
        self.prologue()
        e.i(f"s_cmp_ge_u32 {sr(S_SEC)}, 2\ns_cbranch_scc1 L_p1v")
        snap = e.snapshot()
        self.pass1(False)
        after = e.snapshot()
        e.i("s_branch L_p2")
        e.label("L_p1v")
        e.restore(snap)
        self.pass1(True)
        assert e.snapshot() == after
        e.label("L_p2")
        e.i(f"s_cmp_lg_u32 {sr(S_CH)}, 0\ns_cbranch_scc1 L_p2b")
        self.pass2(0)
        after2 = e.snapshot()
        e.i("s_branch L_att")
        e.label("L_p2b")
        e.restore(after)
        self.pass2(1)
        assert e.snapshot() == after2
        e.label("L_att")
        self.attention()
        self.tail()
        e.label("L_end")
        e.i("s_endpgm")
        for blk in self.cold:
            e.i(blk)
        return e


HEADER = """; Fused gate + multi-head attention block + squared-ReLU FFN, one persistent launch (generated by gen/gen.py).
; @launch grid=(256,1,1) block=(512,1,1) lds=163840
.amdgcn_target "amdgcn-amd-amdhsa--gfx950"
.text
.globl {n}_kernel
.p2align 8
.type {n}_kernel,@function
{n}_kernel:
"""
FOOTER = """
.section .rodata,"a"
.p2align 6
.amdhsa_kernel {n}_kernel
  .amdhsa_next_free_vgpr 256
  .amdhsa_next_free_sgpr 102
  .amdhsa_accum_offset 256
  .amdhsa_group_segment_fixed_size 0
  .amdhsa_kernarg_size 96
  .amdhsa_user_sgpr_count 2
  .amdhsa_user_sgpr_kernarg_segment_ptr 1
  .amdhsa_system_sgpr_workgroup_id_x 1
  .amdhsa_float_denorm_mode_32 3
.end_amdhsa_kernel
"""


def generate(**kw):
    cfg = Cfg()
    for k, v in kw.items():
        assert hasattr(cfg, k), k
        setattr(cfg, k, v)
    e = Gen(cfg).build()
    errs = check_hazards(e.lines)
    if errs:
        for x in errs[:40]:
            print("HAZARD", x, file=sys.stderr)
        raise SystemExit(f"{len(errs)} hazards")
    return HEADER.format(n=NAME) + e.text() + "\n" + FOOTER.format(n=NAME)


if __name__ == "__main__":
    out = sys.argv[1]
    kw = {}
    for a in sys.argv[2:]:
        k, v = a.split("=")
        kw[k] = int(v)
    open(out, "w").write(generate(**kw))
```

```python
import math
import struct
import sys

from asmlib import Emit, check_hazards, sr, vr

NAME = "gated_mix__mha_block__dense_activation_squared_relu__prompt"

OFF_FLG = 0
OFF_G = 32768
OFF_Q = 65536
OFF_KV = OFF_Q + 32 * 64 * 1280
OFF_H = OFF_KV + 32 * 64 * 2560
OFF_WT = OFF_H + 64 * 112 * 1024
OFF_O = OFF_WT + 152 * 20 * 1024
OFF_DEV = OFF_O + 64 * 32 * 1280
WS_SIZE = OFF_DEV + 2048 * 128
OOB = 0x40000000
SPIN = 400000


def f32(x):
    return "0x%08x" % struct.unpack("<I", struct.pack("<f", x))[0]


S_WV, S_XCD, S_J, S_RB, S_CG, S_RQ, S_CH, S_M0 = 3, 4, 5, 6, 7, 8, 9, 10
T0, T1, T2, T3, T4 = 11, 12, 13, 14, 15
P_X, P_WQ, P_WO, P_W1, P_B1, P_W2, P_B2, P_GW, P_OUT, P_DBG, P_WS = 16, 18, 20, 24, 26, 28, 30, 32, 34, 36, 38
R_X, R_WQ, R_W1, R_WS, R_JOB, R_B1, R_B2, R_GW, R_OUT, R_DBG = 40, 44, 48, 52, 56, 60, 64, 68, 72, 76
S_HD, S_RTQ, S_RT, S_CT, S_BLK, S_SCALE = 80, 81, 82, 83, 84, 85
S_VMASK = 86
S_EPI, S_JST, S_OBLK, S_HB, S_WB, S_SEC, S_GAM, S_HST = 88, 89, 90, 91, 92, 93, 94, 95
S_MA, S_MB = 96, 98
S_SPIN = 100
S_KVB = 101

V_LANE = 0
V_X0, V_X1, V_W, V_W1 = 1, 2, 3, 4
V_XR = 5
V_WR = 7
V_ST = 11
V_L15, V_G4 = 15, 16
V_WR2 = 17
V_T = 21
V_BIAS = 24
V_ACC = 32
V_WB = (64, 80)
V_XF = 96

A_AK, A_AKR, A_AV, A_IDX, A_L16, A_GA, A_GF = 97, 98, 99, 100, 101, 102, 103
A_T = 104
A_QLO, A_QHI, A_KR, A_QM, A_KM, A_VLO = 106, 108, 110, 112, 116, 120
A_VHI = (124, 128)
A_P = 132
A_O = 136
A_S = (152, 168)
A_RING = 184
A_FACC = 16
NB = 3


STAMPSETS = {
    0: [],
    1: ["pro", "b0", "p1end", "p2end", "att0", "chk2", "attend", "odrain", "oload", "dumped"],
    2: ["pro", "b0", "b2", "b4", "b6", "b8", "p1end", "e1end", "b11", "b12"],
    3: ["pro", "p1end", "b11", "b12", "b13", "b14", "u18", "chk1", "p2end", "att0"],
    4: ["pro", "att0", "fl2a", "fl2b", "chk2a", "chk2", "t16", "t32", "t48", "attend"],
}


class Cfg:
    dev = 0
    dbgwg = -1
    rt = 0
    enc = -1
    ffn_start = 16
    ffn_end = 64
    t_flag2 = 4
    t_poll2 = 8
    t_chk2 = 11
    force_fallback = False


def acc(n, rt):
    return V_ACC + (n * 2 + rt) * 4


def xf(ks, rt):
    return V_XF + (ks * 2 + rt) * 4


def srd(e, r, p, size):
    e.i(f"s_mov_b32 {sr(r)}, {sr(p)}")
    e.i(f"s_mov_b32 {sr(r + 1)}, {sr(p + 1)}")
    e.i(f"s_mov_b32 {sr(r + 2)}, {size}")
    e.i(f"s_mov_b32 {sr(r + 3)}, 0x20000")


class Gen:
    def __init__(self, cfg):
        self.c = cfg
        self.e = Emit()
        self.cold = []
        self.nlab = 0

    def stamp(self, name):
        names = STAMPSETS[self.c.dev]
        if name in names:
            op = "s_memrealtime" if self.c.rt else "s_memtime"
            self.e.i(f"{op} {sr(16 + 2 * names.index(name), 2)}")

    def lab(self, base):
        self.nlab += 1
        return f"L_{base}_{self.nlab}"

    def dma_stage(self, s):
        slot = (s % 5) * 32768
        out = []
        for i in range(4):
            m0 = slot + (i & 1) * 1024 + (i >> 1) * 16384
            if s < 10:
                if i < 2:
                    va, r, so = (V_X0, V_X1)[i], R_X, s * 128
                else:
                    va, r, so = V_W, R_WQ, (s * 64 + (i & 1) * 4) * 3840
            else:
                va, r, so = V_W1, R_W1, ((s - 10) * 128 + (i & 1) * 4 + (i >> 1) * 64) * 3456
            out.append((f"s_add_u32 m0, {sr(S_M0)}, {m0}\ns_mov_b32 {sr(T0)}, {so}\n"
                        f"buffer_load_dwordx4 {vr(va)}, {sr(r, 4)}, {sr(T0)} offen lds", f"st{s}"))
        return out

    def prologue(self):
        e = self.e
        e.i(f"""
        s_cmp_ge_u32 s2, 256
        s_cbranch_scc1 L_end
        s_load_dwordx16 s[16:31], s[0:1], 0
        s_load_dwordx8 s[32:39], s[0:1], 64
        {"s_memrealtime vcc" if self.c.dev else ""}
        v_lshrrev_b32 v21, 6, v0
        v_and_b32 v0, 63, v0
        v_readfirstlane_b32 {sr(S_WV)}, v21
        s_and_b32 {sr(S_XCD)}, s2, 7
        s_lshr_b32 {sr(S_J)}, s2, 3
        s_and_b32 {sr(T0)}, {sr(S_XCD)}, 1
        s_lshl_b32 {sr(T0)}, {sr(T0)}, 3
        s_and_b32 {sr(T1)}, {sr(S_J)}, 7
        s_add_u32 {sr(S_RB)}, {sr(T0)}, {sr(T1)}
        s_lshr_b32 {sr(T0)}, {sr(S_XCD)}, 1
        s_lshl_b32 {sr(T0)}, {sr(T0)}, 2
        s_lshr_b32 {sr(T1)}, {sr(S_J)}, 3
        s_add_u32 {sr(S_CG)}, {sr(T0)}, {sr(T1)}
        s_and_b32 {sr(S_RQ)}, {sr(S_WV)}, 3
        s_lshr_b32 {sr(S_CH)}, {sr(S_WV)}, 2
        s_lshl_b32 {sr(S_M0)}, {sr(S_WV)}, 11
        v_and_b32 {vr(V_L15)}, 15, v0
        v_lshrrev_b32 {vr(V_G4)}, 4, v0
        """)
        e.i(f"""
        v_lshrrev_b32 v21, 3, v0
        v_and_b32 v22, 7, v0
        v_xor_b32 v22, v22, {vr(V_G4)}
        v_lshlrev_b32 v22, 4, v22
        s_lshl_b32 {sr(T0)}, {sr(S_RB)}, 7
        s_lshl_b32 {sr(T1)}, {sr(S_WV)}, 4
        s_add_u32 {sr(T0)}, {sr(T0)}, {sr(T1)}
        v_add_u32 v21, {sr(T0)}, v21
        v_mul_u32_u24 v21, 1280, v21
        v_add_u32 {vr(V_X0)}, v21, v22
        v_xor_b32 {vr(V_X1)}, 64, {vr(V_X0)}
        v_add_u32 {vr(V_X1)}, 10240, {vr(V_X1)}
        """)
        e.i(f"""
        s_and_b32 {sr(T0)}, {sr(S_WV)}, 1
        s_lshl_b32 {sr(T0)}, {sr(T0)}, 3
        v_lshlrev_b32 v23, 1, {vr(V_G4)}
        v_or_b32 v23, {sr(T0)}, v23
        v_xor_b32 v23, v23, {vr(V_L15)}
        s_lshl_b32 {sr(T0)}, {sr(S_WV)}, 3
        v_add_u32 v21, {sr(T0)}, {vr(V_G4)}
        v_mul_u32_u24 v22, 3840, v21
        v_lshl_add_u32 v22, v23, 4, v22
        s_lshl_b32 {sr(T0)}, {sr(S_CG)}, 8
        v_add_u32 {vr(V_W)}, {sr(T0)}, v22
        s_waitcnt lgkmcnt(0)
        """)
        if self.c.dev:
            e.i("s_mov_b32 s0, vcc_lo")
        srd(e, R_X, P_X, 2048 * 1280)
        srd(e, R_WQ, P_WQ, 640 * 3840)
        e.i(f"""
        s_cmp_eq_u32 {sr(S_CG)}, 15
        s_cselect_b32 {sr(R_WQ + 2)}, 0, {sr(R_WQ + 2)}
        """)
        srd(e, R_WS, P_WS, WS_SIZE)
        skip = self.lab("noinit")
        e.i(f"""
        s_lshl_b32 {sr(T0)}, s2, 3
        s_add_u32 {sr(T0)}, {sr(T0)}, {sr(S_WV)}
        s_cmp_lg_u32 {sr(T0)}, 7
        s_cbranch_scc1 {skip}
        v_lshlrev_b32 v24, 7, v0
        v_mov_b32 v25, 0
        s_mov_b32 {sr(T0)}, 8192
        s_mov_b32 {sr(T1)}, 16384
        s_mov_b32 {sr(T2)}, 24576
        buffer_store_dword v25, v24, {sr(R_WS, 4)}, 0 offen sc1
        buffer_store_dword v25, v24, {sr(R_WS, 4)}, {sr(T0)} offen sc1
        buffer_store_dword v25, v24, {sr(R_WS, 4)}, {sr(T1)} offen sc1
        buffer_store_dword v25, v24, {sr(R_WS, 4)}, {sr(T2)} offen sc1
        """)
        e.label(skip)
        for s in range(5):
            for txt, tag in self.dma_stage(s):
                e.vmem(txt, tag)
        srd(e, R_W1, P_W1, 640 * 3456)
        srd(e, R_B1, P_B1, 3456)
        srd(e, R_B2, P_B2, 1280)
        srd(e, R_GW, P_GW, 1280)
        srd(e, R_OUT, P_OUT, 2048 * 1280)
        srd(e, R_DBG, P_DBG, 256)
        e.i(f"""
        v_mul_u32_u24 v22, 3456, v21
        v_lshl_add_u32 v22, v23, 4, v22
        s_mul_i32 {sr(T0)}, {sr(S_CG)}, 224
        v_add_u32 {vr(V_W1)}, {sr(T0)}, v22
        s_cmp_eq_u32 {sr(S_CG)}, 15
        s_cselect_b32 {sr(T0)}, 6, 14
        v_cmp_gt_u32 vcc, {sr(T0)}, v23
        v_mov_b32 v22, {OOB}
        s_nop 0
        v_cndmask_b32 {vr(V_W1)}, v22, {vr(V_W1)}, vcc
        """)
        e.i(f"""
        s_lshl_b32 {sr(T0)}, {sr(S_XCD)}, 2
        s_lshr_b32 {sr(S_CT)}, {sr(S_J)}, 3
        s_add_u32 {sr(S_HD)}, {sr(T0)}, {sr(S_CT)}
        s_and_b32 {sr(T1)}, {sr(S_J)}, 7
        s_lshl_b32 {sr(T0)}, {sr(T1)}, 3
        s_add_u32 {sr(S_RTQ)}, {sr(T0)}, {sr(S_WV)}
        s_lshl_b32 {sr(T0)}, {sr(S_XCD)}, 3
        s_add_u32 {sr(S_RT)}, {sr(T0)}, {sr(T1)}
        s_lshl_b32 {sr(T0)}, {sr(S_RB)}, 2
        s_add_u32 {sr(S_BLK)}, {sr(T0)}, {sr(S_RQ)}
        s_mul_i32 {sr(S_SEC)}, {sr(S_CG)}, 52
        s_lshr_b32 {sr(S_SEC)}, {sr(S_SEC)}, 8
        s_mul_i32 {sr(T0)}, {sr(S_SEC)}, 5
        s_sub_u32 {sr(S_GAM)}, {sr(S_CG)}, {sr(T0)}
        s_mov_b32 {sr(S_VMASK)}, 0x000fffff
        s_mov_b32 {sr(S_VMASK + 1)}, 0x000fffff
        s_lshl_b32 {sr(T0)}, {sr(S_RTQ)}, 5
        s_add_u32 {sr(T0)}, {sr(T0)}, {sr(S_HD)}
        s_mul_i32 {sr(T0)}, {sr(T0)}, 1280
        s_add_u32 {sr(S_OBLK)}, {sr(T0)}, {OFF_O}
        s_mul_i32 {sr(T0)}, {sr(S_BLK)}, 112
        s_mul_i32 {sr(T1)}, {sr(S_CG)}, 7
        s_add_u32 {sr(T0)}, {sr(T0)}, {sr(T1)}
        s_lshl_b32 {sr(T1)}, {sr(S_CH)}, 2
        s_add_u32 {sr(T0)}, {sr(T0)}, {sr(T1)}
        s_lshl_b32 {sr(T0)}, {sr(T0)}, 10
        s_add_u32 {sr(S_HST)}, {sr(T0)}, {OFF_H}
        s_mul_i32 {sr(T0)}, {sr(S_RT)}, 112
        s_mul_i32 {sr(T1)}, {sr(S_WV)}, 14
        s_add_u32 {sr(T0)}, {sr(T0)}, {sr(T1)}
        s_lshl_b32 {sr(T0)}, {sr(T0)}, 10
        s_add_u32 {sr(S_HB)}, {sr(T0)}, {OFF_H}
        s_mul_i32 {sr(T0)}, {sr(T1)}, 20
        s_mul_i32 {sr(T1)}, {sr(S_CT)}, 5
        s_add_u32 {sr(T0)}, {sr(T0)}, {sr(T1)}
        s_lshl_b32 {sr(T0)}, {sr(T0)}, 10
        s_add_u32 {sr(S_WB)}, {sr(T0)}, {OFF_WT}
        s_mul_i32 {sr(T0)}, {sr(S_HD)}, {64 * 2560}
        s_mul_i32 {sr(T1)}, {sr(S_WV)}, 10240
        s_add_u32 {sr(T0)}, {sr(T0)}, {sr(T1)}
        s_add_u32 {sr(S_KVB)}, {sr(T0)}, {OFF_KV}
        """)
        self.job_setup()
        e.i(f"""
        s_lshl_b32 {sr(T0)}, {sr(S_RQ)}, 12
        v_lshrrev_b32 v21, 1, {vr(V_L15)}
        v_xor_b32 v21, v21, {vr(V_G4)}
        v_lshlrev_b32 v21, 4, v21
        v_lshl_add_u32 v21, {vr(V_L15)}, 7, v21
        v_add_u32 {vr(V_XR)}, {sr(T0)}, v21
        v_xor_b32 {vr(V_XR + 1)}, 64, {vr(V_XR)}
        """)
        e.i(f"""
        v_lshrrev_b32 v22, 2, {vr(V_L15)}
        v_lshl_add_u32 v21, {vr(V_G4)}, 3, v22
        v_lshlrev_b32 v21, 8, v21
        v_and_b32 v23, 1, {vr(V_G4)}
        v_lshl_add_u32 v22, v23, 2, v22
        v_lshlrev_b32 v22, 1, v22
        v_and_b32 v23, 3, {vr(V_L15)}
        s_lshl_b32 {sr(T0)}, {sr(S_CH)}, 3
        """)
        for n in range(4):
            e.i(f"""
            v_lshrrev_b32 v24, 1, v23
            v_add_u32 v24, {2 * n}, v24
            v_add_u32 v24, {sr(T0)}, v24
            v_xor_b32 v24, v24, v22
            v_lshl_add_u32 v24, v24, 4, v21
            v_and_b32 v25, 1, v23
            v_lshl_add_u32 {vr(V_WR2 + n)}, v25, 3, v24
            """)
        if self.c.dev:
            e.i("s_mov_b32 s38, s0")
        self.stamp("pro")

    def job_setup(self):
        e = self.e
        kap, cp, base, a1, a2 = T0, T1, T2, T3, T4
        wo, done, odd, rem = self.lab("jwo"), self.lab("jdone"), self.lab("jodd"), self.lab("jrem")
        e.i(f"""
        s_lshl_b32 {sr(cp)}, s2, 3
        s_add_u32 {sr(cp)}, {sr(cp)}, {sr(S_WV)}
        s_mul_i32 {sr(kap)}, {sr(cp)}, 6554
        s_lshr_b32 {sr(kap)}, {sr(kap)}, 16
        s_lshl_b32 {sr(S_JST)}, {sr(cp)}, 11
        s_add_u32 {sr(S_JST)}, {sr(S_JST)}, {OFF_WT}
        s_cmp_ge_u32 {sr(kap)}, 152
        s_cselect_b32 {sr(S_JST)}, {OOB}, {sr(S_JST)}
        s_mul_i32 {sr(base)}, {sr(kap)}, 10
        s_sub_u32 {sr(cp)}, {sr(cp)}, {sr(base)}
        s_cmp_ge_u32 {sr(kap)}, 112
        s_cselect_b32 {sr(R_JOB)}, {sr(P_WO)}, {sr(P_W2)}
        s_cselect_b32 {sr(R_JOB + 1)}, {sr(P_WO + 1)}, {sr(P_W2 + 1)}
        s_mov_b32 {sr(R_JOB + 2)}, {1728 * 1280}
        s_cselect_b32 {sr(R_JOB + 2)}, {640 * 1280}, {sr(R_JOB + 2)}
        s_mov_b32 {sr(R_JOB + 3)}, 0x20000
        s_cbranch_scc1 {wo}
        s_mul_i32 {sr(a1)}, {sr(kap)}, 9363
        s_lshr_b32 {sr(a1)}, {sr(a1)}, 16
        s_mul_i32 {sr(base)}, {sr(a1)}, 112
        s_mul_i32 {sr(a1)}, {sr(a1)}, 7
        s_sub_u32 {sr(kap)}, {sr(kap)}, {sr(a1)}
        s_lshr_b32 {sr(a1)}, {sr(kap)}, 1
        s_lshl_b32 {sr(a1)}, {sr(a1)}, 5
        s_add_u32 {sr(base)}, {sr(base)}, {sr(a1)}
        s_and_b32 {sr(a1)}, {sr(kap)}, 1
        s_lshl_b32 {sr(a1)}, {sr(a1)}, 3
        s_add_u32 {sr(base)}, {sr(base)}, {sr(a1)}
        s_cmp_eq_u32 {sr(kap)}, 6
        s_cselect_b32 {sr(a1)}, 8, 4
        s_cselect_b32 {sr(a2)}, 4, 16
        s_branch {done}
        """)
        e.label(wo)
        e.i(f"""
        s_sub_u32 {sr(kap)}, {sr(kap)}, 112
        s_mul_i32 {sr(a1)}, {sr(kap)}, 13108
        s_lshr_b32 {sr(a1)}, {sr(a1)}, 16
        s_mul_i32 {sr(base)}, {sr(a1)}, 80
        s_mul_i32 {sr(a1)}, {sr(a1)}, 5
        s_sub_u32 {sr(kap)}, {sr(kap)}, {sr(a1)}
        s_mul_i32 {sr(a1)}, {sr(kap)}, 20
        s_cmp_eq_u32 {sr(kap)}, 4
        s_cselect_b32 {sr(a1)}, 16, {sr(a1)}
        s_add_u32 {sr(base)}, {sr(base)}, {sr(a1)}
        s_cmp_eq_u32 {sr(kap)}, 4
        s_cselect_b32 {sr(a1)}, 40, 4
        s_cselect_b32 {sr(a2)}, 20, 8
        """)
        e.label(done)
        e.i(f"""
        v_lshrrev_b32 v21, 5, v0
        v_mul_u32_u24 v21, {sr(a2)}, v21
        v_bfe_u32 v22, v0, 3, 2
        v_add3_u32 v21, v21, v22, {sr(base)}
        v_mul_u32_u24 v21, 1280, v21
        v_and_b32 v22, 7, v0
        v_lshl_add_u32 v21, v22, 4, v21
        s_lshl_b32 {sr(cp)}, {sr(cp)}, 7
        v_add_u32 v30, {sr(cp)}, v21
        s_mul_i32 {sr(a1)}, {sr(a1)}, 1280
        v_add_u32 v31, {sr(a1)}, v30
        """)

    def reads(self, s, ksl, ntiles, buf):
        off = (s % 5) * 32768 - ((s % 5) >> 1) * 65536
        out = []
        if s < 10:
            ks = 2 * s + ksl
            for rt in range(2):
                out.append(f"ds_read_b128 {vr(xf(ks, rt), 4)}, {vr(V_XR + ksl)} offset:{off + rt * 2048}")
            wbase, wr = off + 16384, V_WR
        else:
            wbase, wr = off, V_WR2
        for n in range(ntiles):
            for q in range(2):
                out.append(f"ds_read_b64_tr_b16 {vr(V_WB[buf] + 4 * n + 2 * q, 2)}, {vr(wr + n)} "
                           f"offset:{wbase + ksl * 8192 + q * 1024}")
        return out

    def window(self, s):
        slot = s % 5
        if s in (0, 10) or slot in (1, 3):
            return []
        d = 65536 if slot in (2, 4) else -131072
        rs = [V_XR, V_XR + 1] + [V_WR + n for n in range(4)] if s < 10 else [V_WR2 + n for n in range(4)]
        return [f"v_add_u32 {vr(r)}, {d & 0xffffffff:#x}, {vr(r)}" for r in rs]

    def mfmas(self, ks, ntiles, buf, vtype, first):
        out = []
        for n in range(ntiles):
            for rt in range(2):
                w, x, d = vr(V_WB[buf] + 4 * n, 4), vr(xf(ks, rt), 4), vr(acc(n, rt), 4)
                a, b = (x, w) if vtype else (w, x)
                out.append(f"v_mfma_f32_16x16x32_bf16 {d}, {a}, {b}, {'0' if first else d}")
        return out

    def unit(self, mf, rd, extra):
        e = self.e
        rd, extra = list(rd), list(extra)
        if not mf:
            for r in rd:
                e.lds(r, "rd")
            for x in extra:
                x()
            return
        for k, m in enumerate(mf):
            for _ in range(2):
                if rd:
                    e.lds(rd.pop(0), "rd")
            e.i(m)
            if extra and (not rd or k >= 3):
                extra.pop(0)()
        for r in rd:
            e.lds(r, "rd")
        for x in extra:
            x()

    def vm(self, txt, tag):
        return lambda: self.e.vmem(txt, tag)

    def ii(self, txt):
        return lambda: self.e.i(txt)

    def stage_sync(self, s, vmtags=()):
        e = self.e
        for w in self.window(s):
            e.i(w)
        e.wait(vm=[f"st{s}"] + list(vmtags), lg="all")
        e.i("s_barrier")
        self.stamp(f"b{s}")

    def pass1(self, vtype):
        e = self.e
        if vtype:
            for n in range(4):
                e.i(f"v_mov_b32 {vr(V_WR + n)}, {vr(V_WR2 + n)}")
        else:
            for n in range(4):
                e.i(f"""
                v_add_u32 v24, {4 * (n >> 1)}, v23
                v_add_u32 v24, {sr(T0)}, v24
                v_xor_b32 v24, v24, v22
                v_lshl_add_u32 v24, v24, 4, v21
                v_lshrrev_b32 v25, 1, v23
                v_xor_b32 v25, {n & 1}, v25
                v_lshl_add_u32 {vr(V_WR + n)}, v25, 3, v24
                """)
        self.epi1_addr(vtype)
        prev = []
        for s in range(10):
            for ksl in range(2):
                extra = []
                if ksl == 0:
                    self.stage_sync(s)
                    if s == 0:
                        self.publish_init()
                    else:
                        extra = [self.vm(t, g) for t, g in self.dma_stage(s + 4)]
                else:
                    e.wait(lg="all")
                if s == 8 and ksl == 1:
                    extra += self.bias_loads()
                self.unit(prev, self.reads(s, ksl, 4, ksl), extra)
                prev = self.mfmas(2 * s + ksl, 4, ksl, vtype, s == 0 and ksl == 0)
        self.stage_sync(10)
        self.unit(prev, self.reads(10, 0, 4, 0), [])
        self.stamp("p1end")
        self.epi1(vtype)
        self.stamp("e1end")
        for t, g in self.dma_stage(14):
            e.vmem(t, g)

    def publish_init(self):
        e = self.e
        skip = self.lab("nopub")
        e.i(f"""
        s_lshl_b32 {sr(T0)}, s2, 3
        s_add_u32 {sr(T0)}, {sr(T0)}, {sr(S_WV)}
        s_cmp_lg_u32 {sr(T0)}, 7
        s_cbranch_scc1 {skip}
        v_mov_b32 v25, 1
        s_mov_b64 exec, 1
        buffer_store_dword v25, off, {sr(R_DBG, 4)}, 0 sc1
        s_mov_b64 exec, -1
        """)
        e.label(skip)

    def bias_loads(self):
        out = [self.ii(f"""
        s_mul_i32 {sr(T1)}, {sr(S_CG)}, 224
        s_lshl_b32 {sr(T2)}, {sr(S_CH)}, 7
        s_add_u32 {sr(T1)}, {sr(T1)}, {sr(T2)}
        v_lshlrev_b32 v21, 3, {vr(V_G4)}
        """)]
        regs = (22, 24, 26, 28)
        for n in range(4):
            out.append(self.vm(f"buffer_load_dwordx2 {vr(regs[n], 2)}, v21, {sr(R_B1, 4)}, {sr(T1)} offen offset:{32 * n}",
                               "bias"))
        out.append(self.vm(f"buffer_load_dword v2, off, {sr(R_DBG, 4)}, 0 sc1", "dbg"))
        return out

    def epi1_addr(self, vtype):
        e = self.e
        if vtype:
            e.i(f"""
            s_lshl_b32 {sr(T1)}, {sr(S_GAM)}, 7
            s_lshl_b32 {sr(T2)}, {sr(S_CH)}, 6
            s_add_u32 {sr(T1)}, {sr(T1)}, {sr(T2)}
            s_mov_b32 {sr(T2)}, {64 * 2560}
            v_mul_u32_u24 v26, 320, {vr(V_G4)}
            """)
            for n in range(4):
                e.i(f"""
                v_add3_u32 v24, {vr(V_L15)}, {sr(T1)}, {16 * n}
                v_mul_u32_u24 v25, 3277, v24
                v_lshrrev_b32 v25, 16, v25
                v_mul_u32_u24 v27, 20, v25
                v_sub_u32 v24, v24, v27
                v_mul_u32_u24 v25, {sr(T2)}, v25
                v_lshl_add_u32 v24, v24, 4, v25
                v_add_u32 {vr(V_ST + n)}, v24, v26
                """)
            e.i(f"""
            s_mul_i32 {sr(T1)}, {sr(S_BLK)}, 2560
            s_add_u32 {sr(S_EPI)}, {sr(T1)}, {OFF_KV + 1280}
            s_cmp_eq_u32 {sr(S_CG)}, 15
            s_cselect_b32 {sr(S_EPI)}, {OOB}, {sr(S_EPI)}
            """)
            return
        e.i(f"""
        s_lshl_b32 {sr(T1)}, {sr(S_GAM)}, 4
        s_lshl_b32 {sr(T2)}, {sr(S_CH)}, 3
        s_add_u32 {sr(T1)}, {sr(T1)}, {sr(T2)}
        s_lshl_b32 {sr(T3)}, 1280, {sr(S_SEC)}
        s_lshl_b32 {sr(T2)}, {sr(T3)}, 6
        s_mul_i32 {sr(T3)}, {sr(T3)}, {sr(S_BLK)}
        s_cmp_eq_u32 {sr(S_SEC)}, 0
        s_mov_b32 {sr(T4)}, {OFF_KV}
        s_cselect_b32 {sr(T4)}, {OFF_Q}, {sr(T4)}
        s_cselect_b32 {sr(S_SCALE)}, {f32(math.log2(math.e) / math.sqrt(20.0))}, 1.0
        s_add_u32 {sr(S_EPI)}, {sr(T3)}, {sr(T4)}
        """)
        for p in range(2):
            mask = (S_MA, S_MB)[p]
            e.i(f"""
            v_add3_u32 v24, {vr(V_G4)}, {sr(T1)}, {4 * p}
            v_mul_u32_u24 v25, 205, v24
            v_lshrrev_b32 v25, 10, v25
            v_mul_u32_u24 v26, 5, v25
            v_sub_u32 v26, v24, v26
            v_cmp_eq_u32 {sr(mask, 2)}, 2, v26
            v_cmp_lt_u32 vcc, 2, v26
            v_lshrrev_b32 v27, 1, {vr(V_G4)}
            v_subrev_u32 v28, 3, v26
            v_cndmask_b32 v26, v26, v28, vcc
            v_cndmask_b32 v28, 0, 1, vcc
            v_lshlrev_b32 v26, 9, v26
            v_lshl_add_u32 v26, {vr(V_L15)}, 4, v26
            v_cndmask_b32 v29, v28, v27, {sr(mask, 2)}
            v_lshl_add_u32 v29, v25, 1, v29
            v_mul_lo_u32 v29, v29, {sr(T2)}
            v_add_u32 {vr(V_ST + 2 * p)}, v29, v26
            v_xor_b32 v27, 1, v27
            v_cndmask_b32 v29, v28, v27, {sr(mask, 2)}
            v_lshl_add_u32 v29, v25, 1, v29
            v_mul_lo_u32 v29, v29, {sr(T2)}
            v_mov_b32 v27, 256
            v_cndmask_b32 v27, v27, 0, {sr(mask, 2)}
            v_add3_u32 {vr(V_ST + 2 * p + 1)}, v29, v26, v27
            """)

    def epi1(self, vtype):
        e = self.e
        pk = V_WB[1]
        e.i("s_nop 7")
        if vtype:
            for n in range(4):
                for rt in range(2):
                    for h in range(2):
                        a = acc(n, rt) + 2 * h
                        e.i(f"v_cvt_pk_bf16_f32 {vr(pk + 4 * n + 2 * rt + h)}, {vr(a)}, {vr(a + 1)}")
                e.vmem(f"buffer_store_dwordx4 {vr(pk + 4 * n, 4)}, {vr(V_ST + n)}, {sr(R_WS, 4)}, {sr(S_EPI)} offen sc1",
                       "e1")
        else:
            for p in range(2):
                for k in range(16):
                    r = acc(2 * p, 0) + k
                    e.i(f"v_mul_f32 {vr(r)}, {sr(S_SCALE)}, {vr(r)}")
                for rt in range(2):
                    for ab in range(2):
                        for h in range(2):
                            a = acc(2 * p + ab, rt) + 2 * h
                            e.i(f"v_cvt_pk_bf16_f32 {vr(pk + 8 * p + 4 * rt + 2 * ab + h)}, {vr(a)}, {vr(a + 1)}")
                b = pk + 8 * p
                e.i(f"""
                s_mov_b64 exec, {sr((S_MA, S_MB)[p], 2)}
                v_swap_b32 {vr(b + 2)}, {vr(b + 4)}
                v_swap_b32 {vr(b + 3)}, {vr(b + 5)}
                s_mov_b64 exec, -1
                """)
                for k in range(2):
                    e.vmem(f"buffer_store_dwordx4 {vr(b + 4 * k, 4)}, {vr(V_ST + 2 * p + k)}, {sr(R_WS, 4)}, "
                           f"{sr(S_EPI)} offen sc1", "e1")
        e.wait(vm="bias")
        for n, r in enumerate((22, 24, 26, 28)):
            for h in range(2):
                for rt in range(2):
                    e.i(f"v_lshlrev_b32 {vr(acc(n, rt) + 2 * h)}, 16, {vr(r + h)}")
                    e.i(f"v_and_b32 {vr(acc(n, rt) + 2 * h + 1)}, 0xffff0000, {vr(r + h)}")

    def side_issue(self):
        out = [self.ii(f"""
        s_lshl_b32 {sr(T1)}, {sr(S_RB)}, 4
        s_add_u32 {sr(T1)}, {sr(T1)}, {sr(S_CG)}
        s_lshl_b32 {sr(T1)}, {sr(T1)}, 3
        s_add_u32 {sr(T1)}, {sr(T1)}, {sr(S_WV)}
        s_mul_i32 {sr(T1)}, {sr(T1)}, 1280
        v_lshlrev_b32 v21, 2, v0
        v_lshlrev_b32 v22, 4, v0
        v_mov_b32 v116, -1
        v_mov_b32 v117, -1
        v_mov_b32 v118, -1
        v_mov_b32 v119, -1
        """)]
        for h in range(2):
            out.append(self.vm(f"s_add_u32 m0, {sr(S_M0)}, {h * 1024}\ns_nop 0\n"
                               f"buffer_load_dwordx4 {vr(30 + h)}, {sr(R_JOB, 4)}, 0 offen lds", "job"))
        for i in range(5):
            out.append(self.vm(f"buffer_load_dword {vr(96 + i)}, v21, {sr(R_X, 4)}, {sr(T1)} offen offset:{256 * i}", "gate"))
            out.append(self.vm(f"buffer_load_dword {vr(101 + i)}, v21, {sr(R_GW, 4)}, 0 offen offset:{256 * i}", "gate"))
        out.append(self.vm(f"buffer_store_dwordx4 v[116:119], v22, {sr(R_WS, 4)}, {sr(S_OBLK)} offen sc1", "sent"))
        out.append(self.vm(f"buffer_store_dword v116, v21, {sr(R_WS, 4)}, {sr(S_OBLK)} offen offset:1024 sc1", "sent"))
        return out

    def flag_store(self, val, check_init):
        e = self.e
        skip = self.lab("nofl")
        e.i(f"s_cmp_lg_u32 {sr(S_WV)}, 0\ns_cbranch_scc1 {skip}")
        if check_init:
            ok, lp = self.lab("iok"), self.lab("ilp")
            e.i(f"v_readfirstlane_b32 {sr(T1)}, v2\ns_cmp_eq_u32 {sr(T1)}, 0\ns_cbranch_scc1 {lp}")
            e.label(ok)
            self.cold.append(f"""
            {lp}:
            s_mov_b32 {sr(S_SPIN)}, {SPIN}
            {lp}_a:
            buffer_load_dword v2, off, {sr(R_DBG, 4)}, 0 sc1
            s_waitcnt vmcnt(0)
            v_readfirstlane_b32 {sr(T1)}, v2
            s_cmp_lg_u32 {sr(T1)}, 0
            s_cbranch_scc1 {ok}
            s_sleep 8
            s_sub_u32 {sr(S_SPIN)}, {sr(S_SPIN)}, 1
            s_cmp_lg_u32 {sr(S_SPIN)}, 0
            s_cbranch_scc1 {lp}_a
            s_branch {ok}
            """)
        e.i(f"""
        s_lshl_b32 {sr(T1)}, {sr(S_CG)}, 4
        s_add_u32 {sr(T1)}, {sr(T1)}, {sr(S_RB)}
        s_lshl_b32 {sr(T1)}, {sr(T1)}, 7
        v_mov_b32 v1, {val}
        s_mov_b64 exec, 1
        buffer_store_dword v1, off, {sr(R_WS, 4)}, {sr(T1)} sc1
        s_mov_b64 exec, -1
        """)
        e.label(skip)

    def side_job_read(self):
        e = self.e

        def f():
            e.wait(vm="job")
            e.i(f"""
            v_lshrrev_b32 v23, 5, v0
            v_lshlrev_b32 v23, 10, v23
            v_bfe_u32 v24, v0, 2, 2
            v_lshl_add_u32 v23, v24, 7, v23
            v_and_b32 v24, 1, {vr(V_G4)}
            v_lshl_add_u32 v23, v24, 5, v23
            v_and_b32 v24, 3, v0
            v_lshl_add_u32 v23, v24, 3, v23
            v_add_u32 v23, {sr(S_M0)}, v23
            """)
            for ph in range(2):
                for q in range(2):
                    e.lds(f"ds_read_b64_tr_b16 {vr(108 + 4 * ph + 2 * q, 2)}, v23 offset:{q * 512 + ph * 64}", "jr")
        return [f]

    def side_job_store(self):
        return [self.vm(f"buffer_store_dwordx4 {vr(108 + 4 * ph, 4)}, v22, {sr(R_WS, 4)}, {sr(S_JST)} offen offset:{1024 * ph} sc1",
                        "js") for ph in range(2)]

    def side_gate(self):
        e = self.e

        def a():
            e.wait(vm="gate")
            e.i("v_dot2_f32_bf16 v23, v96, v101, 0")
            for i in range(1, 5):
                e.i(f"v_dot2_f32_bf16 v23, {vr(96 + i)}, {vr(101 + i)}, v23")
            e.i("s_nop 2")
            for sh in (8, 4, 2, 1):
                e.i(f"v_add_f32_dpp v23, v23, v23 row_ror:{sh} row_mask:0xf bank_mask:0xf\ns_nop 1")

        def b():
            e.i(f"""
            v_readlane_b32 {sr(T1)}, v23, 16
            v_readlane_b32 {sr(T2)}, v23, 32
            v_readlane_b32 {sr(T3)}, v23, 48
            v_add_f32 v23, {sr(T1)}, v23
            v_add_f32 v23, {sr(T2)}, v23
            v_add_f32 v23, {sr(T3)}, v23
            v_mul_f32 v23, {f32(-math.log2(math.e))}, v23
            v_exp_f32 v23, v23
            s_lshl_b32 {sr(T1)}, {sr(S_RB)}, 4
            v_add_f32 v23, 1.0, v23
            v_rcp_f32 v23, v23
            s_add_u32 {sr(T1)}, {sr(T1)}, {sr(S_CG)}
            s_lshl_b32 {sr(T1)}, {sr(T1)}, 7
            s_lshl_b32 {sr(T2)}, {sr(S_WV)}, 2
            s_add_u32 {sr(T1)}, {sr(T1)}, {sr(T2)}
            s_add_u32 {sr(T1)}, {sr(T1)}, {OFF_G}
            s_mov_b64 exec, 1
            """)
            e.vmem(f"buffer_store_dword v23, off, {sr(R_WS, 4)}, {sr(T1)} sc1", "gs")
            e.i("s_mov_b64 exec, -1")
        return [a, b]

    def poll(self, vaddr, vdat, val, nlanes, tag):
        e = self.e
        mask = (1 << nlanes) - 1
        setx = "s_mov_b32 exec_hi, 0" if nlanes == 32 else f"s_mov_b64 exec, {mask:#x}"

        def issue():
            e.i(setx)
            e.vmem(f"buffer_load_dword {vr(vdat)}, {vr(vaddr)}, {sr(R_WS, 4)}, 0 offen sc1", tag)
            e.i("s_mov_b64 exec, -1")

        def check():
            ok, lp = self.lab("pok"), self.lab("plp")
            e.wait(vm=tag)
            e.i(f"""
            v_cmp_gt_u32 vcc, {val}, {vr(vdat)}
            s_and_b32 {sr(T1)}, vcc_lo, {mask:#x}
            s_cbranch_scc1 {lp}
            """)
            e.label(ok)
            self.cold.append(f"""
            {lp}:
            s_mov_b32 {sr(S_SPIN)}, {SPIN}
            {lp}_a:
            {setx}
            buffer_load_dword {vr(vdat)}, {vr(vaddr)}, {sr(R_WS, 4)}, 0 offen sc1
            s_mov_b64 exec, -1
            s_waitcnt vmcnt(0)
            v_cmp_gt_u32 vcc, {val}, {vr(vdat)}
            s_and_b32 {sr(T1)}, vcc_lo, {mask:#x}
            s_cbranch_scc0 {ok}
            s_sub_u32 {sr(S_SPIN)}, {sr(S_SPIN)}, 1
            s_cmp_lg_u32 {sr(S_SPIN)}, 0
            s_cbranch_scc1 {lp}_a
            s_branch {ok}
            """)
        return issue, check

    def poll1_addr(self):
        return self.ii(f"""
        s_mul_i32 {sr(T1)}, {sr(S_HD)}, 20
        v_and_b32 v23, 1, v0
        v_mul_u32_u24 v23, 19, v23
        v_add_u32 v23, {sr(T1)}, v23
        v_lshrrev_b32 v23, 7, v23
        v_lshrrev_b32 v24, 2, v0
        v_mul_u32_u24 v25, 5, v24
        v_add_u32 v23, v23, v25
        v_bfe_u32 v25, v0, 1, 1
        v_lshlrev_b32 v25, 3, v25
        v_add_u32 v25, {sr(S_WV)}, v25
        s_lshr_b32 {sr(T1)}, {sr(S_RTQ)}, 2
        v_cmp_eq_u32 vcc, 0, v24
        v_mov_b32 v24, {sr(T1)}
        s_nop 0
        v_cndmask_b32 v25, v25, v24, vcc
        v_lshl_add_u32 v23, v23, 4, v25
        v_lshlrev_b32 {vr(A_P)}, 7, v23
        """)

    def kv_dma(self, half):
        out = []
        for i in range(10):
            o = half * 81920 + i * 1024
            out.append(self.vm(f"s_mul_i32 {sr(T2)}, {sr(S_WV)}, 10240\ns_add_u32 m0, {sr(T2)}, {o}\n"
                               f"s_add_u32 {sr(T2)}, {sr(S_KVB)}, {o}\n"
                               f"buffer_load_dwordx4 {vr(A_L16)}, {sr(R_WS, 4)}, {sr(T2)} offen sc1 lds", f"kv{half}"))
        return out

    def att_setup(self):
        e = self.e

        def a():
            e.i(f"""
            v_lshlrev_b32 {vr(A_L16)}, 4, v0
            v_lshrrev_b32 v23, 5, v0
            v_bfe_u32 v24, v0, 3, 2
            v_and_b32 v25, 3, v0
            v_lshl_add_u32 v24, v24, 2, v25
            v_bfe_u32 v25, v0, 2, 1
            v_lshlrev_b32 v26, 9, v23
            v_lshl_add_u32 v26, v25, 8, v26
            v_lshl_add_u32 {vr(A_AK)}, v24, 4, v26
            v_mul_u32_u24 v26, 2560, v23
            v_lshl_add_u32 v26, v24, 4, v26
            v_lshl_add_u32 {vr(A_AKR)}, v25, 3, v26
            v_and_b32 v24, 31, v0
            v_mul_u32_u24 v26, 320, v23
            v_lshl_add_u32 {vr(A_AV)}, v24, 4, v26
            v_mov_b32 {vr(A_IDX)}, 0xdddddddd
            """)

        def b():
            for r in range(A_VLO, A_VLO + 12):
                e.i(f"v_mov_b32 {vr(r)}, 0x3f803f80")

        def c():
            for r in range(A_O, A_O + 16):
                e.i(f"v_mov_b32 {vr(r)}, 0")
        return [a, b, c]

    def q_loads(self):
        e = self.e

        def f():
            e.i(f"""
            s_lshl_b32 {sr(T1)}, {sr(S_HD)}, 6
            s_add_u32 {sr(T1)}, {sr(T1)}, {sr(S_RTQ)}
            s_mul_i32 {sr(T1)}, {sr(T1)}, 1280
            s_add_u32 {sr(T1)}, {sr(T1)}, {OFF_Q}
            v_bfe_u32 v23, v0, 4, 1
            v_lshlrev_b32 v23, 3, v23
            v_lshl_add_u32 v23, {vr(V_L15)}, 4, v23
            """)
            e.vmem(f"buffer_load_dwordx4 {vr(A_QM, 4)}, {vr(A_L16)}, {sr(R_WS, 4)}, {sr(T1)} offen sc1", "q")
            e.vmem(f"buffer_load_dwordx2 {vr(A_QLO, 2)}, v23, {sr(R_WS, 4)}, {sr(T1)} offen offset:1024 sc1", "q")
        return [f]

    def pass2(self, ch):
        e = self.e
        nt = 3 if ch else 4
        p_issue, p_check = self.poll(A_P, A_P + 1, 1, 12, "p1")
        prev = self.mfmas(0, nt, 0, False, False)
        for u in range(1, 20):
            s, ksl = 10 + (u >> 2), u & 3
            extra = []
            if ksl == 0:
                self.stage_sync(s, ["e1", "dbg"] if s == 12 else [])
                if s == 12:
                    self.flag_store(1, True)
            else:
                e.wait(lg="all")
            if u == 5:
                extra = self.side_issue()
            if u == 10:
                extra = self.side_job_read()
            if u == 11:
                extra = self.side_job_store()
            if u == 12:
                extra = self.side_gate()
            if u == 13:
                extra = [self.poll1_addr()]
            if u == 14:
                extra = self.att_setup()
            if u == 15:
                extra = [p_issue]
            if u == 18:
                extra = [lambda: self.stamp("u18"), p_check, lambda: self.stamp("chk1")] + self.q_loads() + self.kv_dma(0)
            self.unit(prev, self.reads(s, ksl, nt, u & 1), extra)
            prev = self.mfmas(u, nt, u & 1, False, False)
        e.wait(lg="all")
        e.i("s_barrier")
        self.unit(prev, [], self.kv_dma(1))
        self.stamp("p2end")
        e.i(f"""
        v_lshlrev_b32 v23, 9, {vr(V_G4)}
        v_lshl_add_u32 v23, {vr(V_L15)}, 4, v23
        v_lshrrev_b32 v24, 1, {vr(V_G4)}
        v_lshlrev_b32 v24, 9, v24
        v_lshl_add_u32 v24, {vr(V_L15)}, 4, v24
        v_and_b32 v25, 1, {vr(V_G4)}
        v_lshl_add_u32 v24, v25, 3, v24
        s_nop 0
        """)
        pk = V_WB[0]
        for p in range(2):
            tiles = [n for n in (2 * p, 2 * p + 1) if n < nt]
            for n in tiles:
                for k in range(8):
                    r = acc(n, 0) + k
                    e.i(f"v_max_f32 {vr(r)}, 0, {vr(r)}")
                for k in range(8):
                    r = acc(n, 0) + k
                    e.i(f"v_mul_f32 {vr(r)}, {vr(r)}, {vr(r)}")
            for rt in range(2):
                b = pk + 8 * p + 4 * rt
                for ab, n in enumerate(tiles):
                    for h in range(2):
                        a = acc(n, rt) + 2 * h
                        e.i(f"v_cvt_pk_bf16_f32 {vr(b + 2 * ab + h)}, {vr(a)}, {vr(a + 1)}")
                if len(tiles) == 2:
                    e.vmem(f"buffer_store_dwordx4 {vr(b, 4)}, v23, {sr(R_WS, 4)}, {sr(S_HST)} offen "
                           f"offset:{2048 * p + 256 * rt} sc1", "hs")
                else:
                    e.vmem(f"buffer_store_dwordx2 {vr(b, 2)}, v24, {sr(R_WS, 4)}, {sr(S_HST)} offen "
                           f"offset:{2048 * p + 256 * rt} sc1", "hs")

    def lds_off(self, reg, off):
        base = self.win[reg]
        while off - base > 65535 - 2560:
            base += 61440
            self.e.i(f"v_add_u32 {vr(reg)}, 61440, {vr(reg)}")
        self.win[reg] = base
        return off - base

    def rd_k(self, t):
        if t < 64:
            o = self.lds_off(A_AK, t * 2560)
            self.e.lds(f"ds_read_b128 {vr(A_KM, 4)}, {vr(A_AK)} offset:{o}", f"k{t}")

    def rd_kr(self, t):
        if t < 64:
            o = self.lds_off(A_AKR, t * 2560)
            self.e.lds(f"ds_read_b64 {vr(A_KR, 2)}, {vr(A_AKR)} offset:{o + 1024}", f"r{t}")

    def rd_v(self, t):
        if t < 64:
            e = self.e
            o = self.lds_off(A_AV, t * 2560)
            e.i(f"s_mov_b64 exec, {sr(S_VMASK, 2)}")
            e.lds(f"ds_read_b128 {vr(A_VLO, 4)}, {vr(A_AV)} offset:{o + 1280}", f"vl{t}")
            e.lds(f"ds_read_b128 {vr(A_VHI[t & 1], 4)}, {vr(A_AV)} offset:{o + 1920}", f"vh{t}")
            e.i("s_mov_b64 exec, -1")

    def qk1(self, t):
        self.e.wait(lg=f"k{t}")
        self.e.i(f"v_mfma_f32_32x32x16_bf16 {vr(A_S[t & 1], 16)}, {vr(A_KM, 4)}, {vr(A_QM, 4)}, 0")
        self.rd_k(t + 1)

    def qk2(self, t):
        self.e.wait(lg=f"r{t & ~1}")
        s = vr(A_S[t & 1], 16)
        self.e.i(f"v_mfma_f32_32x32x8_bf16 {s}, {vr(A_KR, 2)}, {vr((A_QLO, A_QHI)[t & 1], 2)}, {s}")
        if t & 1:
            self.rd_kr(t + 1)

    def pvlo(self, t):
        self.e.wait(lg=f"vl{t}")
        self.e.i(f"v_smfmac_f32_32x32x32_bf16 {vr(A_O, 16)}, {vr(A_VLO, 4)}, {vr(A_S[t & 1], 8)}, {vr(A_IDX)}")
        self.rd_v(t + 1)

    def pvhi(self, t):
        self.e.wait(lg=f"vh{t}")
        self.e.i(f"v_smfmac_f32_32x32x32_bf16 {vr(A_O, 16)}, {vr(A_VHI[t & 1], 4)}, {vr(A_S[t & 1] + 8, 8)}, {vr(A_IDX)}")

    def ring_h(self, i):
        return A_RING + (i % NB) * 24

    def ring_w(self, i, n):
        if i >= 14 + NB:
            return [[152, 156, 160, 164, 168], [172, 176, 180, 116, 120]][i - 14 - NB][n]
        return A_RING + (i % NB) * 24 + 4 + 4 * n

    def ld_w(self, i, n):
        e = self.e
        if i < 14:
            e.i(f"s_add_u32 {sr(T2)}, {sr(S_WB)}, {i * 20480 + n * 1024}")
        else:
            e.i(f"s_add_u32 {sr(T2)}, {sr(S_EPI)}, {(i - 14) * 20480 + n * 1024}")
        e.vmem(f"buffer_load_dwordx4 {vr(self.ring_w(i, n), 4)}, {vr(A_L16)}, {sr(R_WS, 4)}, {sr(T2)} offen sc1", f"w{i}_{n}")

    def ld_h(self, i):
        e = self.e
        e.i(f"s_add_u32 {sr(T2)}, {sr(S_HB)}, {i * 1024}")
        e.vmem(f"buffer_load_dwordx4 {vr(self.ring_h(i), 4)}, {vr(A_L16)}, {sr(R_WS, 4)}, {sr(T2)} offen sc1", f"h{i}")

    def ffn_mfma(self, i, n):
        e = self.e
        e.wait(vm=[f"w{i}_{n}", f"h{i}"])
        d = vr(A_FACC + 16 * n, 16)
        e.i(f"v_mfma_f32_32x32x16_bf16 {d}, {vr(self.ring_w(i, n), 4)}, {vr(self.ring_h(i), 4)}, {'0' if i == 0 else d}")
        self.ld_w(i + NB, n)
        if n == 4 and i + NB < 14:
            self.ld_h(i + NB)

    def attention(self):
        e, c = self.e, self.c
        self.win = {A_AK: 0, A_AKR: 0, A_AV: 0}
        p_issue, p_check = self.poll(A_P, A_P + 1, 2, 32, "p2")
        e.i(f"""
        s_lshl_b32 {sr(T1)}, {sr(S_WV)}, 12
        v_lshlrev_b32 {vr(A_P)}, 7, v0
        v_add_u32 {vr(A_P)}, {sr(T1)}, {vr(A_P)}
        s_mul_i32 {sr(T1)}, {sr(S_WV)}, 100
        s_mul_i32 {sr(T2)}, {sr(S_CT)}, 5
        s_add_u32 {sr(T1)}, {sr(T1)}, {sr(T2)}
        s_lshl_b32 {sr(T1)}, {sr(T1)}, 10
        s_add_u32 {sr(S_EPI)}, {sr(T1)}, {OFF_WT + 112 * 20480}
        """)
        e.wait(vm=["kv0", "q"])
        e.i(f"""
        v_mov_b32 {vr(A_QHI)}, {vr(A_QLO)}
        v_mov_b32 {vr(A_QHI + 1)}, {vr(A_QLO + 1)}
        s_mov_b32 exec_hi, 0
        v_mov_b32 {vr(A_QHI)}, 0
        v_mov_b32 {vr(A_QHI + 1)}, 0
        s_not_b64 exec, exec
        v_mov_b32 {vr(A_QLO)}, 0
        v_mov_b32 {vr(A_QLO + 1)}, 0
        s_mov_b64 exec, -1
        s_barrier
        """)
        self.stamp("att0")
        self.rd_k(0)
        self.rd_kr(0)
        self.rd_v(0)
        self.qk1(0)
        self.qk2(0)
        e.i("s_nop 11")
        ffn = [(i, n) for i in range(14) for n in range(5)]
        nemb = c.ffn_end - c.ffn_start
        done = 0
        for t in range(64):
            nf = 0
            if c.ffn_start <= t < c.ffn_end:
                nf = min(2, (70 * (t - c.ffn_start + 1) + nemb - 1) // nemb - done)
            fs = ffn[done:done + nf]
            done += nf
            if t == c.t_flag2:
                self.stamp("fl2a")
                e.wait(vm="all")
                e.i("s_barrier")
                self.stamp("fl2b")
                self.flag_store(2, False)
            if t == c.t_poll2:
                p_issue()
            if t == c.t_chk2:
                self.stamp("chk2a")
                p_check()
                e.i("s_barrier")
                self.stamp("chk2")
                self.after_flags2()
            self.stamp(f"t{t}")
            self.tile(t, fs)
        e.i("s_nop 1")
        self.pvhi(63)
        self.stamp("attend")
        for i, n in ffn[done:]:
            self.ffn_mfma(i, n)

    def after_flags2(self):
        e = self.e
        for i in range(NB):
            self.ld_h(i)
            for n in range(5):
                self.ld_w(i, n)
        e.i(f"""
        v_bfe_u32 {vr(A_T)}, v0, 3, 2
        v_and_b32 {vr(A_T + 1)}, 7, v0
        v_lshlrev_b32 {vr(A_T + 1)}, 2, {vr(A_T + 1)}
        v_lshl_add_u32 {vr(A_T)}, {vr(A_T)}, 7, {vr(A_T + 1)}
        s_lshl_b32 {sr(T1)}, {sr(S_RTQ)}, 9
        s_add_u32 {sr(T1)}, {sr(T1)}, {OFF_G}
        s_lshl_b32 {sr(T2)}, {sr(S_RT)}, 9
        s_add_u32 {sr(T2)}, {sr(T2)}, {OFF_G}
        """)
        e.vmem(f"buffer_load_dword {vr(A_GA)}, {vr(A_T)}, {sr(R_WS, 4)}, {sr(T1)} offen sc1", "g")
        e.vmem(f"buffer_load_dword {vr(A_GF)}, {vr(A_T)}, {sr(R_WS, 4)}, {sr(T2)} offen sc1", "g")

    def tile(self, t, fs):
        e = self.e
        x = A_S[t & 1]
        slots = {0: {2: "hi", 6: "q1", 10: "q2", 14: "lo"},
                 1: {2: "hi", 5: "q1", 9: "q2", 12: "lo", 15: "f"},
                 2: {2: "hi", 4: "q1", 7: "f", 10: "q2", 13: "lo", 15: "f"}}[len(fs)]
        fs = list(fs)
        for k in range(16):
            op = slots.get(k)
            if op == "hi" and t > 0:
                self.pvhi(t - 1)
            elif op == "q1" and t < 63:
                self.qk1(t + 1)
            elif op == "q2" and t < 63:
                self.qk2(t + 1)
            elif op == "lo":
                self.pvlo(t)
            elif op == "f":
                self.ffn_mfma(*fs.pop(0))
            e.i(f"v_exp_f32 {vr(x + k)}, {vr(x + k)}")
            if k in (11, 12):
                e.i("s_nop 0")

    def fallback(self, back):
        x, m = A_S[0], A_S[1]
        L = []
        A = L.append
        A(f"""
        L_fb:
        v_add_u32 {vr(A_AK)}, {(-self.win[A_AK]) & 0xffffffff:#x}, {vr(A_AK)}
        v_add_u32 {vr(A_AKR)}, {(-self.win[A_AKR]) & 0xffffffff:#x}, {vr(A_AKR)}
        v_add_u32 {vr(A_AV)}, {(-self.win[A_AV]) & 0xffffffff:#x}, {vr(A_AV)}
        v_mov_b32 {vr(m)}, 0xff800000
        """)
        for ps in range(2):
            A(f"s_mov_b32 {sr(T1)}, 0\nL_fb{ps}:")
            for par in range(2):
                A(f"""
                ds_read_b128 {vr(A_KM, 4)}, {vr(A_AK)} offset:{par * 2560}
                ds_read_b64 {vr(A_KR, 2)}, {vr(A_AKR)} offset:1024
                """)
                if ps:
                    A(f"""
                    s_mov_b64 exec, {sr(S_VMASK, 2)}
                    ds_read_b128 {vr(A_VLO, 4)}, {vr(A_AV)} offset:{par * 2560 + 1280}
                    ds_read_b128 {vr(A_VHI[0], 4)}, {vr(A_AV)} offset:{par * 2560 + 1920}
                    s_mov_b64 exec, -1
                    """)
                A(f"""
                s_waitcnt lgkmcnt(0)
                v_mfma_f32_32x32x16_bf16 {vr(x, 16)}, {vr(A_KM, 4)}, {vr(A_QM, 4)}, 0
                v_mfma_f32_32x32x8_bf16 {vr(x, 16)}, {vr(A_KR, 2)}, {vr((A_QLO, A_QHI)[par], 2)}, {vr(x, 16)}
                s_nop 11
                """)
                if ps == 0:
                    for k in range(0, 16, 2):
                        A(f"v_max3_f32 {vr(m)}, {vr(m)}, {vr(x + k)}, {vr(x + k + 1)}")
                else:
                    for k in range(16):
                        A(f"v_sub_f32 {vr(x + k)}, {vr(x + k)}, {vr(m)}\nv_exp_f32 {vr(x + k)}, {vr(x + k)}")
                    A(f"""
                    s_nop 1
                    v_smfmac_f32_32x32x32_bf16 {vr(A_O, 16)}, {vr(A_VLO, 4)}, {vr(x, 8)}, {vr(A_IDX)}
                    v_smfmac_f32_32x32x32_bf16 {vr(A_O, 16)}, {vr(A_VHI[0], 4)}, {vr(x + 8, 8)}, {vr(A_IDX)}
                    s_nop 7
                    """)
            A(f"""
            v_add_u32 {vr(A_AK)}, 5120, {vr(A_AK)}
            v_add_u32 {vr(A_AKR)}, 5120, {vr(A_AKR)}
            """)
            if ps:
                A(f"v_add_u32 {vr(A_AV)}, 5120, {vr(A_AV)}")
            A(f"""
            s_add_u32 {sr(T1)}, {sr(T1)}, 1
            s_cmp_lt_u32 {sr(T1)}, 32
            s_cbranch_scc1 L_fb{ps}
            """)
            if ps == 0:
                A(f"""
                v_mov_b32 {vr(m + 1)}, {vr(m)}
                v_add_u32 {vr(A_AK)}, {(-163840) & 0xffffffff:#x}, {vr(A_AK)}
                v_add_u32 {vr(A_AKR)}, {(-163840) & 0xffffffff:#x}, {vr(A_AKR)}
                v_permlane32_swap_b32 {vr(m)}, {vr(m + 1)}
                s_nop 1
                v_max_f32 {vr(m)}, {vr(m)}, {vr(m + 1)}
                """)
                for r in range(A_O, A_O + 16):
                    A(f"v_mov_b32 {vr(r)}, 0")
        A(f"s_nop 7\ns_branch {back}")
        self.cold.append("\n".join(L))

    def tail(self):
        e, c = self.e, self.c
        o, t0 = A_O, A_T
        back = "L_fb_back"
        e.i("s_nop 11")
        e.i(f"v_mov_b32 {vr(t0)}, {vr(o + 12)}")
        for k in range(12):
            e.i(f"v_fma_f32 {vr(t0)}, {vr(o + k)}, 0, {vr(t0)}")
        lo, hi = (2.0 ** 40, 2.0 ** -20) if c.force_fallback else (2.0 ** -20, 2.0 ** 40)
        e.i(f"""
        v_cmp_nle_f32 vcc, {f32(lo)}, {vr(t0)}
        s_mov_b64 {sr(S_MA, 2)}, vcc
        v_cmp_nge_f32 vcc, {f32(hi)}, {vr(t0)}
        s_or_b64 vcc, vcc, {sr(S_MA, 2)}
        s_cbranch_scc1 L_fb
        """)
        e.label(back)
        self.fallback(back)
        e.wait(vm="g")
        e.i(f"""
        v_rcp_f32 {vr(t0)}, {vr(o + 12)}
        v_and_b32 {vr(t0 + 1)}, 31, v0
        v_mul_f32 {vr(t0)}, {vr(t0)}, {vr(A_GA)}
        v_lshlrev_b32 {vr(t0 + 1)}, 3, {vr(t0 + 1)}
        """)
        for k in range(12):
            e.i(f"v_mul_f32 {vr(o + k)}, {vr(o + k)}, {vr(t0)}")
        for k in range(6):
            e.i(f"v_cvt_pk_bf16_f32 {vr(o + k)}, {vr(o + 2 * k)}, {vr(o + 2 * k + 1)}")
        for k in range(6):
            e.i(f"v_min_u32 {vr(o + k)}, -2, {vr(o + k)}")
        e.vmem(f"buffer_store_dwordx4 {vr(o, 4)}, {vr(A_L16)}, {sr(R_WS, 4)}, {sr(S_OBLK)} offen sc1", "os")
        e.i("s_mov_b32 exec_hi, 0")
        e.vmem(f"buffer_store_dwordx2 {vr(o + 4, 2)}, {vr(t0 + 1)}, {sr(R_WS, 4)}, {sr(S_OBLK)} offen offset:1024 sc1", "os")
        e.i("s_mov_b64 exec, -1")
        for i in range(14 + NB, 19):
            for n in range(5):
                self.ld_w(i, n)
        e.i(f"""
        v_lshrrev_b32 v1, 5, v0
        v_lshlrev_b32 v1, 3, v1
        s_mul_i32 {sr(T1)}, {sr(S_CT)}, 320
        s_lshl_b32 {sr(T2)}, {sr(S_WV)}, 4
        s_add_u32 {sr(T1)}, {sr(T1)}, {sr(T2)}
        """)
        for k in range(3):
            e.vmem(f"buffer_load_dwordx2 {vr(2 + 2 * k, 2)}, v1, {sr(R_B2, 4)}, {sr(T1)} offen offset:{128 * k}", "b2")
        e.i(f"v_sub_f32 {vr(A_GF)}, 1.0, {vr(A_GF)}")
        e.i("s_barrier")
        for k in range(80):
            e.i(f"v_mul_f32 {vr(A_FACC + k)}, {vr(A_FACC + k)}, {vr(A_GF)}")
        of = [self.ring_h(0), self.ring_h(1), self.ring_h(2), 124, 128]
        e.i(f"""
        v_lshrrev_b32 v8, 5, v0
        v_mul_u32_u24 v8, 2560, v8
        v_add_u32 v8, v8, {vr(t0 + 1)}
        s_lshl_b32 {sr(T3)}, {sr(S_RT)}, 5
        s_lshl_b32 {sr(T2)}, {sr(S_WV)}, 2
        s_add_u32 {sr(T3)}, {sr(T3)}, {sr(T2)}
        s_mul_i32 {sr(T3)}, {sr(T3)}, 1280
        s_add_u32 {sr(T3)}, {sr(T3)}, {OFF_O}
        s_mov_b32 {sr(S_SPIN)}, {SPIN}
        """)
        e.wait(vm="os")
        self.stamp("odrain")
        e.label("L_opoll")
        for m in range(4):
            e.vmem(f"buffer_load_dwordx4 {vr(of[m], 4)}, {vr(A_L16)}, {sr(R_WS, 4)}, {sr(T3)} offen offset:{1280 * m} sc1", "o")
        for a in range(2):
            e.vmem(f"buffer_load_dwordx2 {vr(of[4] + 2 * a, 2)}, v8, {sr(R_WS, 4)}, {sr(T3)} offen offset:{1024 + 1280 * a} sc1", "o")
        e.wait(vm="all")
        rs = [of[m] + k for m in range(5) for k in range(4)]
        e.i(f"v_max_u32 v9, {vr(rs[0])}, {vr(rs[1])}")
        for k in range(2, 20, 2):
            e.i(f"v_max3_u32 v9, v9, {vr(rs[k])}, {vr(rs[k + 1])}")
        e.i(f"""
        v_cmp_eq_u32 vcc, -1, v9
        s_sub_u32 {sr(S_SPIN)}, {sr(S_SPIN)}, 1
        s_cmp_eq_u32 {sr(S_SPIN)}, 0
        s_cbranch_scc1 L_odone
        s_cbranch_vccnz L_opoll
        """)
        e.label("L_odone")
        self.stamp("oload")
        e.i(f"""
        s_mul_i32 {sr(T1)}, {sr(S_WV)}, 20480
        v_add_u32 v9, {sr(T1)}, {vr(A_L16)}
        """)

        def dump(n):
            for i in range(4):
                e.lds(f"ds_write_b128 v9, {vr(A_FACC + 16 * n + 4 * i, 4)} offset:{(4 * n + i) * 1024}", "dw")
        for n in range(5):
            d = vr(A_FACC + 16 * n, 16)
            for m in range(5):
                e.i(f"v_mfma_f32_32x32x16_bf16 {d}, {vr(self.ring_w(14 + m, n), 4)}, {vr(of[m], 4)}, {d}")
            if n:
                e.i("s_nop 6")
                dump(n - 1)
        e.i("s_nop 7")
        dump(4)
        e.i(f"""
        s_lshl_b32 {sr(T1)}, {sr(S_WV)}, 10
        v_add_u32 v9, {sr(T1)}, {vr(A_L16)}
        v_add_u32 v10, 81920, v9
        v_and_b32 v11, 31, v0
        v_mul_u32_u24 v11, 1280, v11
        v_add_u32 v11, v11, v1
        s_mul_i32 {sr(T1)}, {sr(S_RT)}, {32 * 1280}
        s_mul_i32 {sr(T2)}, {sr(S_CT)}, 320
        s_add_u32 {sr(T1)}, {sr(T1)}, {sr(T2)}
        s_lshl_b32 {sr(T2)}, {sr(S_WV)}, 4
        s_add_u32 {sr(T1)}, {sr(T1)}, {sr(T2)}
        """)
        e.wait(lg="all")
        e.i("s_barrier")
        self.stamp("dumped")
        for k in range(3):
            if k == 2:
                e.i(f"s_cmp_ge_u32 {sr(S_WV)}, 4\ns_cbranch_scc1 L_fin")
            if k:
                e.i("v_add_u32 v9, 8192, v9\nv_add_u32 v10, 8192, v10")
            b = 16 + 32 * (k & 1)
            for w in range(8):
                e.lds(f"ds_read_b128 {vr(b + 4 * w, 4)}, {vr(9 + (w >> 2))} offset:{(w & 3) * 20480}", f"rr{w}")
            for j in range(4):
                src = 2 + 2 * k + (j >> 1)
                e.i(f"v_and_b32 {vr(12 + j)}, 0xffff0000, {vr(src)}" if j & 1 else f"v_lshlrev_b32 {vr(12 + j)}, 16, {vr(src)}")
            for w in range(8):
                e.wait(lg=f"rr{w}")
                for j in range(4):
                    if w == 0:
                        e.i(f"v_fma_f32 {vr(12 + j)}, {vr(12 + j)}, {vr(A_GF)}, {vr(b + j)}")
                    else:
                        e.i(f"v_add_f32 {vr(12 + j)}, {vr(12 + j)}, {vr(b + 4 * w + j)}")
            e.i(f"""
            v_cvt_pk_bf16_f32 {vr(b)}, v12, v13
            v_cvt_pk_bf16_f32 {vr(b + 1)}, v14, v15
            buffer_store_dwordx2 {vr(b, 2)}, v11, {sr(R_OUT, 4)}, {sr(T1)} offen offset:{128 * k}
            """)
        e.label("L_fin")
        if c.dev:
            self.dev_dump()

    def dev_dump(self):
        e = self.e
        e.i(f"""
        s_waitcnt vmcnt(0)
        {"s_memrealtime" if self.c.rt else "s_memtime"} s[36:37]
        s_memrealtime s[12:13]
        s_lshl_b32 {sr(T0)}, s2, 3
        s_add_u32 {sr(T0)}, {sr(T0)}, {sr(S_WV)}
        s_lshl_b32 {sr(T0)}, {sr(T0)}, 7
        s_add_u32 {sr(T0)}, {sr(T0)}, {OFF_DEV}
        s_waitcnt lgkmcnt(0)
        s_mov_b64 exec, 1
        """)
        for k in range(12):
            e.i(f"v_mov_b32 v1, {sr(16 + 2 * k)}\nbuffer_store_dword v1, off, {sr(R_WS, 4)}, {sr(T0)} offset:{4 * k}")
        e.i(f"v_mov_b32 v1, s12\nbuffer_store_dword v1, off, {sr(R_WS, 4)}, {sr(T0)} offset:48")
        e.i(f"v_mov_b32 v1, {sr(S_SPIN)}\nbuffer_store_dword v1, off, {sr(R_WS, 4)}, {sr(T0)} offset:52")
        if self.c.enc >= 0:
            k = self.c.enc
            e.i(f"s_cmp_lg_u32 {sr(T0)}, {OFF_DEV + 296 * 128}\ns_cbranch_scc1 L_end")
            e.i("s_add_u32 s14, s38, 6000" if k == 11 else f"s_add_u32 s14, {sr(16 + 2 * k)}, 6000")
            e.i(f"""
            s_mov_b32 s15, 100000
            L_enc:
            s_memrealtime s[12:13]
            s_waitcnt lgkmcnt(0)
            s_sub_u32 s15, s15, 1
            s_cmp_eq_u32 s15, 0
            s_cbranch_scc1 L_end
            s_sub_u32 s13, s12, s14
            s_cmp_lt_i32 s13, 0
            s_cbranch_scc1 L_enc
            """)
        if self.c.dbgwg >= 0:
            e.i(f"s_cmp_lg_u32 {sr(T0)}, {OFF_DEV + self.c.dbgwg * 128}\ns_cbranch_scc1 L_end")
            for k in range(1, 11):
                e.i(f"s_sub_u32 s13, {sr(16 + 2 * k)}, s16\nv_mov_b32 v1, s13\nbuffer_store_dword v1, off, {sr(R_DBG, 4)}, 0 offset:{4 * k}")
            e.i(f"s_sub_u32 s13, s12, s38\nv_mov_b32 v1, s13\nbuffer_store_dword v1, off, {sr(R_DBG, 4)}, 0 offset:44")

    def build(self):
        e = self.e
        self.prologue()
        e.i(f"s_cmp_ge_u32 {sr(S_SEC)}, 2\ns_cbranch_scc1 L_p1v")
        snap = e.snapshot()
        self.pass1(False)
        after = e.snapshot()
        e.i("s_branch L_p2")
        e.label("L_p1v")
        e.restore(snap)
        self.pass1(True)
        assert e.snapshot() == after
        e.label("L_p2")
        e.i(f"s_cmp_lg_u32 {sr(S_CH)}, 0\ns_cbranch_scc1 L_p2b")
        self.pass2(0)
        after2 = e.snapshot()
        e.i("s_branch L_att")
        e.label("L_p2b")
        e.restore(after)
        self.pass2(1)
        assert e.snapshot() == after2
        e.label("L_att")
        self.attention()
        self.tail()
        e.label("L_end")
        e.i("s_endpgm")
        for blk in self.cold:
            e.i(blk)
        return e


HEADER = """; Fused gate + multi-head attention block + squared-ReLU FFN, one persistent launch (generated by gen/gen.py).
; @launch grid=(256,1,1) block=(512,1,1) lds=163840
.amdgcn_target "amdgcn-amd-amdhsa--gfx950"
.text
.globl {n}_kernel
.p2align 8
.type {n}_kernel,@function
{n}_kernel:
"""
FOOTER = """
.section .rodata,"a"
.p2align 6
.amdhsa_kernel {n}_kernel
  .amdhsa_next_free_vgpr 256
  .amdhsa_next_free_sgpr 102
  .amdhsa_accum_offset 256
  .amdhsa_group_segment_fixed_size 0
  .amdhsa_kernarg_size 96
  .amdhsa_user_sgpr_count 2
  .amdhsa_user_sgpr_kernarg_segment_ptr 1
  .amdhsa_system_sgpr_workgroup_id_x 1
  .amdhsa_float_denorm_mode_32 3
.end_amdhsa_kernel
"""


def generate(**kw):
    cfg = Cfg()
    for k, v in kw.items():
        assert hasattr(cfg, k), k
        setattr(cfg, k, v)
    e = Gen(cfg).build()
    errs = check_hazards(e.lines)
    if errs:
        for x in errs[:40]:
            print("HAZARD", x, file=sys.stderr)
        raise SystemExit(f"{len(errs)} hazards")
    return HEADER.format(n=NAME) + e.text() + "\n" + FOOTER.format(n=NAME)


if __name__ == "__main__":
    out = sys.argv[1]
    kw = {}
    for a in sys.argv[2:]:
        k, v = a.split("=")
        kw[k] = int(v)
    open(out, "w").write(generate(**kw))
```

```python
import math
import struct
import sys

from asmlib import Emit, check_hazards, sr, vr

NAME = "gated_mix__mha_block__dense_activation_squared_relu__prompt"

OFF_FLG = 0
OFF_G = 32768
OFF_Q = 65536
OFF_KV = OFF_Q + 32 * 64 * 1280
OFF_H = OFF_KV + 32 * 64 * 2560
OFF_WT = OFF_H + 64 * 112 * 1024
OFF_O = OFF_WT + 152 * 20 * 1024
OFF_DEV = OFF_O + 64 * 32 * 1280
WS_SIZE = OFF_DEV + 2048 * 128
OOB = 0x40000000
SPIN = 400000


def f32(x):
    return "0x%08x" % struct.unpack("<I", struct.pack("<f", x))[0]


S_WV, S_XCD, S_J, S_RB, S_CG, S_RQ, S_CH, S_M0 = 3, 4, 5, 6, 7, 8, 9, 10
T0, T1, T2, T3, T4 = 11, 12, 13, 14, 15
P_X, P_WQ, P_WO, P_W1, P_B1, P_W2, P_B2, P_GW, P_OUT, P_DBG, P_WS = 16, 18, 20, 24, 26, 28, 30, 32, 34, 36, 38
R_X, R_WQ, R_W1, R_WS, R_JOB, R_B1, R_B2, R_GW, R_OUT, R_DBG = 40, 44, 48, 52, 56, 60, 64, 68, 72, 76
S_HD, S_RTQ, S_RT, S_CT, S_BLK, S_SCALE = 80, 81, 82, 83, 84, 85
S_VMASK = 86
S_EPI, S_JST, S_OBLK, S_HB, S_WB, S_SEC, S_GAM, S_HST = 88, 89, 90, 91, 92, 93, 94, 95
S_HB2, S_WOB = S_SEC, S_GAM
S_MA, S_MB = 96, 98
S_SPIN = 100
S_KVB = 101
S_KVL = 1

V_LANE = 0
V_X0, V_X1, V_W, V_W1 = 1, 2, 3, 4
V_XR = 5
V_WR = 7
V_ST = 11
V_L15, V_G4 = 15, 16
V_WR2 = 17
V_T = 21
V_BIAS = 24
V_ACC = 32
V_WB = (64, 80)
V_XF = 96

A_AK, A_AKR, A_AV, A_IDX, A_L16, A_GA, A_QA = 97, 98, 99, 100, 101, 102, 103
A_T = 104
A_QLO, A_QHI, A_KR, A_QM, A_KM, A_VLO = 106, 108, 110, 112, 116, 120
A_VHI = (124, 128)
A_P = 132
A_O = 136
A_S = (152, 168)
A_RING = 184
A_FACC = 16
A_GF = 8
E1Q = (80, 6, 22, 26)


STAMPSETS = {
    0: [],
    1: ["pro", "b0", "p1end", "p2end", "att0", "chk2", "attend", "odrain", "oload", "dumped"],
    2: ["pro", "b0", "b2", "b4", "b6", "b8", "p1end", "e1end", "b11", "b12"],
    3: ["pro", "p1end", "b11", "b12", "b13", "b14", "p2end", "u18", "chk1", "att0"],
    4: ["pro", "att0", "fl2a", "fl2b", "chk2a", "chk2", "t16", "t32", "t48", "attend"],
}


class Cfg:
    dev = 0
    dbgwg = -1
    rt = 0
    enc = -1
    depth = 3
    ffn_start = 17
    ffn_emb = 140
    t_flag2 = 5
    t_kv = 3
    t_poll2 = 11
    t_chk2 = 13
    s_flag1 = 13
    u_poll1 = 19
    e1u = (2, 4, 6)
    qpos = 12
    stop = 0
    force_fallback = False


def acc(n, rt):
    return V_ACC + (n * 2 + rt) * 4


def xf(ks, rt):
    return V_XF + (ks * 2 + rt) * 4


def srd(e, r, p, size):
    e.i(f"s_mov_b32 {sr(r)}, {sr(p)}")
    e.i(f"s_mov_b32 {sr(r + 1)}, {sr(p + 1)}")
    e.i(f"s_mov_b32 {sr(r + 2)}, {size}")
    e.i(f"s_mov_b32 {sr(r + 3)}, 0x20000")


class Gen:
    def __init__(self, cfg):
        self.c = cfg
        self.e = Emit()
        self.cold = []
        self.nlab = 0
        self.q = []
        self.issued = set()

    def stamp(self, name):
        names = STAMPSETS[self.c.dev]
        if name in names:
            op = "s_memrealtime" if self.c.rt else "s_memtime"
            self.e.i(f"{op} {sr(16 + 2 * names.index(name), 2)}")

    def lab(self, base):
        self.nlab += 1
        return f"L_{base}_{self.nlab}"

    def dma_stage(self, s):
        slot = (s % 5) * 32768
        out = []
        for i in range(4):
            m0 = slot + (i & 1) * 1024 + (i >> 1) * 16384
            if s < 10:
                if i < 2:
                    va, r, so = (V_X0, V_X1)[i], R_X, s * 128
                else:
                    va, r, so = V_W, R_WQ, (s * 64 + (i & 1) * 4) * 3840
            else:
                va, r, so = V_W1, R_W1, ((s - 10) * 128 + (i & 1) * 4 + (i >> 1) * 64) * 3456
            out.append((f"s_add_u32 m0, {sr(S_M0)}, {m0}\ns_mov_b32 {sr(T0)}, {so}\n"
                        f"buffer_load_dwordx4 {vr(va)}, {sr(r, 4)}, {sr(T0)} offen lds", f"st{s}"))
        return out

    def prologue(self):
        e = self.e
        e.i(f"""
        s_cmp_ge_u32 s2, 256
        s_cbranch_scc1 L_end
        s_load_dwordx16 s[16:31], s[0:1], 0
        s_load_dwordx8 s[32:39], s[0:1], 64
        {"s_memrealtime vcc" if self.c.dev else ""}
        v_lshrrev_b32 v21, 6, v0
        v_and_b32 v0, 63, v0
        v_readfirstlane_b32 {sr(S_WV)}, v21
        s_and_b32 {sr(S_XCD)}, s2, 7
        s_lshr_b32 {sr(S_J)}, s2, 3
        s_and_b32 {sr(T0)}, {sr(S_XCD)}, 1
        s_lshl_b32 {sr(T0)}, {sr(T0)}, 3
        s_and_b32 {sr(T1)}, {sr(S_J)}, 7
        s_add_u32 {sr(S_RB)}, {sr(T0)}, {sr(T1)}
        s_lshr_b32 {sr(T0)}, {sr(S_XCD)}, 1
        s_lshl_b32 {sr(T0)}, {sr(T0)}, 2
        s_lshr_b32 {sr(T1)}, {sr(S_J)}, 3
        s_add_u32 {sr(S_CG)}, {sr(T0)}, {sr(T1)}
        s_and_b32 {sr(S_RQ)}, {sr(S_WV)}, 3
        s_lshr_b32 {sr(S_CH)}, {sr(S_WV)}, 2
        s_lshl_b32 {sr(S_M0)}, {sr(S_WV)}, 11
        v_and_b32 {vr(V_L15)}, 15, v0
        v_lshrrev_b32 {vr(V_G4)}, 4, v0
        """)
        e.i(f"""
        v_lshrrev_b32 v21, 3, v0
        v_and_b32 v22, 7, v0
        v_xor_b32 v22, v22, {vr(V_G4)}
        v_lshlrev_b32 v22, 4, v22
        s_lshl_b32 {sr(T0)}, {sr(S_RB)}, 7
        s_lshl_b32 {sr(T1)}, {sr(S_WV)}, 4
        s_add_u32 {sr(T0)}, {sr(T0)}, {sr(T1)}
        v_add_u32 v21, {sr(T0)}, v21
        v_mul_u32_u24 v21, 1280, v21
        v_add_u32 {vr(V_X0)}, v21, v22
        v_xor_b32 {vr(V_X1)}, 64, {vr(V_X0)}
        v_add_u32 {vr(V_X1)}, 10240, {vr(V_X1)}
        """)
        e.i(f"""
        s_and_b32 {sr(T0)}, {sr(S_WV)}, 1
        s_lshl_b32 {sr(T0)}, {sr(T0)}, 3
        v_lshlrev_b32 v23, 1, {vr(V_G4)}
        v_or_b32 v23, {sr(T0)}, v23
        v_xor_b32 v23, v23, {vr(V_L15)}
        s_lshl_b32 {sr(T0)}, {sr(S_WV)}, 3
        v_add_u32 v21, {sr(T0)}, {vr(V_G4)}
        v_mul_u32_u24 v22, 3840, v21
        v_lshl_add_u32 v22, v23, 4, v22
        s_lshl_b32 {sr(T0)}, {sr(S_CG)}, 8
        v_add_u32 {vr(V_W)}, {sr(T0)}, v22
        s_waitcnt lgkmcnt(0)
        """)
        if self.c.dev:
            e.i("s_mov_b32 s0, vcc_lo")
        srd(e, R_X, P_X, 2048 * 1280)
        srd(e, R_WQ, P_WQ, 640 * 3840)
        e.i(f"""
        s_cmp_eq_u32 {sr(S_CG)}, 15
        s_cselect_b32 {sr(R_WQ + 2)}, 0, {sr(R_WQ + 2)}
        """)
        srd(e, R_WS, P_WS, WS_SIZE)
        skip = self.lab("noinit")
        e.i(f"""
        s_lshl_b32 {sr(T0)}, s2, 3
        s_add_u32 {sr(T0)}, {sr(T0)}, {sr(S_WV)}
        s_cmp_lg_u32 {sr(T0)}, 7
        s_cbranch_scc1 {skip}
        v_lshlrev_b32 v24, 7, v0
        v_mov_b32 v25, 0
        s_mov_b32 {sr(T0)}, 8192
        s_mov_b32 {sr(T1)}, 16384
        s_mov_b32 {sr(T2)}, 24576
        buffer_store_dword v25, v24, {sr(R_WS, 4)}, 0 offen sc1
        buffer_store_dword v25, v24, {sr(R_WS, 4)}, {sr(T0)} offen sc1
        buffer_store_dword v25, v24, {sr(R_WS, 4)}, {sr(T1)} offen sc1
        buffer_store_dword v25, v24, {sr(R_WS, 4)}, {sr(T2)} offen sc1
        """)
        e.label(skip)
        for s in range(self.c.depth):
            for txt, tag in self.dma_stage(s):
                e.vmem(txt, tag)
            if s == 0:
                e.i("s_barrier")
        srd(e, R_W1, P_W1, 640 * 3456)
        srd(e, R_B1, P_B1, 3456)
        srd(e, R_B2, P_B2, 1280)
        srd(e, R_GW, P_GW, 1280)
        srd(e, R_OUT, P_OUT, 2048 * 1280)
        srd(e, R_DBG, P_DBG, 256)
        e.i(f"""
        v_mul_u32_u24 v22, 3456, v21
        v_lshl_add_u32 v22, v23, 4, v22
        s_mul_i32 {sr(T0)}, {sr(S_CG)}, 224
        v_add_u32 {vr(V_W1)}, {sr(T0)}, v22
        s_cmp_eq_u32 {sr(S_CG)}, 15
        s_cselect_b32 {sr(T0)}, 6, 14
        v_cmp_gt_u32 vcc, {sr(T0)}, v23
        v_mov_b32 v22, {OOB}
        s_nop 0
        v_cndmask_b32 {vr(V_W1)}, v22, {vr(V_W1)}, vcc
        """)
        e.i(f"""
        s_lshl_b32 {sr(T0)}, {sr(S_XCD)}, 2
        s_lshr_b32 {sr(T1)}, {sr(S_J)}, 3
        s_add_u32 {sr(S_HD)}, {sr(T0)}, {sr(T1)}
        s_and_b32 {sr(T1)}, {sr(S_J)}, 3
        s_add_u32 {sr(S_RT)}, {sr(T0)}, {sr(T1)}
        s_lshr_b32 {sr(S_CT)}, {sr(S_J)}, 2
        s_and_b32 {sr(T1)}, {sr(S_J)}, 7
        s_lshl_b32 {sr(T0)}, {sr(T1)}, 3
        s_add_u32 {sr(S_RTQ)}, {sr(T0)}, {sr(S_WV)}
        s_lshl_b32 {sr(T0)}, {sr(S_RB)}, 2
        s_add_u32 {sr(S_BLK)}, {sr(T0)}, {sr(S_RQ)}
        s_mul_i32 {sr(S_SEC)}, {sr(S_CG)}, 52
        s_lshr_b32 {sr(S_SEC)}, {sr(S_SEC)}, 8
        s_mul_i32 {sr(T0)}, {sr(S_SEC)}, 5
        s_sub_u32 {sr(S_GAM)}, {sr(S_CG)}, {sr(T0)}
        s_mov_b32 {sr(S_VMASK)}, 0x000fffff
        s_mov_b32 {sr(S_VMASK + 1)}, 0x000fffff
        s_lshl_b32 {sr(T0)}, {sr(S_RTQ)}, 5
        s_add_u32 {sr(T0)}, {sr(T0)}, {sr(S_HD)}
        s_mul_i32 {sr(T0)}, {sr(T0)}, 1280
        s_add_u32 {sr(S_OBLK)}, {sr(T0)}, {OFF_O}
        s_mul_i32 {sr(T0)}, {sr(S_BLK)}, 112
        s_mul_i32 {sr(T1)}, {sr(S_CG)}, 7
        s_add_u32 {sr(T0)}, {sr(T0)}, {sr(T1)}
        s_lshl_b32 {sr(T1)}, {sr(S_CH)}, 2
        s_add_u32 {sr(T0)}, {sr(T0)}, {sr(T1)}
        s_lshl_b32 {sr(T0)}, {sr(T0)}, 10
        s_add_u32 {sr(S_HST)}, {sr(T0)}, {OFF_H}
        s_mul_i32 {sr(T0)}, {sr(S_HD)}, {64 * 2560}
        s_mul_i32 {sr(T1)}, {sr(S_WV)}, 10240
        s_add_u32 {sr(T0)}, {sr(T0)}, {sr(T1)}
        s_add_u32 {sr(S_KVB)}, {sr(T0)}, {OFF_KV}
        s_mul_i32 {sr(S_KVL)}, {sr(S_WV)}, 5120
        v_lshlrev_b32 v250, 4, v0
        v_lshlrev_b32 v251, 2, v0
        v_mov_b32 v252, -1
        v_mov_b32 v253, -1
        v_mov_b32 v254, -1
        v_mov_b32 v255, -1
        """)
        self.job_setup()
        e.i(f"""
        s_lshl_b32 {sr(T0)}, {sr(S_RQ)}, 12
        v_lshrrev_b32 v21, 1, {vr(V_L15)}
        v_xor_b32 v21, v21, {vr(V_G4)}
        v_lshlrev_b32 v21, 4, v21
        v_lshl_add_u32 v21, {vr(V_L15)}, 7, v21
        v_add_u32 {vr(V_XR)}, {sr(T0)}, v21
        v_xor_b32 {vr(V_XR + 1)}, 64, {vr(V_XR)}
        """)
        e.i(f"""
        v_lshrrev_b32 v22, 2, {vr(V_L15)}
        v_lshl_add_u32 v21, {vr(V_G4)}, 3, v22
        v_lshlrev_b32 v21, 8, v21
        v_and_b32 v23, 1, {vr(V_G4)}
        v_lshl_add_u32 v22, v23, 2, v22
        v_lshlrev_b32 v22, 1, v22
        v_and_b32 v23, 3, {vr(V_L15)}
        s_lshl_b32 {sr(T0)}, {sr(S_CH)}, 3
        """)
        for n in range(4):
            e.i(f"""
            v_lshrrev_b32 v24, 1, v23
            v_add_u32 v24, {2 * n}, v24
            v_add_u32 v24, {sr(T0)}, v24
            v_xor_b32 v24, v24, v22
            v_lshl_add_u32 v24, v24, 4, v21
            v_and_b32 v25, 1, v23
            v_lshl_add_u32 {vr(V_WR2 + n)}, v25, 3, v24
            """)
        if self.c.dev:
            e.i("s_mov_b32 s38, s0")
        self.stamp("pro")

    def job_setup(self):
        e = self.e
        kap, cp, base, a0, a2, a1, hf = T0, T1, T2, T3, T4, S_MA, S_MA + 1
        wo, done = self.lab("jwo"), self.lab("jdone")
        e.i(f"""
        s_lshl_b32 {sr(cp)}, s2, 3
        s_add_u32 {sr(cp)}, {sr(cp)}, {sr(S_WV)}
        s_mul_i32 {sr(kap)}, {sr(cp)}, 6554
        s_lshr_b32 {sr(kap)}, {sr(kap)}, 16
        s_mul_i32 {sr(base)}, {sr(kap)}, 10
        s_sub_u32 {sr(cp)}, {sr(cp)}, {sr(base)}
        s_and_b32 {sr(hf)}, {sr(kap)}, 1
        s_lshr_b32 {sr(kap)}, {sr(kap)}, 1
        s_mul_i32 {sr(S_JST)}, {sr(kap)}, 10
        s_add_u32 {sr(S_JST)}, {sr(S_JST)}, {sr(cp)}
        s_lshl_b32 {sr(S_JST)}, {sr(S_JST)}, 3
        s_add_u32 {sr(S_JST)}, {sr(S_JST)}, {sr(hf)}
        s_lshl_b32 {sr(S_JST)}, {sr(S_JST)}, 9
        s_add_u32 {sr(S_JST)}, {sr(S_JST)}, {OFF_WT}
        s_cmp_ge_u32 {sr(kap)}, 76
        s_cselect_b32 {sr(S_JST)}, {OOB}, {sr(S_JST)}
        s_cmp_ge_u32 {sr(kap)}, 56
        s_cselect_b32 {sr(R_JOB)}, {sr(P_WO)}, {sr(P_W2)}
        s_cselect_b32 {sr(R_JOB + 1)}, {sr(P_WO + 1)}, {sr(P_W2 + 1)}
        s_mov_b32 {sr(R_JOB + 2)}, {1728 * 1280}
        s_cselect_b32 {sr(R_JOB + 2)}, {640 * 1280}, {sr(R_JOB + 2)}
        s_mov_b32 {sr(R_JOB + 3)}, 0x20000
        s_cbranch_scc1 {wo}
        s_mul_i32 {sr(a0)}, {sr(kap)}, 9363
        s_lshr_b32 {sr(a0)}, {sr(a0)}, 16
        s_mul_i32 {sr(base)}, {sr(a0)}, 224
        s_mul_i32 {sr(a0)}, {sr(a0)}, 7
        s_sub_u32 {sr(kap)}, {sr(kap)}, {sr(a0)}
        s_lshl_b32 {sr(a0)}, {sr(kap)}, 5
        s_cmp_ge_u32 {sr(kap)}, 3
        s_cselect_b32 {sr(a2)}, 16, 0
        s_add_u32 {sr(a0)}, {sr(a0)}, {sr(a2)}
        s_cmp_eq_u32 {sr(kap)}, 6
        s_cselect_b32 {sr(a0)}, 96, {sr(a0)}
        s_cselect_b32 {sr(a2)}, 112, 16
        s_add_u32 {sr(base)}, {sr(base)}, {sr(a0)}
        s_mov_b32 {sr(a0)}, 4
        s_mov_b32 {sr(a1)}, 8
        s_branch {done}
        """)
        e.label(wo)
        e.i(f"""
        s_sub_u32 {sr(kap)}, {sr(kap)}, 56
        s_mul_i32 {sr(a0)}, {sr(kap)}, 13108
        s_lshr_b32 {sr(a0)}, {sr(a0)}, 16
        s_mul_i32 {sr(base)}, {sr(a0)}, 160
        s_mul_i32 {sr(a0)}, {sr(a0)}, 5
        s_sub_u32 {sr(kap)}, {sr(kap)}, {sr(a0)}
        s_mul_i32 {sr(a0)}, {sr(kap)}, 40
        s_cmp_eq_u32 {sr(kap)}, 4
        s_cselect_b32 {sr(a0)}, 16, {sr(a0)}
        s_add_u32 {sr(base)}, {sr(base)}, {sr(a0)}
        s_cmp_eq_u32 {sr(kap)}, 4
        s_cselect_b32 {sr(a0)}, 40, 4
        s_cselect_b32 {sr(a1)}, 80, 20
        s_cselect_b32 {sr(a2)}, 20, 8
        """)
        e.label(done)
        e.i(f"""
        s_mul_i32 {sr(a1)}, {sr(a1)}, {sr(hf)}
        s_add_u32 {sr(base)}, {sr(base)}, {sr(a1)}
        v_lshrrev_b32 v21, 5, v0
        v_mul_u32_u24 v21, {sr(a2)}, v21
        v_bfe_u32 v22, v0, 3, 2
        v_add3_u32 v21, v21, v22, {sr(base)}
        v_mul_u32_u24 v21, 1280, v21
        v_and_b32 v22, 7, v0
        v_lshl_add_u32 v21, v22, 4, v21
        s_lshl_b32 {sr(cp)}, {sr(cp)}, 7
        v_add_u32 v30, {sr(cp)}, v21
        s_mul_i32 {sr(a0)}, {sr(a0)}, 1280
        v_add_u32 v31, {sr(a0)}, v30
        """)

    def reads(self, s, ksl, ntiles, buf):
        off = (s % 5) * 32768 - ((s % 5) >> 1) * 65536
        out = []
        if s < 10:
            ks = 2 * s + ksl
            for rt in range(2):
                out.append(f"ds_read_b128 {vr(xf(ks, rt), 4)}, {vr(V_XR + ksl)} offset:{off + rt * 2048}")
            wbase, wr = off + 16384, V_WR
        else:
            wbase, wr = off, V_WR2
        for n in range(ntiles):
            for q in range(2):
                out.append(f"ds_read_b64_tr_b16 {vr(V_WB[buf] + 4 * n + 2 * q, 2)}, {vr(wr + n)} "
                           f"offset:{wbase + ksl * 8192 + q * 1024}")
        return out

    def window(self, s):
        slot = s % 5
        if s in (0, 10) or slot in (1, 3):
            return []
        d = 65536 if slot in (2, 4) else -131072
        rs = [V_XR, V_XR + 1] + [V_WR + n for n in range(4)] if s < 10 else [V_WR2 + n for n in range(4)]
        return [f"v_add_u32 {vr(r)}, {d & 0xffffffff:#x}, {vr(r)}" for r in rs]

    def mfmas(self, ks, ntiles, buf, vtype, first):
        out = []
        for n in range(ntiles):
            for rt in range(2):
                w, x, d = vr(V_WB[buf] + 4 * n, 4), vr(xf(ks, rt), 4), vr(acc(n, rt), 4)
                a, b = (x, w) if vtype else (w, x)
                out.append(f"v_mfma_f32_16x16x32_bf16 {d}, {a}, {b}, {'0' if first else d}")
        return out

    def unit(self, mf, rd, rate=1, drain=False):
        e = self.e
        rd = list(rd)
        for m in mf:
            e.i(m)
            for _ in range(2):
                if rd:
                    e.lds(rd.pop(0), "rd")
            for _ in range(rate):
                if self.q:
                    self.q.pop(0)()
        for r in rd:
            e.lds(r, "rd")
        while drain and self.q:
            self.q.pop(0)()

    def vm(self, txt, tag):
        def f():
            self.e.vmem(txt, tag)
            self.issued.add(tag)
        return f

    def ii(self, txt):
        return lambda: self.e.i(txt)

    def each(self, txt):
        out, cur = [], []
        for ln in txt.strip().split("\n"):
            ln = ln.strip()
            if not ln:
                continue
            cur.append(ln)
            if not ln.startswith("s_"):
                out.append(self.ii("\n".join(cur)))
                cur = []
        if cur:
            out.append(self.ii("\n".join(cur)))
        return out

    def spaced(self, items, gap):
        out = []
        for x in items:
            out.append(x)
            out += [lambda: None] * gap
        return out

    def stage_sync(self, s, vmtags=()):
        e = self.e
        for w in self.window(s):
            e.i(w)
        e.wait(vm=[f"st{s}"] + list(vmtags), lg="all")
        e.i("s_barrier")
        self.stamp(f"b{s}")

    def pass1(self, vtype):
        e = self.e
        if vtype:
            for n in range(4):
                e.i(f"v_mov_b32 {vr(V_WR + n)}, {vr(V_WR2 + n)}")
        else:
            for n in range(4):
                e.i(f"""
                v_add_u32 v24, {4 * (n >> 1)}, v23
                v_add_u32 v24, {sr(T0)}, v24
                v_xor_b32 v24, v24, v22
                v_lshl_add_u32 v24, v24, 4, v21
                v_lshrrev_b32 v25, 1, v23
                v_xor_b32 v25, {n & 1}, v25
                v_lshl_add_u32 {vr(V_WR + n)}, v25, 3, v24
                """)
        self.epi1_addr(vtype)
        prev = []
        dp = self.c.depth
        for s in range(10):
            for ksl in range(2):
                if ksl == 0:
                    self.stage_sync(s)
                    if s == 0:
                        self.publish_init()
                    if s + dp <= 11:
                        self.q += self.spaced([self.vm(t, g) for t, g in self.dma_stage(s + dp)], 2 if s else 1)
                    if s == 2:
                        self.q.append(self.vm(f"buffer_store_dwordx4 v[252:255], v250, {sr(R_WS, 4)}, {sr(S_OBLK)} offen sc1", "sent"))
                    if s == 5:
                        self.q.append(self.vm(f"buffer_store_dword v252, v251, {sr(R_WS, 4)}, {sr(S_OBLK)} offen offset:1024 sc1", "sent"))
                    if s == 9:
                        self.q += self.bias_loads()
                else:
                    e.wait(lg="all")
                self.unit(prev, self.reads(s, ksl, 4, ksl), drain=ksl == 1)
                prev = self.mfmas(2 * s + ksl, 4, ksl, vtype, s == 0 and ksl == 0)
        self.stage_sync(10)
        self.unit(prev, self.reads(10, 0, 4, 0))
        self.stamp("p1end")
        self.epi1(vtype)
        self.stamp("e1end")

    def publish_init(self):
        e = self.e
        skip = self.lab("nopub")
        e.i(f"""
        s_lshl_b32 {sr(T0)}, s2, 3
        s_add_u32 {sr(T0)}, {sr(T0)}, {sr(S_WV)}
        s_cmp_lg_u32 {sr(T0)}, 7
        s_cbranch_scc1 {skip}
        v_mov_b32 v25, 1
        s_mov_b64 exec, 1
        buffer_store_dword v25, off, {sr(R_DBG, 4)}, 0 sc1
        s_mov_b64 exec, -1
        """)
        e.label(skip)

    def bias_loads(self):
        out = self.each(f"""
        s_mul_i32 {sr(T1)}, {sr(S_CG)}, 224
        s_lshl_b32 {sr(T2)}, {sr(S_CH)}, 7
        s_add_u32 {sr(T1)}, {sr(T1)}, {sr(T2)}
        v_lshlrev_b32 v21, 3, {vr(V_G4)}
        """)
        regs = (22, 24, 26, 28)
        for n in range(4):
            out.append(self.vm(f"buffer_load_dwordx2 {vr(regs[n], 2)}, v21, {sr(R_B1, 4)}, {sr(T1)} offen offset:{32 * n}",
                               "bias"))
        out.append(self.vm(f"buffer_load_dword v2, off, {sr(R_DBG, 4)}, 0 sc1", "dbg"))
        return out

    def epi1_addr(self, vtype):
        e = self.e
        if vtype:
            e.i(f"""
            s_lshl_b32 {sr(T1)}, {sr(S_GAM)}, 7
            s_lshl_b32 {sr(T2)}, {sr(S_CH)}, 6
            s_add_u32 {sr(T1)}, {sr(T1)}, {sr(T2)}
            s_mov_b32 {sr(T2)}, {64 * 2560}
            v_mul_u32_u24 v26, 320, {vr(V_G4)}
            """)
            for n in range(4):
                e.i(f"""
                v_add3_u32 v24, {vr(V_L15)}, {sr(T1)}, {16 * n}
                v_mul_u32_u24 v25, 3277, v24
                v_lshrrev_b32 v25, 16, v25
                v_mul_u32_u24 v27, 20, v25
                v_sub_u32 v24, v24, v27
                v_mul_u32_u24 v25, {sr(T2)}, v25
                v_lshl_add_u32 v24, v24, 4, v25
                v_add_u32 {vr(V_ST + n)}, v24, v26
                """)
            e.i(f"""
            s_mul_i32 {sr(T1)}, {sr(S_BLK)}, 2560
            s_add_u32 {sr(S_EPI)}, {sr(T1)}, {OFF_KV + 1280}
            s_cmp_eq_u32 {sr(S_CG)}, 15
            s_cselect_b32 {sr(S_EPI)}, {OOB}, {sr(S_EPI)}
            """)
            return
        e.i(f"""
        s_lshl_b32 {sr(T1)}, {sr(S_GAM)}, 4
        s_lshl_b32 {sr(T2)}, {sr(S_CH)}, 3
        s_add_u32 {sr(T1)}, {sr(T1)}, {sr(T2)}
        s_lshl_b32 {sr(T3)}, 1280, {sr(S_SEC)}
        s_lshl_b32 {sr(T2)}, {sr(T3)}, 6
        s_mul_i32 {sr(T3)}, {sr(T3)}, {sr(S_BLK)}
        s_cmp_eq_u32 {sr(S_SEC)}, 0
        s_mov_b32 {sr(T4)}, {OFF_KV}
        s_cselect_b32 {sr(T4)}, {OFF_Q}, {sr(T4)}
        s_cselect_b32 {sr(S_SCALE)}, {f32(math.log2(math.e) / math.sqrt(20.0))}, 1.0
        s_add_u32 {sr(S_EPI)}, {sr(T3)}, {sr(T4)}
        """)
        for p in range(2):
            mask = (S_MA, S_MB)[p]
            e.i(f"""
            v_add3_u32 v24, {vr(V_G4)}, {sr(T1)}, {4 * p}
            v_mul_u32_u24 v25, 205, v24
            v_lshrrev_b32 v25, 10, v25
            v_mul_u32_u24 v26, 5, v25
            v_sub_u32 v26, v24, v26
            v_cmp_eq_u32 {sr(mask, 2)}, 2, v26
            v_cmp_lt_u32 vcc, 2, v26
            v_lshrrev_b32 v27, 1, {vr(V_G4)}
            v_subrev_u32 v28, 3, v26
            v_cndmask_b32 v26, v26, v28, vcc
            v_cndmask_b32 v28, 0, 1, vcc
            v_lshlrev_b32 v26, 9, v26
            v_lshl_add_u32 v26, {vr(V_L15)}, 4, v26
            v_cndmask_b32 v29, v28, v27, {sr(mask, 2)}
            v_lshl_add_u32 v29, v25, 1, v29
            v_mul_lo_u32 v29, v29, {sr(T2)}
            v_add_u32 {vr(V_ST + 2 * p)}, v29, v26
            v_xor_b32 v27, 1, v27
            v_cndmask_b32 v29, v28, v27, {sr(mask, 2)}
            v_lshl_add_u32 v29, v25, 1, v29
            v_mul_lo_u32 v29, v29, {sr(T2)}
            v_mov_b32 v27, 256
            v_cndmask_b32 v27, v27, 0, {sr(mask, 2)}
            v_add3_u32 {vr(V_ST + 2 * p + 1)}, v29, v26, v27
            """)

    def e1_store(self, k):
        return self.vm(f"buffer_store_dwordx4 {vr(E1Q[k], 4)}, {vr(V_ST + k)}, {sr(R_WS, 4)}, {sr(S_EPI)} offen sc1", "e1")

    def epi1(self, vtype):
        e = self.e
        e.wait(vm="bias")
        e.i("s_nop 1")
        for p in range(2):
            qa, qb = (E1Q[0], E1Q[1]) if p == 0 else (E1Q[2], 84)
            if vtype:
                for n, dst in ((2 * p, qa), (2 * p + 1, qb)):
                    for rt in range(2):
                        for h in range(2):
                            a = acc(n, rt) + 2 * h
                            e.i(f"v_cvt_pk_bf16_f32 {vr(dst + 2 * rt + h)}, {vr(a)}, {vr(a + 1)}")
            else:
                for k in range(16):
                    r = acc(2 * p, 0) + k
                    e.i(f"v_mul_f32 {vr(r)}, {sr(S_SCALE)}, {vr(r)}")
                for rt, dst in ((0, qa), (1, qb)):
                    for ab in range(2):
                        for h in range(2):
                            a = acc(2 * p + ab, rt) + 2 * h
                            e.i(f"v_cvt_pk_bf16_f32 {vr(dst + 2 * ab + h)}, {vr(a)}, {vr(a + 1)}")
                e.i(f"""
                s_mov_b64 exec, {sr((S_MA, S_MB)[p], 2)}
                v_swap_b32 {vr(qa + 2)}, {vr(qb)}
                v_swap_b32 {vr(qa + 3)}, {vr(qb + 1)}
                s_mov_b64 exec, -1
                """)
            if p == 0:
                self.e1_store(0)()
            for n in (2 * p, 2 * p + 1):
                r = 22 + 2 * n
                for h in range(2):
                    e.i(f"v_lshlrev_b32 {vr(acc(n, 0) + 2 * h)}, 16, {vr(r + h)}")
                    e.i(f"v_and_b32 {vr(acc(n, 0) + 2 * h + 1)}, 0xffff0000, {vr(r + h)}")
                for k in range(4):
                    e.i(f"v_mov_b32 {vr(acc(n, 1) + k)}, {vr(acc(n, 0) + k)}")
        for k in range(4):
            e.i(f"v_mov_b32 {vr(E1Q[3] + k)}, {vr(84 + k)}")

    def job_issue(self):
        out = []
        for h in range(2):
            out.append(self.vm(f"s_add_u32 m0, {sr(S_M0)}, {h * 1024}\ns_nop 0\n"
                               f"buffer_load_dwordx4 {vr(30 + h)}, {sr(R_JOB, 4)}, 0 offen lds", "job"))
        out += self.each(f"""
        v_lshlrev_b32 {vr(A_L16)}, 4, v0
        v_lshlrev_b32 {vr(A_T)}, 2, v0
        v_and_b32 v24, 1, {vr(V_G4)}
        v_lshlrev_b32 v27, 10, v24
        v_bfe_u32 v24, v0, 2, 2
        v_lshl_add_u32 v27, v24, 7, v27
        v_lshrrev_b32 v25, 5, v0
        v_lshl_add_u32 v27, v25, 5, v27
        v_and_b32 v24, 3, v0
        v_lshl_add_u32 v27, v24, 3, v27
        v_add_u32 v27, {sr(S_M0)}, v27
        v_lshl_add_u32 v26, v25, 9, {vr(A_L16)}
        """)
        return out

    def gate_issue(self):
        pre = f"""
        s_lshl_b32 {sr(T1)}, {sr(S_RB)}, 4
        s_add_u32 {sr(T1)}, {sr(T1)}, {sr(S_CG)}
        s_lshl_b32 {sr(T1)}, {sr(T1)}, 3
        s_add_u32 {sr(T1)}, {sr(T1)}, {sr(S_WV)}
        s_mul_i32 {sr(T1)}, {sr(T1)}, 1280
        """
        return [self.vm(pre + f"buffer_load_dwordx4 v[136:139], {vr(A_L16)}, {sr(R_X, 4)}, {sr(T1)} offen", "gate"),
                self.vm(f"buffer_load_dword v140, {vr(A_T)}, {sr(R_X, 4)}, {sr(T1)} offen offset:1024", "gate"),
                self.vm(f"buffer_load_dwordx4 v[142:145], {vr(A_L16)}, {sr(R_GW, 4)}, 0 offen", "gate"),
                self.vm(f"buffer_load_dword v146, {vr(A_T)}, {sr(R_GW, 4)}, 0 offen offset:1024", "gate")]

    def flag_store(self, val, check_init):
        e = self.e
        skip = self.lab("nofl")
        e.i(f"s_cmp_lg_u32 {sr(S_WV)}, 0\ns_cbranch_scc1 {skip}")
        if check_init:
            ok, lp = self.lab("iok"), self.lab("ilp")
            e.i(f"v_readfirstlane_b32 {sr(T1)}, v2\ns_cmp_eq_u32 {sr(T1)}, 0\ns_cbranch_scc1 {lp}")
            e.label(ok)
            self.cold.append(f"""
            {lp}:
            s_mov_b32 {sr(S_SPIN)}, {SPIN}
            {lp}_a:
            buffer_load_dword v2, off, {sr(R_DBG, 4)}, 0 sc1
            s_waitcnt vmcnt(0)
            v_readfirstlane_b32 {sr(T1)}, v2
            s_cmp_lg_u32 {sr(T1)}, 0
            s_cbranch_scc1 {ok}
            s_sleep 8
            s_sub_u32 {sr(S_SPIN)}, {sr(S_SPIN)}, 1
            s_cmp_lg_u32 {sr(S_SPIN)}, 0
            s_cbranch_scc1 {lp}_a
            s_branch {ok}
            """)
        e.i(f"""
        s_lshl_b32 {sr(T1)}, {sr(S_CG)}, 4
        s_add_u32 {sr(T1)}, {sr(T1)}, {sr(S_RB)}
        s_lshl_b32 {sr(T1)}, {sr(T1)}, 7
        v_mov_b32 v1, {val}
        s_mov_b64 exec, 1
        buffer_store_dword v1, off, {sr(R_WS, 4)}, {sr(T1)} sc1
        s_mov_b64 exec, -1
        """)
        e.label(skip)

    def side_job_read(self):
        e = self.e

        def f():
            e.wait(vm="job")
            for ph in range(2):
                for q in range(2):
                    e.lds(f"ds_read_b64_tr_b16 {vr(152 + 4 * ph + 2 * q, 2)}, v27 offset:{q * 512 + ph * 64}", "jr")
        return [lambda: None] * 4 + [f]

    def side_job_store(self):
        return [self.vm(f"buffer_store_dwordx4 {vr(152 + 4 * ph, 4)}, v26, {sr(R_WS, 4)}, {sr(S_JST)} offen offset:{2048 * ph} sc1",
                        "js") for ph in range(2)]

    def side_gate(self):
        e = self.e
        out = [lambda: e.wait(vm="gate")]
        out += self.each("v_dot2_f32_bf16 v23, v136, v142, 0\n" +
                         "\n".join(f"v_dot2_f32_bf16 v23, {vr(136 + i)}, {vr(142 + i)}, v23" for i in range(1, 5)))
        out += self.each("\n".join(f"s_nop {2 if sh == 8 else 1}\nv_add_f32_dpp v23, v23, v23 row_ror:{sh} row_mask:0xf bank_mask:0xf"
                                   for sh in (8, 4, 2, 1)))
        out += self.each(f"""
        s_nop 0
        v_readlane_b32 {sr(T1)}, v23, 16
        v_readlane_b32 {sr(T2)}, v23, 32
        v_readlane_b32 {sr(T3)}, v23, 48
        v_add_f32 v23, {sr(T1)}, v23
        v_add_f32 v23, {sr(T2)}, v23
        v_add_f32 v23, {sr(T3)}, v23
        v_mul_f32 v23, {f32(-math.log2(math.e))}, v23
        v_exp_f32 v23, v23
        s_lshl_b32 {sr(T1)}, {sr(S_RB)}, 4
        v_add_f32 v23, 1.0, v23
        v_rcp_f32 v23, v23
        """)
        out.append(self.vm(f"""
        s_add_u32 {sr(T1)}, {sr(T1)}, {sr(S_CG)}
        s_lshl_b32 {sr(T1)}, {sr(T1)}, 7
        s_lshl_b32 {sr(T2)}, {sr(S_WV)}, 2
        s_add_u32 {sr(T1)}, {sr(T1)}, {sr(T2)}
        s_add_u32 {sr(T1)}, {sr(T1)}, {OFF_G}
        s_mov_b64 exec, 1
        buffer_store_dword v23, off, {sr(R_WS, 4)}, {sr(T1)} sc1
        s_mov_b64 exec, -1
        """, "gs"))
        return out

    def poll(self, vaddr, vdat, val, nlanes, tag):
        e = self.e
        mask = (1 << nlanes) - 1
        setx = "s_mov_b32 exec_hi, 0" if nlanes == 32 else f"s_mov_b64 exec, {mask:#x}"

        def issue():
            e.i(setx)
            e.vmem(f"buffer_load_dword {vr(vdat)}, {vr(vaddr)}, {sr(R_WS, 4)}, 0 offen sc1", tag)
            e.i("s_mov_b64 exec, -1")

        def check():
            ok, lp = self.lab("pok"), self.lab("plp")
            e.wait(vm=tag)
            e.i(f"""
            v_cmp_gt_u32 vcc, {val}, {vr(vdat)}
            s_and_b32 {sr(T1)}, vcc_lo, {mask:#x}
            s_cbranch_scc1 {lp}
            """)
            e.label(ok)
            self.cold.append(f"""
            {lp}:
            s_mov_b32 {sr(S_SPIN)}, {SPIN}
            {lp}_a:
            {setx}
            buffer_load_dword {vr(vdat)}, {vr(vaddr)}, {sr(R_WS, 4)}, 0 offen sc1
            s_mov_b64 exec, -1
            s_waitcnt vmcnt(0)
            v_cmp_gt_u32 vcc, {val}, {vr(vdat)}
            s_and_b32 {sr(T1)}, vcc_lo, {mask:#x}
            s_cbranch_scc0 {ok}
            s_sub_u32 {sr(S_SPIN)}, {sr(S_SPIN)}, 1
            s_cmp_lg_u32 {sr(S_SPIN)}, 0
            s_cbranch_scc1 {lp}_a
            s_branch {ok}
            """)
        return issue, check

    def poll1_addr(self):
        return self.each(f"""
        s_mul_i32 {sr(T4)}, {sr(S_HD)}, 20
        v_and_b32 v28, 1, v0
        v_mad_u32_u24 v28, v28, 19, {sr(T4)}
        v_lshrrev_b32 v28, 7, v28
        v_lshrrev_b32 v24, 2, v0
        v_mad_u32_u24 v28, v24, 5, v28
        v_bfe_u32 v25, v0, 1, 1
        v_lshl_add_u32 v25, v25, 3, {sr(S_WV)}
        """) + [self.ii(f"""
        s_lshr_b32 {sr(T4)}, {sr(S_RTQ)}, 2
        s_mov_b64 exec, 15
        v_mov_b32 v25, {sr(T4)}
        s_mov_b64 exec, -1
        """)] + self.each(f"""
        v_lshl_add_u32 v28, v28, 4, v25
        v_lshlrev_b32 {vr(A_P)}, 7, v28
        v_bfe_u32 v24, v0, 4, 1
        v_lshlrev_b32 v24, 3, v24
        v_lshl_add_u32 {vr(A_QA)}, {vr(V_L15)}, 4, v24
        """)

    def kv_dma(self, rnd):
        out = []
        for i in range(5):
            src = (rnd >> 1) * 81920 + (rnd & 1) * 5120 + i * 1024
            out.append(self.vm(f"s_add_u32 m0, {sr(S_KVL)}, {rnd * 40960 + i * 1024}\n"
                               f"s_add_u32 {sr(T2)}, {sr(S_KVB)}, {src}\n"
                               f"buffer_load_dwordx4 {vr(A_L16)}, {sr(R_WS, 4)}, {sr(T2)} offen sc1 lds", f"kv{rnd}"))
        return out

    def att_setup(self):
        out = self.each(f"""
        v_lshrrev_b32 v23, 5, v0
        v_bfe_u32 v24, v0, 3, 2
        v_and_b32 v25, 3, v0
        v_lshl_add_u32 v24, v24, 2, v25
        v_bfe_u32 v25, v0, 2, 1
        v_lshlrev_b32 v26, 9, v23
        v_lshl_add_u32 v26, v25, 8, v26
        v_lshl_add_u32 {vr(A_AK)}, v24, 4, v26
        v_mul_u32_u24 v26, 2560, v23
        v_lshl_add_u32 v26, v24, 4, v26
        v_lshl_add_u32 {vr(A_AKR)}, v25, 3, v26
        v_mul_u32_u24 v26, 192, v23
        v_sub_u32 {vr(A_AV)}, {vr(A_L16)}, v26
        """)
        return out

    def att_consts(self):
        e = self.e
        e.i(f"""
        v_mov_b32 {vr(A_IDX)}, 0xdddddddd
        v_mov_b32 {vr(A_VLO)}, 0
        s_mov_b32 exec_lo, 0x11000000
        s_mov_b32 exec_hi, 0x11000000
        v_mov_b32 {vr(A_VLO)}, 0x3f803f80
        s_mov_b64 exec, -1
        """)
        for r in range(A_VLO + 1, A_VLO + 12):
            e.i(f"v_mov_b32 {vr(r)}, {vr(A_VLO)}")
        for r in range(A_O, A_O + 16):
            e.i(f"v_mov_b32 {vr(r)}, 0")

    def q_loads(self):
        pre = f"""
        s_lshl_b32 {sr(T1)}, {sr(S_HD)}, 6
        s_add_u32 {sr(T1)}, {sr(T1)}, {sr(S_RTQ)}
        s_mul_i32 {sr(T1)}, {sr(T1)}, 1280
        s_add_u32 {sr(T1)}, {sr(T1)}, {OFF_Q}
        """
        return [self.vm(pre + f"buffer_load_dwordx4 {vr(A_QM, 4)}, {vr(A_L16)}, {sr(R_WS, 4)}, {sr(T1)} offen sc1", "q"),
                self.vm(f"buffer_load_dwordx2 {vr(A_QLO, 2)}, {vr(A_QA)}, {sr(R_WS, 4)}, {sr(T1)} offen offset:1024 sc1", "q")]

    def pass2(self, ch):
        e, c = self.e, self.c
        nt = 3 if ch else 4
        p_issue, p_check = self.poll(A_P, A_P + 1, 1, 12, "p1")
        prev = self.mfmas(0, nt, 0, False, False)
        dma = [self.vm(t, g) for s in (12, 13, 14) for t, g in self.dma_stage(s)]
        dma_at = {1: 2, 2: 1, 3: 1, 4: 1, 5: 2, 6: 1, 8: 2, 9: 2}
        for u in range(1, 21):
            s, ksl = 10 + (u >> 2), u & 3
            if ksl == 0 and u < 20:
                self.stage_sync(s, ["e1", "dbg"] if s == c.s_flag1 else [])
                if s == c.s_flag1:
                    self.flag_store(1, True)
            else:
                e.wait(lg="all")
            if u in c.e1u:
                self.q.append(self.e1_store(1 + c.e1u.index(u)))
            for _ in range(dma_at.get(u, 0)):
                self.q += [lambda: None, dma.pop(0)]
            if u == 10:
                self.q += self.job_issue()
            if u == 12:
                self.q += self.gate_issue() + self.poll1_addr()
            if u == 15:
                self.q += self.side_job_read()
            if u == 16:
                self.q += self.spaced(self.side_job_store(), 4)
            if u == c.u_poll1:
                self.q.append(p_issue)
            rate = 2 if u in (10, 11, 12, 13) else 1
            self.unit(prev, self.reads(s, ksl, nt, u & 1) if u < 20 else [], rate=rate,
                      drain=u not in (10, 12, 13, 16))
            if u < 20:
                prev = self.mfmas(u, nt, u & 1, False, False)
        self.stamp("p2end")
        pk = V_WB[0]
        e.i("s_nop 2")
        for p in range(2):
            tiles = [n for n in (2 * p, 2 * p + 1) if n < nt]
            for n in tiles:
                for k in range(8):
                    r = acc(n, 0) + k
                    e.i(f"v_max_f32 {vr(r)}, 0, {vr(r)}")
                for k in range(8):
                    r = acc(n, 0) + k
                    e.i(f"v_mul_f32 {vr(r)}, {vr(r)}, {vr(r)}")
            for rt in range(2):
                b = pk + 8 * p + (4 if len(tiles) == 2 else 2) * rt
                for ab, n in enumerate(tiles):
                    for h in range(2):
                        a = acc(n, rt) + 2 * h
                        e.i(f"v_cvt_pk_bf16_f32 {vr(b + 2 * ab + h)}, {vr(a)}, {vr(a + 1)}")
        self.stamp("u18")
        p_check()
        self.stamp("chk1")
        for x in self.q_loads() + self.kv_dma(0):
            x()

    def bubble(self):
        e = self.e
        for k in range(4):
            if k == 3:
                e.i(f"s_cmp_eq_u32 {sr(S_CH)}, 0\ns_cselect_b32 {sr(S_HST)}, {sr(S_HST)}, {OOB}")
            e.vmem(f"buffer_store_dwordx4 {vr(V_WB[0] + 4 * k, 4)}, {vr(A_L16)}, {sr(R_WS, 4)}, {sr(S_HST)} offen "
                   f"offset:{1024 * k} sc1", "hs")
        for x in self.side_gate() + self.att_setup():
            x()
        self.att_consts()

    def lds_off(self, reg, off):
        base = self.win[reg]
        while off - base > 65535 - 2560:
            base += 61440
            self.e.i(f"v_add_u32 {vr(reg)}, 61440, {vr(reg)}")
        self.win[reg] = base
        return off - base

    def rd_k(self, t):
        if t < 64:
            o = self.lds_off(A_AK, t * 2560)
            self.e.lds(f"ds_read_b128 {vr(A_KM, 4)}, {vr(A_AK)} offset:{o}", f"k{t}")

    def rd_kr(self, t):
        if t < 64:
            o = self.lds_off(A_AKR, t * 2560)
            self.e.lds(f"ds_read_b64 {vr(A_KR, 2)}, {vr(A_AKR)} offset:{o + 1024}", f"r{t}")

    def rd_v(self, t):
        if t < 64:
            e = self.e
            o = self.lds_off(A_AV, t * 2560)
            e.i(f"s_mov_b64 exec, {sr(S_VMASK, 2)}")
            e.lds(f"ds_read_b128 {vr(A_VLO, 4)}, {vr(A_AV)} offset:{o + 1280}", f"vl{t}")
            e.lds(f"ds_read_b128 {vr(A_VHI[t & 1], 4)}, {vr(A_AV)} offset:{o + 1920}", f"vh{t}")
            e.i("s_mov_b64 exec, -1")

    def qk1(self, t):
        self.e.wait(lg=f"k{t}")
        self.e.i(f"v_mfma_f32_32x32x16_bf16 {vr(A_S[t & 1], 16)}, {vr(A_KM, 4)}, {vr(A_QM, 4)}, 0")
        self.rd_k(t + 1)

    def qk2(self, t):
        self.e.wait(lg=f"r{t & ~1}")
        s = vr(A_S[t & 1], 16)
        self.e.i(f"v_mfma_f32_32x32x8_bf16 {s}, {vr(A_KR, 2)}, {vr((A_QLO, A_QHI)[t & 1], 2)}, {s}")
        if t & 1:
            self.rd_kr(t + 1)

    def pvlo(self, t):
        self.e.wait(lg=f"vl{t}")
        self.e.i(f"v_smfmac_f32_32x32x32_bf16 {vr(A_O, 16)}, {vr(A_VLO, 4)}, {vr(A_S[t & 1], 8)}, {vr(A_IDX)}")
        self.rd_v(t + 1)

    def pvhi(self, t):
        self.e.wait(lg=f"vh{t}")
        self.e.i(f"v_smfmac_f32_32x32x32_bf16 {vr(A_O, 16)}, {vr(A_VHI[t & 1], 4)}, {vr(A_S[t & 1] + 8, 8)}, {vr(A_IDX)}")

    def ring_a(self, i, r):
        return A_RING + (i & 1) * 36 + 4 * r

    def ring_w(self, i, n):
        if i == 9:
            return self.ring_a(1, n) if n < 4 else 12
        return A_RING + (i & 1) * 36 + 16 + 4 * n

    def ld_w(self, i, n):
        if i < 7:
            pre = f"s_add_u32 {sr(T2)}, {sr(S_WB)}, {i * 40960 + n * 1024}"
        elif i < 9:
            pre = f"s_add_u32 {sr(T2)}, {sr(S_EPI)}, {(i - 7) * 40960 + n * 1024}"
        else:
            pre = f"s_add_u32 {sr(T2)}, {sr(S_WOB)}, {n * 1024}"
        return self.vm(f"{pre}\nbuffer_load_dwordx4 {vr(self.ring_w(i, n), 4)}, {vr(A_L16)}, {sr(R_WS, 4)}, {sr(T2)} offen sc1",
                       f"w{i}_{n}")

    def ld_a(self, i, r):
        slot = 7 * (i // 3) + 2 * (i % 3) + (r & 1) if i < 6 else 6 + 7 * (r & 1)
        return self.vm(f"s_add_u32 {sr(T2)}, {sr((S_HB, S_HB2)[r >> 1])}, {slot * 1024}\n"
                       f"buffer_load_dwordx4 {vr(self.ring_a(i, r), 4)}, {vr(A_L16)}, {sr(R_WS, 4)}, {sr(T2)} offen sc1",
                       f"a{i}_{r}")

    def facc(self, r, n):
        return A_FACC + (r * 5 + n) * 4

    def ffn_prep(self, fs):
        e = self.e
        tags = []
        for i, n, r in fs:
            tags += [f"w{i}_{n}", f"a{i}_{r}"]
        if (6, 0, 0) in fs:
            tags += [f"a6_{r}" for r in range(4)]
        pend = {t for t in tags if t not in self.issued}
        while pend:
            self.pop(1)
            pend = {t for t in tags if t not in self.issued}
        e.wait(vm=tags)
        if (6, 0, 0) in fs:
            for r in (0, 2):
                for k in range(2):
                    e.i(f"v_swap_b32 {vr(self.ring_a(6, r) + 2 + k)}, {vr(self.ring_a(6, r + 1) + k)}")
            e.i("s_nop 1")

    def ffn_mfma(self, i, n, r):
        d = vr(self.facc(r, n), 4)
        self.e.i(f"v_mfma_f32_16x16x32_bf16 {d}, {vr(self.ring_w(i, n), 4)}, {vr(self.ring_a(i, r), 4)}, {'0' if i == 0 else d}")
        if r == 3:
            self.q.append(self.ld_w(i + 2, n))
        if n == 4:
            if i + 2 < 7:
                self.q.append(self.ld_a(i + 2, r))
            elif i == 5:
                self.q.append(self.ld_w(9, r))
                if r == 3:
                    self.q.append(self.ld_w(9, 4))

    def attention(self):
        e, c = self.e, self.c
        assert c.t_chk2 <= 15
        self.win = {A_AK: 0, A_AKR: 0, A_AV: 0}
        p_issue, p_check = self.poll(A_P, A_P + 1, 2, 32, "p2")
        self.bubble()
        e.i(f"""
        s_lshl_b32 {sr(T1)}, {sr(S_WV)}, 12
        v_lshl_add_u32 {vr(A_P)}, v0, 7, {sr(T1)}
        v_bfe_u32 {vr(A_T)}, v0, 3, 2
        v_and_b32 {vr(A_T + 1)}, 7, v0
        v_lshlrev_b32 {vr(A_T + 1)}, 2, {vr(A_T + 1)}
        v_lshl_add_u32 {vr(A_T)}, {vr(A_T)}, 7, {vr(A_T + 1)}
        v_and_b32 {vr(A_T + 1)}, 0xff, {vr(A_T)}
        s_mul_i32 {sr(T2)}, {sr(S_CT)}, 5120
        s_add_u32 {sr(T2)}, {sr(T2)}, {OFF_WT}
        s_mul_i32 {sr(T1)}, {sr(S_WV)}, {7 * 40960}
        s_add_u32 {sr(S_WB)}, {sr(T1)}, {sr(T2)}
        s_mul_i32 {sr(T1)}, {sr(S_RQ)}, {5 * 40960}
        s_add_u32 {sr(T1)}, {sr(T1)}, {sr(T2)}
        s_add_u32 {sr(S_WOB)}, {sr(T1)}, {60 * 40960}
        s_mul_i32 {sr(T2)}, {sr(S_CH)}, {2 * 40960}
        s_add_u32 {sr(T1)}, {sr(T1)}, {sr(T2)}
        s_add_u32 {sr(S_EPI)}, {sr(T1)}, {56 * 40960}
        s_lshl_b32 {sr(T1)}, {sr(S_RT)}, 1
        s_add_u32 {sr(S_BLK)}, {sr(T1)}, {sr(S_CH)}
        s_mul_i32 {sr(T2)}, {sr(S_WV)}, 14336
        s_add_u32 {sr(T2)}, {sr(T2)}, {OFF_H}
        s_mul_i32 {sr(T1)}, {sr(S_BLK)}, {112 * 1024}
        s_add_u32 {sr(S_HB)}, {sr(T1)}, {sr(T2)}
        s_xor_b32 {sr(T1)}, {sr(S_BLK)}, 1
        s_mul_i32 {sr(T1)}, {sr(T1)}, {112 * 1024}
        s_add_u32 {sr(S_HB2)}, {sr(T1)}, {sr(T2)}
        """)
        e.wait(vm=["kv0", "q"])
        e.i(f"""
        v_mov_b32 {vr(A_QHI)}, {vr(A_QLO)}
        v_mov_b32 {vr(A_QHI + 1)}, {vr(A_QLO + 1)}
        s_mov_b32 exec_hi, 0
        v_mov_b32 {vr(A_QHI)}, 0
        v_mov_b32 {vr(A_QHI + 1)}, 0
        s_not_b64 exec, exec
        v_mov_b32 {vr(A_QLO)}, 0
        v_mov_b32 {vr(A_QLO + 1)}, 0
        s_mov_b64 exec, -1
        s_barrier
        """)
        self.stamp("att0")
        self.rd_k(0)
        self.rd_kr(0)
        ffn = [(i, n, r) for i in range(7) for n in range(5) for r in range(4)]
        nt = 64 - c.ffn_start
        done = 0
        for t in range(65):
            nf = 0
            if c.ffn_start <= t < 64:
                nf = (c.ffn_emb * (t - c.ffn_start + 1) + nt - 1) // nt - done
            fs = ffn[done:done + nf]
            done += nf
            if t == c.t_kv:
                self.q += self.kv_dma(1) + self.kv_dma(2) + self.kv_dma(3)
            if t == c.t_flag2:
                self.stamp("fl2a")
                e.wait(vm=["hs", "gs"])
                e.i("s_barrier")
                self.stamp("fl2b")
                self.flag_store(2, False)
            if t == c.t_poll2:
                assert not self.q
                p_issue()
            if t == c.t_chk2:
                self.stamp("chk2a")
                p_check()
                e.i("s_barrier")
                self.stamp("chk2")
                self.after_flags2()
            self.stamp(f"t{t}")
            self.tile(t, fs)
        e.i("s_setprio 0")
        self.stamp("attend")
        self.ffn_left = ffn[done:]

    def after_flags2(self):
        for i in range(2):
            self.q += [self.ld_w(i, 0)] + [self.ld_a(i, r) for r in range(4)] + [self.ld_w(i, n) for n in range(1, 5)]
        self.q.append(self.vm(f"""
        s_lshl_b32 {sr(T2)}, {sr(S_RTQ)}, 9
        s_add_u32 {sr(T2)}, {sr(T2)}, {OFF_G}
        buffer_load_dword {vr(A_GA)}, {vr(A_T)}, {sr(R_WS, 4)}, {sr(T2)} offen sc1
        """, "g"))
        for r in range(4):
            self.q.append(self.vm(f"""
            s_xor_b32 {sr(T2)}, {sr(S_BLK)}, {r >> 1}
            s_lshl_b32 {sr(T2)}, {sr(T2)}, 9
            s_add_u32 {sr(T2)}, {sr(T2)}, {OFF_G + 256 * (r & 1)}
            buffer_load_dword {vr(A_GF + r)}, {vr(A_T + 1)}, {sr(R_WS, 4)}, {sr(T2)} offen sc1
            """, "g"))

    def pop(self, n):
        for _ in range(n):
            if self.q:
                self.q.pop(0)()

    def tile(self, t, fs):
        e, c = self.e, self.c
        e.i("s_setprio 2")
        if t < 64:
            self.qk1(t)
            self.pop(1)
        if t > 0:
            if t == 64:
                e.i("s_nop 0")
            self.pvlo(t - 1)
        else:
            self.rd_v(0)
        n0 = len(e.lines)
        if t < 64:
            self.qk2(t)
            self.pop(1)
        n1 = len(e.lines)
        if t > 0:
            self.pvhi(t - 1)
        if t == 64:
            return
        if fs:
            self.ffn_prep(fs)
            e.i("s_setprio 3")
        x = A_S[t & 1]
        for k in range(16):
            if k < len(fs):
                self.ffn_mfma(*fs[k])
            if k == len(fs):
                e.i("s_setprio 0")
            if k == (c.qpos if fs else 8):
                e.i("s_setprio 1")
            if k == 0:
                kk = max(i for i in range(n0, n1) if "32x32x8" in e.lines[i])
                pad = 12 - (len(e.lines) - 1 - kk)
                if pad > 0:
                    e.lines.insert(n1, f"s_nop {pad - 1}")
            e.i(f"v_exp_f32 {vr(x + k)}, {vr(x + k)}")

    def fallback(self, back):
        x, m = A_S[0], A_S[1]
        L = []
        A = L.append
        A(f"""
        L_fb:
        v_add_u32 {vr(A_AK)}, {(-self.win[A_AK]) & 0xffffffff:#x}, {vr(A_AK)}
        v_add_u32 {vr(A_AKR)}, {(-self.win[A_AKR]) & 0xffffffff:#x}, {vr(A_AKR)}
        v_add_u32 {vr(A_AV)}, {(-self.win[A_AV]) & 0xffffffff:#x}, {vr(A_AV)}
        v_mov_b32 {vr(m)}, 0xff800000
        """)
        for ps in range(2):
            A(f"s_mov_b32 {sr(T1)}, 0\nL_fb{ps}:")
            for par in range(2):
                A(f"""
                ds_read_b128 {vr(A_KM, 4)}, {vr(A_AK)} offset:{par * 2560}
                ds_read_b64 {vr(A_KR, 2)}, {vr(A_AKR)} offset:1024
                """)
                if ps:
                    A(f"""
                    s_mov_b64 exec, {sr(S_VMASK, 2)}
                    ds_read_b128 {vr(A_VLO, 4)}, {vr(A_AV)} offset:{par * 2560 + 1280}
                    ds_read_b128 {vr(A_VHI[0], 4)}, {vr(A_AV)} offset:{par * 2560 + 1920}
                    s_mov_b64 exec, -1
                    """)
                A(f"""
                s_waitcnt lgkmcnt(0)
                v_mfma_f32_32x32x16_bf16 {vr(x, 16)}, {vr(A_KM, 4)}, {vr(A_QM, 4)}, 0
                v_mfma_f32_32x32x8_bf16 {vr(x, 16)}, {vr(A_KR, 2)}, {vr((A_QLO, A_QHI)[par], 2)}, {vr(x, 16)}
                s_nop 11
                """)
                if ps == 0:
                    for k in range(0, 16, 2):
                        A(f"v_max3_f32 {vr(m)}, {vr(m)}, {vr(x + k)}, {vr(x + k + 1)}")
                else:
                    for k in range(16):
                        A(f"v_sub_f32 {vr(x + k)}, {vr(x + k)}, {vr(m)}\nv_exp_f32 {vr(x + k)}, {vr(x + k)}")
                    A(f"""
                    s_nop 1
                    v_smfmac_f32_32x32x32_bf16 {vr(A_O, 16)}, {vr(A_VLO, 4)}, {vr(x, 8)}, {vr(A_IDX)}
                    v_smfmac_f32_32x32x32_bf16 {vr(A_O, 16)}, {vr(A_VHI[0], 4)}, {vr(x + 8, 8)}, {vr(A_IDX)}
                    s_nop 7
                    """)
            A(f"""
            v_add_u32 {vr(A_AK)}, 5120, {vr(A_AK)}
            v_add_u32 {vr(A_AKR)}, 5120, {vr(A_AKR)}
            """)
            if ps:
                A(f"v_add_u32 {vr(A_AV)}, 5120, {vr(A_AV)}")
            A(f"""
            s_add_u32 {sr(T1)}, {sr(T1)}, 1
            s_cmp_lt_u32 {sr(T1)}, 32
            s_cbranch_scc1 L_fb{ps}
            """)
            if ps == 0:
                A(f"""
                v_mov_b32 {vr(m + 1)}, {vr(m)}
                v_add_u32 {vr(A_AK)}, {(-163840) & 0xffffffff:#x}, {vr(A_AK)}
                v_add_u32 {vr(A_AKR)}, {(-163840) & 0xffffffff:#x}, {vr(A_AKR)}
                v_permlane32_swap_b32 {vr(m)}, {vr(m + 1)}
                s_nop 1
                v_max_f32 {vr(m)}, {vr(m)}, {vr(m + 1)}
                """)
                for r in range(A_O, A_O + 16):
                    A(f"v_mov_b32 {vr(r)}, 0")
        A(f"s_nop 7\ns_branch {back}")
        self.cold.append("\n".join(L))

    def tail(self):
        e, c = self.e, self.c
        o, t0 = A_O, A_P
        back = "L_fb_back"
        e.i("s_nop 11")
        e.i(f"v_mov_b32 {vr(t0)}, {vr(o + 12)}")
        for k in range(12):
            e.i(f"v_fma_f32 {vr(t0)}, {vr(o + k)}, 0, {vr(t0)}")
        lo, hi = (2.0 ** 40, 2.0 ** -20) if c.force_fallback else (2.0 ** -20, 2.0 ** 40)
        e.i(f"""
        v_cmp_nle_f32 vcc, {f32(lo)}, {vr(t0)}
        s_mov_b64 {sr(S_MA, 2)}, vcc
        v_cmp_nge_f32 vcc, {f32(hi)}, {vr(t0)}
        s_or_b64 vcc, vcc, {sr(S_MA, 2)}
        s_cbranch_scc1 L_fb
        """)
        e.label(back)
        self.fallback(back)
        e.wait(vm="g")
        e.i(f"""
        v_rcp_f32 {vr(t0)}, {vr(o + 12)}
        v_and_b32 {vr(t0 + 1)}, 31, v0
        v_mul_f32 {vr(t0)}, {vr(t0)}, {vr(A_GA)}
        v_lshlrev_b32 {vr(t0 + 1)}, 3, {vr(t0 + 1)}
        """)
        for k in range(12):
            e.i(f"v_mul_f32 {vr(o + k)}, {vr(o + k)}, {vr(t0)}")
        for k in range(6):
            e.i(f"v_cvt_pk_bf16_f32 {vr(o + k)}, {vr(o + 2 * k)}, {vr(o + 2 * k + 1)}")
        for k in range(6):
            e.i(f"v_min_u32 {vr(o + k)}, -2, {vr(o + k)}")
        e.vmem(f"buffer_store_dwordx4 {vr(o, 4)}, {vr(A_L16)}, {sr(R_WS, 4)}, {sr(S_OBLK)} offen sc1", "os")
        e.i("s_mov_b32 exec_hi, 0")
        e.vmem(f"buffer_store_dwordx2 {vr(o + 4, 2)}, {vr(t0 + 1)}, {sr(R_WS, 4)}, {sr(S_OBLK)} offen offset:1024 sc1", "os")
        e.i("s_mov_b64 exec, -1")
        for f in self.ffn_left:
            self.ffn_prep([f])
            self.ffn_mfma(*f)
        while self.q:
            self.pop(1)
        e.i(f"""
        v_lshrrev_b32 v1, 4, v0
        v_lshlrev_b32 v2, 3, v1
        v_and_b32 v3, 15, v0
        """)
        so = (S_MA, S_MA + 1, S_MB)
        for k in range(3):
            e.i(f"""
            s_add_u32 {sr(T1)}, {sr(S_WV)}, {8 * k}
            s_mul_i32 {sr(T2)}, {sr(T1)}, 52
            s_lshr_b32 {sr(T2)}, {sr(T2)}, 8
            s_mul_i32 {sr(T3)}, {sr(T2)}, 5
            s_sub_u32 {sr(T1)}, {sr(T1)}, {sr(T3)}
            s_lshl_b32 {sr(T1)}, {sr(T1)}, 5
            s_mul_i32 {sr(T3)}, {sr(S_CT)}, 160
            s_add_u32 {sr(T1)}, {sr(T1)}, {sr(T3)}
            s_lshl_b32 {sr(T3)}, {sr(S_RT)}, 2
            s_add_u32 {sr(T2)}, {sr(T2)}, {sr(T3)}
            s_mul_i32 {sr(T3)}, {sr(T2)}, {16 * 1280}
            s_add_u32 {sr(so[k])}, {sr(T3)}, {sr(T1)}
            s_lshl_b32 {sr(T2)}, {sr(T2)}, 8
            s_add_u32 {sr(T2)}, {sr(T2)}, {OFF_G}
            """)
            e.vmem(f"buffer_load_dwordx2 {vr(106 + 2 * k, 2)}, v2, {sr(R_B2, 4)}, {sr(T1)} offen", "b2")
            e.vmem(f"buffer_load_dword {vr(112 + k)}, {vr(A_T + 1)}, {sr(R_WS, 4)}, {sr(T2)} offen sc1", "b2")
        for r in range(4):
            e.i(f"v_sub_f32 {vr(A_GF + r)}, 1.0, {vr(A_GF + r)}")
        e.i("s_barrier")
        for r in range(4):
            for k in range(20):
                e.i(f"v_mul_f32 {vr(A_FACC + 20 * r + k)}, {vr(A_FACC + 20 * r + k)}, {vr(A_GF + r)}")
        ob, ob2, orem = S_HB, S_HB2, S_WB
        e.i(f"""
        v_lshrrev_b32 v4, 1, v1
        v_mul_u32_u24 v4, 1280, v4
        v_and_b32 v5, 1, v1
        v_lshl_add_u32 v4, v5, 9, v4
        v_lshl_add_u32 v4, v3, 4, v4
        v_mul_u32_u24 v5, 2560, v1
        v_lshl_add_u32 v5, v3, 3, v5
        s_mul_i32 {sr(T1)}, {sr(S_RQ)}, {8 * 1280}
        s_add_u32 {sr(T1)}, {sr(T1)}, {OFF_O}
        s_mul_i32 {sr(T2)}, {sr(S_BLK)}, {32 * 1280}
        s_add_u32 {sr(orem)}, {sr(T1)}, {sr(T2)}
        s_mul_i32 {sr(T3)}, {sr(S_CH)}, {4 * 1280}
        s_add_u32 {sr(ob)}, {sr(orem)}, {sr(T3)}
        s_xor_b32 {sr(T2)}, {sr(S_BLK)}, 1
        s_mul_i32 {sr(T2)}, {sr(T2)}, {32 * 1280}
        s_add_u32 {sr(T1)}, {sr(T1)}, {sr(T3)}
        s_add_u32 {sr(ob2)}, {sr(T1)}, {sr(T2)}
        s_mul_i32 {sr(T1)}, {sr(S_WV)}, 20480
        s_mul_i32 {sr(T2)}, {sr(S_CH)}, 10240
        s_add_u32 {sr(T3)}, {sr(T1)}, {sr(T2)}
        v_add_u32 v6, {sr(T3)}, {vr(A_L16)}
        s_sub_u32 {sr(T3)}, {sr(T1)}, {sr(T2)}
        v_add_u32 v7, {sr(T3)}, {vr(A_L16)}
        s_mov_b32 {sr(S_SPIN)}, {SPIN}
        """)
        oreg = {7: 152, 8: 168, 9: 116}

        def oloads(i):
            if i < 9:
                return [f"buffer_load_dwordx4 {vr(oreg[i] + 4 * r, 4)}, v4, {sr(R_WS, 4)}, {sr((ob, ob2)[r >> 1])} offen "
                        f"offset:{2560 * (i - 7) + 256 * (r & 1)} sc1" for r in range(4)]
            return [f"buffer_load_dwordx2 {vr(oreg[i] + 4 * r + 2 * a, 2)}, v5, {sr(R_WS, 4)}, {sr(orem)} offen "
                    f"offset:{1024 + 1280 * a + 128 * r} sc1" for r in range(2) for a in range(2)]

        def ocheck(i):
            n = 16 if i < 9 else 8
            L = [f"v_max_u32 v1, {vr(oreg[i])}, {vr(oreg[i] + 1)}"]
            L += [f"v_max3_u32 v1, v1, {vr(oreg[i] + k)}, {vr(oreg[i] + k + 1)}" for k in range(2, n, 2)]
            L.append("v_cmp_eq_u32 vcc, -1, v1")
            return "\n".join(L)
        e.wait(vm="os")
        self.stamp("odrain")
        for i in (7, 9, 8):
            for x in oloads(i):
                e.vmem(x, f"o{i}")
        pend = []
        for i in (7, 9, 8):
            e.wait(vm=f"o{i}")
            e.i(ocheck(i) + f"\ns_cbranch_vccnz L_ort{i}")
            e.label(f"L_ook{i}")
            if i == 7:
                self.stamp("oload")
            self.cold.append(f"L_ort{i}:\n" + "\n".join(oloads(i)) + "\ns_waitcnt vmcnt(0)\n" + ocheck(i) + f"""
            s_sub_u32 {sr(S_SPIN)}, {sr(S_SPIN)}, 1
            s_cmp_lt_i32 {sr(S_SPIN)}, 1
            s_cbranch_scc1 L_ook{i}
            s_cbranch_vccnz L_ort{i}
            s_branch L_ook{i}
            """)
            for r in range(2 if i == 9 else 4):
                for n in range(5):
                    d = vr(self.facc(r, n), 4)
                    e.i(f"v_mfma_f32_16x16x32_bf16 {d}, {vr(self.ring_w(i, n), 4)}, {vr(oreg[i] + 4 * r, 4)}, {d}")
                    if i == 8:
                        pend.append(f"ds_write_b128 {vr(6 + (r >> 1))}, {d} offset:{(r * 5 + n) * 1024}")
                        if len(pend) > 8:
                            e.lds(pend.pop(0), "dw")
        e.i("s_nop 0")
        for x in pend:
            e.lds(x, "dw")
        e.i(f"""
        s_lshl_b32 {sr(T1)}, {sr(S_WV)}, 10
        v_add_u32 v9, {sr(T1)}, {vr(A_L16)}
        v_add_u32 v10, 81920, v9
        v_mul_u32_u24 v11, 1280, v3
        v_add_u32 v11, v11, v2
        """)
        for k in range(3):
            e.i(f"v_sub_f32 {vr(112 + k)}, 1.0, {vr(112 + k)}")
        e.wait(lg="all")
        e.i("s_barrier")
        self.stamp("dumped")
        for k in range(3):
            if k == 2:
                e.i(f"s_cmp_ge_u32 {sr(S_WV)}, 4\ns_cbranch_scc1 L_fin")
            if k:
                e.i("v_add_u32 v9, 8192, v9\nv_add_u32 v10, 8192, v10")
            b = 16 + 32 * (k & 1)
            for w in range(8):
                e.lds(f"ds_read_b128 {vr(b + 4 * w, 4)}, {vr(9 + (w >> 2))} offset:{(w & 3) * 20480}", f"rr{w}")
            for j in range(4):
                src = 106 + 2 * k + (j >> 1)
                e.i(f"v_and_b32 {vr(12 + j)}, 0xffff0000, {vr(src)}" if j & 1 else f"v_lshlrev_b32 {vr(12 + j)}, 16, {vr(src)}")
            for w in range(8):
                e.wait(lg=f"rr{w}")
                for j in range(4):
                    if w == 0:
                        e.i(f"v_fma_f32 {vr(12 + j)}, {vr(12 + j)}, {vr(112 + k)}, {vr(b + j)}")
                    else:
                        e.i(f"v_add_f32 {vr(12 + j)}, {vr(12 + j)}, {vr(b + 4 * w + j)}")
            e.i(f"""
            v_cvt_pk_bf16_f32 {vr(b)}, v12, v13
            v_cvt_pk_bf16_f32 {vr(b + 1)}, v14, v15
            buffer_store_dwordx2 {vr(b, 2)}, v11, {sr(R_OUT, 4)}, {sr(so[k])} offen
            """)
        e.label("L_fin")
        if c.dev:
            self.dev_dump()

    def dev_dump(self):
        e = self.e
        e.i(f"""
        s_waitcnt vmcnt(0)
        {"s_memrealtime" if self.c.rt else "s_memtime"} s[36:37]
        s_memrealtime s[12:13]
        s_lshl_b32 {sr(T0)}, s2, 3
        s_add_u32 {sr(T0)}, {sr(T0)}, {sr(S_WV)}
        s_lshl_b32 {sr(T0)}, {sr(T0)}, 7
        s_add_u32 {sr(T0)}, {sr(T0)}, {OFF_DEV}
        s_waitcnt lgkmcnt(0)
        s_mov_b64 exec, 1
        """)
        for k in range(12):
            e.i(f"v_mov_b32 v1, {sr(16 + 2 * k)}\nbuffer_store_dword v1, off, {sr(R_WS, 4)}, {sr(T0)} offset:{4 * k}")
        e.i(f"v_mov_b32 v1, s12\nbuffer_store_dword v1, off, {sr(R_WS, 4)}, {sr(T0)} offset:48")
        e.i(f"v_mov_b32 v1, {sr(S_SPIN)}\nbuffer_store_dword v1, off, {sr(R_WS, 4)}, {sr(T0)} offset:52")
        if self.c.enc >= 0:
            k = self.c.enc
            e.i(f"s_cmp_lg_u32 {sr(T0)}, {OFF_DEV + 296 * 128}\ns_cbranch_scc1 L_end")
            e.i("s_add_u32 s14, s38, 6000" if k == 11 else f"s_add_u32 s14, {sr(16 + 2 * k)}, 6000")
            e.i(f"""
            s_mov_b32 s15, 100000
            L_enc:
            s_memrealtime s[12:13]
            s_waitcnt lgkmcnt(0)
            s_sub_u32 s15, s15, 1
            s_cmp_eq_u32 s15, 0
            s_cbranch_scc1 L_end
            s_sub_u32 s13, s12, s14
            s_cmp_lt_i32 s13, 0
            s_cbranch_scc1 L_enc
            """)
        if self.c.dbgwg >= 0:
            e.i(f"s_cmp_lg_u32 {sr(T0)}, {OFF_DEV + self.c.dbgwg * 128}\ns_cbranch_scc1 L_end")
            for k in range(1, 11):
                e.i(f"s_sub_u32 s13, {sr(16 + 2 * k)}, s16\nv_mov_b32 v1, s13\nbuffer_store_dword v1, off, {sr(R_DBG, 4)}, 0 offset:{4 * k}")
            e.i(f"s_sub_u32 s13, s12, s38\nv_mov_b32 v1, s13\nbuffer_store_dword v1, off, {sr(R_DBG, 4)}, 0 offset:44")

    def build(self):
        e = self.e
        self.prologue()
        e.i(f"s_cmp_ge_u32 {sr(S_SEC)}, 2\ns_cbranch_scc1 L_p1v")
        snap = e.snapshot()
        self.pass1(False)
        after = e.snapshot()
        e.i("s_branch L_p2")
        e.label("L_p1v")
        e.restore(snap)
        self.pass1(True)
        assert e.snapshot() == after
        e.label("L_p2")
        e.i(f"s_cmp_lg_u32 {sr(S_CH)}, 0\ns_cbranch_scc1 L_p2b")
        self.pass2(0)
        after2 = e.snapshot()
        e.i("s_branch L_att")
        e.label("L_p2b")
        e.restore(after)
        self.pass2(1)
        assert e.snapshot() == after2
        e.label("L_att")
        if self.c.stop:
            e.i("s_branch L_fin")
        self.attention()
        self.tail()
        e.label("L_end")
        e.i("s_endpgm")
        for blk in self.cold:
            e.i(blk)
        return e


HEADER = """; Fused gate + multi-head attention block + squared-ReLU FFN, one persistent launch (generated by gen/gen.py).
; @launch grid=(256,1,1) block=(512,1,1) lds=163840
.amdgcn_target "amdgcn-amd-amdhsa--gfx950"
.text
.globl {n}_kernel
.p2align 8
.type {n}_kernel,@function
{n}_kernel:
"""
FOOTER = """
.section .rodata,"a"
.p2align 6
.amdhsa_kernel {n}_kernel
  .amdhsa_next_free_vgpr 256
  .amdhsa_next_free_sgpr 102
  .amdhsa_accum_offset 256
  .amdhsa_group_segment_fixed_size 0
  .amdhsa_kernarg_size 96
  .amdhsa_user_sgpr_count 2
  .amdhsa_user_sgpr_kernarg_segment_ptr 1
  .amdhsa_system_sgpr_workgroup_id_x 1
  .amdhsa_float_denorm_mode_32 3
.end_amdhsa_kernel
"""


def generate(**kw):
    cfg = Cfg()
    for k, v in kw.items():
        assert hasattr(cfg, k), k
        setattr(cfg, k, v)
    e = Gen(cfg).build()
    errs = check_hazards(e.lines)
    if errs:
        for x in errs[:40]:
            print("HAZARD", x, file=sys.stderr)
        raise SystemExit(f"{len(errs)} hazards")
    return HEADER.format(n=NAME) + e.text() + "\n" + FOOTER.format(n=NAME)


if __name__ == "__main__":
    out = sys.argv[1]
    kw = {}
    for a in sys.argv[2:]:
        k, v = a.split("=")
        kw[k] = int(v)
    open(out, "w").write(generate(**kw))
```

```python
import math
import struct
import sys

from asmlib import Emit, check_hazards, sr, vr

NAME = "gated_mix__mha_block__dense_activation_squared_relu__prompt"

OFF_FLG = 0
OFF_G = 32768
OFF_Q = 65536
OFF_KV = OFF_Q + 32 * 64 * 1280
OFF_H = OFF_KV + 32 * 64 * 2560
OFF_WT = OFF_H + 64 * 112 * 1024
OFF_DEV = OFF_WT + 152 * 20 * 1024
WS_SIZE = OFF_DEV + 2048 * 128
OOB = 0x40000000
JOBLDS = 49152
SPIN = 400000


def f32(x):
    return "0x%08x" % struct.unpack("<I", struct.pack("<f", x))[0]


S_WV, S_XCD, S_J, S_RB, S_CG, S_RQ, S_CH, S_M0 = 3, 4, 5, 6, 7, 8, 9, 10
T0, T1, T2, T3, T4 = 11, 12, 13, 14, 15
P_X, P_WQ, P_WO, P_W1, P_B1, P_W2, P_B2, P_GW, P_OUT, P_DBG, P_WS = 16, 18, 20, 24, 26, 28, 30, 32, 34, 36, 38
R_X, R_WQ, R_W1, R_WS, R_JOB, R_B1, R_B2, R_GW, R_OUT, R_DBG = 40, 44, 48, 52, 56, 60, 64, 68, 72, 76
S_HD, S_RTQ, S_RT, S_CT, S_BLK, S_SCALE = 80, 81, 82, 83, 84, 85
S_VMASK = 86
S_EPI, S_JST, S_OBLK, S_HB, S_WB, S_SEC, S_GAM, S_HST = 88, 89, 90, 91, 92, 93, 94, 95
S_HB2, S_WOB = S_SEC, S_GAM
S_MA, S_MB = 96, 98
S_SPIN = 100
S_KVB = 101
S_KVL = 1

V_LANE = 0
V_X0, V_X1, V_W, V_W1 = 1, 2, 3, 4
V_XR = 5
V_WR = 7
V_ST = 11
V_L15, V_G4 = 15, 16
V_WR2 = 17
V_T = 21
V_BIAS = 24
V_ACC = 32
V_WB = (64, 80)
V_XF = 96

A_AK, A_AKR, A_AV, A_IDX, A_GA = 104, 105, 132, 133, 134
A_L16, A_QA = 96, 97
A_T = 98
A_QLO, A_QHI, A_KR, A_QM, A_KM, A_VLO = 106, 108, 110, 112, 116, 120
A_VHI = (124, 128)
A_P = 100
A_O = 136
A_S = (152, 168)
A_RING = 184
A_FACC = 16
A_GF = 8


STAMPSETS = {
    0: [],
    1: ["karg", "b0", "p1end", "p2end", "att0", "chk2", "attend", "odrain", "oload", "dumped"],
    2: ["karg", "b0", "b6", "b2", "b7", "b8", "p1end", "e1end", "b11", "b12"],
    3: ["p1end", "e1end", "b11", "fl1", "b13", "b14", "u18", "chk1", "p2end", "att0"],
    5: ["karg", "iss0", "x", "b0", "x", "x", "x", "x", "x", "p1end"],
    4: ["karg", "att0", "fl2a", "fl2b", "chk2a", "chk2", "t16", "t32", "t48", "attend"],
}


class Cfg:
    dev = 0
    dbgwg = -1
    rt = 0
    enc = -1
    depth = 3
    ffn_start = 24
    ffn_emb = 140
    t_flag2 = 13
    t_kv = 8
    t_poll2 = 18
    t_chk2 = 20
    pre2 = 12
    u_late = 8
    u_flag1 = 8
    u_poll1 = 14
    u_chk1 = 17
    nst0 = 2
    stgap = 3
    qpos = 12
    rdfront = 9
    touch = 0
    perturb = 0
    stop = 0
    force_fallback = False


def acc(n, rt):
    return V_ACC + (n * 2 + rt) * 4


def xf(ks, rt):
    return V_XF + (ks * 2 + rt) * 4


def srd(r, p, size):
    return (f"s_mov_b64 {sr(r, 2)}, {sr(p, 2)}\ns_mov_b32 {sr(r + 2)}, {size}\ns_mov_b32 {sr(r + 3)}, 0x20000\n")


class Gen:
    def __init__(self, cfg):
        self.c = cfg
        self.e = Emit()
        self.cold = []
        self.nlab = 0
        self.q = []
        self.issued = set()

    def stamp(self, name):
        names = STAMPSETS[self.c.dev]
        if name in names:
            op = "s_memrealtime" if self.c.rt else "s_memtime"
            self.e.i(f"{op} {sr(16 + 2 * names.index(name), 2)}")

    def lab(self, base):
        self.nlab += 1
        return f"L_{base}_{self.nlab}"

    def dma_stage(self, s, fill=False):
        slot = (s % 5) * 32768
        out = []
        for i in range(4):
            m0 = slot + (i & 1) * 1024 + (i >> 1) * 16384
            if fill and s < 10 and i >= 2:
                continue
            if s < 10:
                if i < 2:
                    va, r, so = (V_X0, V_X1)[i], R_X, s * 128
                else:
                    va, r, so = V_W, R_WQ, (s * 64 + (i & 1) * 4) * 3840
            else:
                va, r, so = V_W1, R_W1, ((s - 10) * 128 + (i & 1) * 4 + (i >> 1) * 64) * 3456
            out.append((f"s_add_u32 m0, {sr(S_M0)}, {m0}\ns_mov_b32 {sr(S_SPIN)}, {so}\n"
                        f"buffer_load_dwordx4 {vr(va)}, {sr(r, 4)}, {sr(S_SPIN)} offen lds", f"st{s}"))
        return out

    def prologue(self):
        e = self.e
        top = "s_memrealtime" if self.c.rt else "s_memtime"
        e.i(f"""
        s_load_dwordx16 s[16:31], s[0:1], 0
        s_load_dwordx8 s[32:39], s[0:1], 64
        {"s_memrealtime vcc" if self.c.dev else ""}
        s_cmp_ge_u32 s2, 256
        s_cbranch_scc1 L_end
        v_lshrrev_b32 v21, 6, v0
        v_and_b32 v0, 63, v0
        v_readfirstlane_b32 {sr(S_WV)}, v21
        s_and_b32 {sr(S_XCD)}, s2, 7
        s_lshr_b32 {sr(S_J)}, s2, 3
        s_and_b32 {sr(T0)}, {sr(S_XCD)}, 1
        s_and_b32 {sr(T1)}, {sr(S_J)}, 7
        s_lshl3_add_u32 {sr(S_RB)}, {sr(T0)}, {sr(T1)}
        s_lshr_b32 {sr(T0)}, {sr(S_XCD)}, 1
        s_lshr_b32 {sr(T1)}, {sr(S_J)}, 3
        s_lshl2_add_u32 {sr(S_CG)}, {sr(T0)}, {sr(T1)}
        s_lshl_b32 {sr(S_M0)}, {sr(S_WV)}, 11
        v_and_b32 {vr(V_L15)}, 15, v0
        v_lshrrev_b32 {vr(V_G4)}, 4, v0
        v_lshrrev_b32 v21, 3, v0
        v_and_b32 v22, 7, v0
        v_xor_b32 v22, v22, {vr(V_G4)}
        s_lshl3_add_u32 {sr(T0)}, {sr(S_RB)}, {sr(S_WV)}
        s_mulk_i32 {sr(T0)}, 20480
        v_mul_u32_u24 v21, 1280, v21
        v_lshl_add_u32 v21, v22, 4, v21
        v_add_u32 {vr(V_X0)}, {sr(T0)}, v21
        v_xor_b32 {vr(V_X1)}, 64, {vr(V_X0)}
        v_add_u32 {vr(V_X1)}, 10240, {vr(V_X1)}
        s_and_b32 {sr(T0)}, {sr(S_WV)}, 1
        s_lshl_b32 {sr(T0)}, {sr(T0)}, 3
        v_lshl_or_b32 v29, {vr(V_G4)}, 1, {sr(T0)}
        v_xor_b32 v29, v29, {vr(V_L15)}
        s_mul_i32 {sr(T0)}, {sr(S_WV)}, {8 * 3840}
        s_lshl_b32 {sr(T1)}, {sr(S_CG)}, 8
        s_add_u32 {sr(T0)}, {sr(T0)}, {sr(T1)}
        v_mul_u32_u24 v22, 3840, {vr(V_G4)}
        v_lshl_add_u32 v22, v29, 4, v22
        v_add_u32 {vr(V_W)}, {sr(T0)}, v22
        s_mov_b32 {sr(R_X + 2)}, {2048 * 1280}
        s_mov_b32 {sr(R_X + 3)}, 0x20000
        s_cmp_eq_u32 {sr(S_CG)}, 15
        s_cselect_b32 {sr(R_WQ + 2)}, 0, {640 * 3840}
        s_mov_b32 {sr(R_WQ + 3)}, 0x20000
        s_waitcnt lgkmcnt(0)
        s_mov_b64 {sr(R_X, 2)}, {sr(P_X, 2)}
        s_mov_b64 {sr(R_WQ, 2)}, {sr(P_WQ, 2)}
        """)
        if self.c.dev:
            e.i("s_mov_b32 s0, vcc_lo")
        self.stamp("karg")
        for s in range(self.c.depth):
            for txt, tag in self.dma_stage(s):
                e.vmem(txt, tag)
            if s == 0:
                e.i("s_barrier")
                self.stamp("iss0")
                e.i(f"""
                s_and_b32 {sr(S_RQ)}, {sr(S_WV)}, 3
                s_lshr_b32 {sr(S_CH)}, {sr(S_WV)}, 2
                s_lshl_b32 {sr(T0)}, {sr(S_RQ)}, 12
                v_lshrrev_b32 v21, 1, {vr(V_L15)}
                v_xor_b32 v21, v21, {vr(V_G4)}
                v_lshl_add_u32 v21, v21, 4, {sr(T0)}
                v_lshl_add_u32 {vr(V_XR)}, {vr(V_L15)}, 7, v21
                v_xor_b32 {vr(V_XR + 1)}, 64, {vr(V_XR)}
                v_lshrrev_b32 v22, 2, {vr(V_L15)}
                v_lshl_add_u32 v21, {vr(V_G4)}, 3, v22
                v_lshlrev_b32 v21, 8, v21
                v_xor_b32 v23, {sr(S_CH)}, {vr(V_G4)}
                v_and_b32 v23, 1, v23
                v_lshl_add_u32 v22, v23, 2, v22
                v_lshlrev_b32 v22, 1, v22
                v_and_b32 v23, 3, {vr(V_L15)}
                v_lshrrev_b32 v25, 1, v23
                v_xor_b32 v24, v25, v22
                v_lshl_add_u32 v24, v24, 4, v21
                v_and_b32 v26, 1, v23
                v_lshl_add_u32 {vr(V_WR2)}, v26, 3, v24
                s_mul_i32 {sr(S_SEC)}, {sr(S_CG)}, 52
                s_lshr_b32 {sr(S_SEC)}, {sr(S_SEC)}, 8
                """)

    def deferred(self):
        e = self.e
        q = [self.ii(srd(R_WS, P_WS, WS_SIZE) + srd(R_DBG, P_DBG, 256)),
             self.clear_flags,
             self.touch,
             self.ii(srd(R_W1, P_W1, 640 * 3456) + srd(R_B1, P_B1, 3456)),
             self.ii(srd(R_B2, P_B2, 1280) + srd(R_GW, P_GW, 1280) + srd(R_OUT, P_OUT, 2048 * 1280))]
        q += self.each("\n".join(f"v_xor_b32 {vr(V_WR2 + n)}, {n << 5}, {vr(V_WR2)}" for n in range(1, 4)))
        q += self.each(f"""
        v_mul_u32_u24 v22, 3456, {vr(V_G4)}
        v_lshl_add_u32 v22, v29, 4, v22
        s_mul_i32 {sr(T0)}, {sr(S_CG)}, 224
        s_mul_i32 {sr(T1)}, {sr(S_WV)}, {8 * 3456}
        s_add_u32 {sr(T0)}, {sr(T0)}, {sr(T1)}
        v_add_u32 {vr(V_W1)}, {sr(T0)}, v22
        s_cmp_eq_u32 {sr(S_CG)}, 15
        s_cselect_b32 {sr(T0)}, 5, 13
        v_sub_u32 v22, {sr(T0)}, v29
        v_and_b32 v22, {OOB}, v22
        v_or_b32 {vr(V_W1)}, {vr(V_W1)}, v22
        """)
        q += [self.ii(x) for x in f"""
        s_lshr_b32 {sr(T1)}, {sr(S_J)}, 3
        s_lshl2_add_u32 {sr(S_HD)}, {sr(S_XCD)}, {sr(T1)}
        s_and_b32 {sr(T1)}, {sr(S_J)}, 3
        s_lshl2_add_u32 {sr(S_RT)}, {sr(S_XCD)}, {sr(T1)}
        s_lshr_b32 {sr(S_CT)}, {sr(S_J)}, 2
        --
        s_and_b32 {sr(T1)}, {sr(S_J)}, 7
        s_lshl3_add_u32 {sr(S_RTQ)}, {sr(T1)}, {sr(S_WV)}
        s_lshl2_add_u32 {sr(S_BLK)}, {sr(S_RB)}, {sr(S_RQ)}
        s_mul_i32 {sr(T0)}, {sr(S_SEC)}, 5
        s_sub_u32 {sr(S_GAM)}, {sr(S_CG)}, {sr(T0)}
        --
        s_mov_b32 {sr(S_VMASK)}, 0x000fffff
        s_mov_b32 {sr(S_VMASK + 1)}, 0x000fffff
        s_lshl_b32 {sr(T0)}, {sr(S_HD)}, 6
        s_add_u32 {sr(T0)}, {sr(T0)}, {sr(S_RTQ)}
        s_mulk_i32 {sr(T0)}, 1280
        s_add_u32 {sr(S_OBLK)}, {sr(T0)}, {OFF_Q}
        --
        s_lshl4_add_u32 {sr(T0)}, {sr(S_BLK)}, {sr(S_CG)}
        s_mulk_i32 {sr(T0)}, 7
        s_lshl2_add_u32 {sr(T0)}, {sr(S_CH)}, {sr(T0)}
        s_lshl_b32 {sr(T0)}, {sr(T0)}, 10
        s_add_u32 {sr(S_HST)}, {sr(T0)}, {OFF_H}
        --
        s_lshl4_add_u32 {sr(T0)}, {sr(S_HD)}, {sr(S_WV)}
        s_mulk_i32 {sr(T0)}, 10240
        s_add_u32 {sr(S_KVB)}, {sr(T0)}, {OFF_KV}
        s_mul_i32 {sr(S_KVL)}, {sr(S_WV)}, 5120
        """.split("--")]
        q += self.job_setup()
        if self.c.dev:
            q.append(self.ii("s_mov_b32 s38, s0"))
            q.append(lambda: self.stamp("pro"))
        return q

    def touch(self):
        if self.c.touch:
            self.e.i(f"v_lshlrev_b32 v254, 19, v0")
            self.e.vmem(f"buffer_load_dword v254, v254, {sr(R_WS, 4)}, 0 offen sc1", "touch")

    def clear_flags(self):
        go, back = self.lab("init"), self.lab("initr")
        self.e.i(f"""
        s_lshl3_add_u32 {sr(T0)}, s2, {sr(S_WV)}
        s_cmp_eq_u32 {sr(T0)}, 7
        s_cbranch_scc1 {go}
        """)
        self.e.label(back)
        self.cold.append(f"""
        {go}:
        v_lshlrev_b32 v27, 7, v0
        v_mov_b32 v28, 0
        s_mov_b32 {sr(T0)}, 8192
        s_mov_b32 {sr(T1)}, 16384
        s_mov_b32 {sr(T2)}, 24576
        buffer_store_dword v28, v27, {sr(R_WS, 4)}, 0 offen sc1
        buffer_store_dword v28, v27, {sr(R_WS, 4)}, {sr(T0)} offen sc1
        buffer_store_dword v28, v27, {sr(R_WS, 4)}, {sr(T1)} offen sc1
        buffer_store_dword v28, v27, {sr(R_WS, 4)}, {sr(T2)} offen sc1
        s_branch {back}
        """)

    def job_setup(self):
        kap, cp, base, a0, a2, a1, hf, t = T0, T1, T2, T3, T4, S_MA, S_MA + 1, S_MB
        q = [self.ii(x) for x in f"""
        s_lshl3_add_u32 {sr(cp)}, s2, {sr(S_WV)}
        s_mul_i32 {sr(kap)}, {sr(cp)}, 6554
        s_lshr_b32 {sr(kap)}, {sr(kap)}, 16
        s_mul_i32 {sr(base)}, {sr(kap)}, 10
        s_sub_u32 {sr(cp)}, {sr(cp)}, {sr(base)}
        --
        s_and_b32 {sr(hf)}, {sr(kap)}, 1
        s_lshr_b32 {sr(kap)}, {sr(kap)}, 1
        s_mul_i32 {sr(S_JST)}, {sr(kap)}, 10
        s_add_u32 {sr(S_JST)}, {sr(S_JST)}, {sr(cp)}
        s_lshl3_add_u32 {sr(S_JST)}, {sr(S_JST)}, {sr(hf)}
        --
        s_lshl_b32 {sr(S_JST)}, {sr(S_JST)}, 9
        s_add_u32 {sr(S_JST)}, {sr(S_JST)}, {OFF_WT}
        s_cmp_ge_u32 {sr(kap)}, 76
        s_cselect_b32 {sr(S_JST)}, {OOB}, {sr(S_JST)}
        --
        s_cmp_ge_u32 {sr(kap)}, 56
        s_cselect_b64 {sr(R_JOB, 2)}, {sr(P_WO, 2)}, {sr(P_W2, 2)}
        s_mov_b32 {sr(R_JOB + 2)}, {1728 * 1280}
        s_cselect_b32 {sr(R_JOB + 2)}, {640 * 1280}, {sr(R_JOB + 2)}
        s_mov_b32 {sr(R_JOB + 3)}, 0x20000
        --
        s_mul_i32 {sr(a0)}, {sr(kap)}, 9363
        s_lshr_b32 {sr(a0)}, {sr(a0)}, 16
        s_mul_i32 {sr(base)}, {sr(a0)}, 224
        s_mulk_i32 {sr(a0)}, 7
        s_sub_u32 {sr(t)}, {sr(kap)}, {sr(a0)}
        --
        s_lshl_b32 {sr(a0)}, {sr(t)}, 5
        s_cmp_ge_u32 {sr(t)}, 3
        s_cselect_b32 {sr(a2)}, 16, 0
        s_add_u32 {sr(a0)}, {sr(a0)}, {sr(a2)}
        --
        s_cmp_eq_u32 {sr(t)}, 6
        s_cselect_b32 {sr(a0)}, 96, {sr(a0)}
        s_cselect_b32 {sr(a2)}, 112, 16
        s_add_u32 {sr(base)}, {sr(base)}, {sr(a0)}
        s_lshl3_add_u32 {sr(base)}, {sr(hf)}, {sr(base)}
        --
        s_add_u32 {sr(t)}, {sr(kap)}, 4
        s_mul_i32 {sr(a0)}, {sr(t)}, 13108
        s_lshr_b32 {sr(a0)}, {sr(a0)}, 16
        s_mul_i32 {sr(a1)}, {sr(a0)}, 160
        s_mulk_i32 {sr(a0)}, 5
        --
        s_sub_u32 {sr(t)}, {sr(t)}, {sr(a0)}
        s_mul_i32 {sr(a0)}, {sr(t)}, 40
        s_cmp_eq_u32 {sr(t)}, 4
        s_cselect_b32 {sr(a0)}, 16, {sr(a0)}
        s_cselect_b32 {sr(t + 1)}, 80, 20
        s_add_u32 {sr(a1)}, {sr(a1)}, {sr(a0)}
        --
        s_mul_i32 {sr(hf)}, {sr(hf)}, {sr(t + 1)}
        s_add_u32 {sr(a1)}, {sr(a1)}, {sr(hf)}
        s_sub_u32 {sr(a1)}, {sr(a1)}, {12 * 160}
        s_cmp_eq_u32 {sr(t)}, 4
        s_cselect_b32 {sr(a0)}, 40, 4
        s_cselect_b32 {sr(t)}, 20, 8
        --
        s_cmp_ge_u32 {sr(kap)}, 56
        s_cselect_b32 {sr(base)}, {sr(a1)}, {sr(base)}
        s_cselect_b32 {sr(a0)}, {sr(a0)}, 4
        s_cselect_b32 {sr(a2)}, {sr(t)}, {sr(a2)}
        """.split("--")]
        return q + self.each(f"""
        v_lshrrev_b32 v21, 5, v0
        v_mul_u32_u24 v21, {sr(a2)}, v21
        v_bfe_u32 v22, v0, 3, 2
        v_add3_u32 v21, v21, v22, {sr(base)}
        v_mul_u32_u24 v21, 1280, v21
        v_and_b32 v22, 7, v0
        v_lshl_add_u32 v21, v22, 4, v21
        s_lshl_b32 {sr(cp)}, {sr(cp)}, 7
        v_add_u32 v30, {sr(cp)}, v21
        s_mulk_i32 {sr(a0)}, 1280
        v_add_u32 v31, {sr(a0)}, v30
        """)

    def reads(self, s, ksl, ntiles, buf):
        off = (s % 5) * 32768 - ((s % 5) >> 1) * 65536
        xs, ws = [], []
        if s < 10:
            ks = 2 * s + ksl
            for rt in range(2):
                xs.append((f"ds_read_b128 {vr(xf(ks, rt), 4)}, {vr(V_XR + ksl)} offset:{off + rt * 2048}", f"x{buf}{rt}"))
            wbase, wr = off + 16384, V_WR
        else:
            wbase, wr = off, V_WR2
        for n in range(ntiles):
            for q in range(2):
                ws.append((f"ds_read_b64_tr_b16 {vr(V_WB[buf] + 4 * n + 2 * q, 2)}, {vr(wr + n)} "
                           f"offset:{wbase + ksl * 8192 + q * 1024}", f"w{buf}{n}"))
        return xs[:1] + ws[:2] + xs[1:] + ws[2:]

    def window(self, s):
        slot = s % 5
        if s in (0, 10) or slot in (1, 3):
            return []
        d = 65536 if slot in (2, 4) else -131072
        rs = [V_XR, V_XR + 1] + [V_WR + n for n in range(4)] if s < 10 else [V_WR2 + n for n in range(4)]
        return [f"v_add_u32 {vr(r)}, {d & 0xffffffff:#x}, {vr(r)}" for r in rs]

    def mfmas(self, ks, ntiles, buf, vtype, first):
        out = []
        for n in range(ntiles):
            for rt in range(2):
                w, x, d = vr(V_WB[buf] + 4 * n, 4), vr(xf(ks, rt), 4), vr(acc(n, rt), 4)
                a, b = (x, w) if vtype else (w, x)
                out.append((f"v_mfma_f32_16x16x32_bf16 {d}, {a}, {b}, {'0' if first else d}", [f"x{buf}{rt}", f"w{buf}{n}"]))
        return out

    def unit(self, mf, rd, rate=1, drain=False):
        e = self.e
        rd = list(rd)
        nr, done = len(rd), 0
        for k, (m, tags) in enumerate(mf):
            e.wait(lg=tags)
            e.i(m)
            want = min(nr, -(-nr * (k + 1) * self.c.rdfront // (len(mf) * 8)))
            while done < want:
                e.lds(*rd[done])
                done += 1
            for _ in range(rate):
                if self.q:
                    self.q.pop(0)()
        for r in rd[done:]:
            e.lds(*r)
        while drain and self.q:
            self.q.pop(0)()

    def vm(self, txt, tag):
        def f():
            self.e.vmem(txt, tag)
            self.issued.add(tag)
        return f

    def ii(self, txt):
        return lambda: self.e.i(txt)

    def each(self, txt):
        out, cur = [], []
        for ln in txt.strip().split("\n"):
            ln = ln.strip()
            if not ln:
                continue
            cur.append(ln)
            if not ln.startswith("s_"):
                out.append(self.ii("\n".join(cur)))
                cur = []
        if cur:
            out.append(self.ii("\n".join(cur)))
        return out

    def spaced(self, items, gap):
        out = []
        for x in items:
            out.append(x)
            out += [lambda: None] * gap
        return out

    def stage_sync(self, s, vmtags=()):
        e = self.e
        for w in self.window(s):
            e.i(w)
        e.wait(vm=[f"st{s}"] + list(vmtags), lg="all" if (self.c.depth > 3 or (s == 10 and self.c.pre2 > 13)) else None)
        e.i("s_barrier")
        self.stamp(f"b{s}")

    def pass1(self, vtype):
        e = self.e
        if vtype:
            e.i(f"v_mov_b32 {vr(V_WR)}, {vr(V_WR2)}")
        else:
            e.i(f"""
            v_xor_b32 v24, v23, v22
            v_lshl_add_u32 v24, v24, 4, v21
            v_lshl_add_u32 {vr(V_WR)}, v25, 3, v24
            """)
        for n in range(1, 4):
            e.i(f"v_xor_b32 {vr(V_WR + n)}, {n << 5 if vtype else ((n >> 1) << 6) | ((n & 1) << 3)}, {vr(V_WR)}")
        side = self.deferred() + self.epi1_addr(vtype)
        prev = []
        dp = self.c.depth
        for s in range(10):
            for ksl in range(2):
                if ksl == 0:
                    self.stage_sync(s)
                    if s == dp + 1:
                        self.publish_init()
                    if s == 9:
                        assert not side
                        self.q += self.bias_loads()
                    if s + dp <= self.c.pre2:
                        for t, g in self.dma_stage(s + dp):
                            self.q.append(self.vm(t, g))
                            for _ in range(3 if 0 < s < 9 else 1):
                                self.q.append(side.pop(0) if side else (lambda: None))
                self.unit(prev, self.reads(s, ksl, 4, ksl), drain=ksl == 1)
                prev = self.mfmas(2 * s + ksl, 4, ksl, vtype, s == 0 and ksl == 0)
        self.stage_sync(10)
        for s in range(10 + dp, self.c.pre2 + 1):
            self.q += [self.vm(t, g) for t, g in self.dma_stage(s)]
        self.unit(prev, self.reads(10, 0, 4, 0), drain=True)
        self.stamp("p1end")
        self.epi1(vtype)
        self.stamp("e1end")

    def pass1_fill(self):
        e = self.e
        dp = self.c.depth
        for x in self.deferred():
            x()
        for s in range(10):
            self.stage_sync(s)
            for r, tag in self.reads(s, 0, 0, 0) + self.reads(s, 1, 0, 1):
                e.lds(r, tag)
            if s == 9:
                for x in self.bias_loads():
                    x()
            if s + dp <= self.c.pre2:
                for t, g in self.dma_stage(s + dp, True):
                    e.vmem(t, g)
            e.wait(lg="all")
        self.stage_sync(10)
        for r, tag in self.reads(10, 0, 4, 0):
            e.lds(r, tag)
        for s in range(10 + dp, self.c.pre2 + 1):
            for t, g in self.dma_stage(s):
                e.vmem(t, g)
        self.stamp("p1end")
        e.wait(vm="bias")
        e.i(f"s_mov_b32 {sr(T0)}, {OOB}")
        for k in range(4):
            e.vmem(f"buffer_store_dword v0, off, {sr(R_WS, 4)}, {sr(T0)}", "e1")
        self.acc_init()
        self.stamp("e1end")

    def publish_init(self):
        go, back = self.lab("pub"), self.lab("pubr")
        self.e.i(f"""
        s_lshl3_add_u32 {sr(S_SPIN)}, s2, {sr(S_WV)}
        s_cmp_eq_u32 {sr(S_SPIN)}, 7
        s_cbranch_scc1 {go}
        """)
        self.e.label(back)
        self.cold.append(f"""
        {go}:
        v_mov_b32 v255, 1
        s_mov_b64 exec, 1
        buffer_store_dword v255, off, {sr(R_DBG, 4)}, 0 sc1
        s_mov_b64 exec, -1
        s_branch {back}
        """)

    def bias_loads(self):
        out = self.each(f"""
        s_mul_i32 {sr(T1)}, {sr(S_CG)}, 224
        s_lshl_b32 {sr(T2)}, {sr(S_CH)}, 7
        s_add_u32 {sr(T1)}, {sr(T1)}, {sr(T2)}
        v_lshlrev_b32 v21, 3, {vr(V_G4)}
        """)
        regs = (22, 24, 26, 28)
        for n in range(4):
            out.append(self.vm(f"buffer_load_dwordx2 {vr(regs[n], 2)}, v21, {sr(R_B1, 4)}, {sr(T1)} offen offset:{32 * n}",
                               "bias"))
        out.append(self.vm(f"buffer_load_dword v2, off, {sr(R_DBG, 4)}, 0 sc1", "dbg"))
        return out

    def epi1_addr(self, vtype):
        if vtype:
            txt = f"""
            s_lshl1_add_u32 {sr(T1)}, {sr(S_GAM)}, {sr(S_CH)}
            s_lshl_b32 {sr(T1)}, {sr(T1)}, 6
            s_mov_b32 {sr(T2)}, {64 * 2560 - 320}
            v_mul_u32_u24 v26, 320, {vr(V_G4)}
            s_mul_i32 {sr(T3)}, {sr(S_BLK)}, 2560
            s_add_u32 {sr(S_EPI)}, {sr(T3)}, {OFF_KV + 1280}
            """
            for n in range(4):
                txt += f"""
                v_add3_u32 v24, {vr(V_L15)}, {sr(T1)}, {16 * n}
                v_mul_u32_u24 v25, 3277, v24
                v_lshrrev_b32 v25, 16, v25
                v_lshl_add_u32 v24, v24, 4, v26
                v_mad_u32_u24 {vr(V_ST + n)}, v25, {sr(T2)}, v24
                """
            return self.each(txt)
        q = [self.ii(x) for x in f"""
        s_lshl1_add_u32 {sr(T1)}, {sr(S_GAM)}, {sr(S_CH)}
        s_lshl_b32 {sr(T1)}, {sr(T1)}, 3
        s_lshl_b32 {sr(T3)}, 1280, {sr(S_SEC)}
        s_lshl_b32 {sr(T2)}, {sr(T3)}, 6
        s_mul_i32 {sr(T3)}, {sr(T3)}, {sr(S_BLK)}
        --
        s_cmp_eq_u32 {sr(S_SEC)}, 0
        s_mov_b32 {sr(T4)}, {OFF_KV}
        s_cselect_b32 {sr(T4)}, {OFF_Q}, {sr(T4)}
        s_cselect_b32 {sr(S_SCALE)}, {f32(math.log2(math.e) / math.sqrt(20.0))}, 1.0
        s_cselect_b32 {sr(S_WB)}, -2, -1
        s_add_u32 {sr(S_EPI)}, {sr(T3)}, {sr(T4)}
        """.split("--")]
        q += self.each(f"v_lshrrev_b32 v27, 1, {vr(V_G4)}")
        for p in range(2):
            mask, a, b = (S_MA, S_MB)[p], V_ST + 2 * p, V_ST + 2 * p + 1
            q += self.each(f"""
            v_add3_u32 v24, {vr(V_G4)}, {sr(T1)}, {4 * p}
            v_mul_u32_u24 v25, 410, v24
            v_lshrrev_b32 v25, 10, v25
            v_mad_u32_u24 v26, v25, 5, 1
            v_lshrrev_b32 v26, 1, v26
            v_sub_u32 v26, v24, v26
            v_cmp_eq_u32 {sr(mask, 2)}, 2, v26
            v_lshlrev_b32 v26, 9, v26
            v_lshl_add_u32 v26, {vr(V_L15)}, 4, v26
            v_mad_u32_u24 {vr(a)}, v25, {sr(T2)}, v26
            v_add_u32 {vr(b)}, 256, {vr(a)}
            v_xor_b32 v28, 1, v27
            """)
            q.append(self.ii(f"""
            s_mov_b64 exec, {sr(mask, 2)}
            v_mad_u32_u24 {vr(b)}, v28, {sr(T2)}, {vr(a)}
            v_mad_u32_u24 {vr(a)}, v27, {sr(T2)}, {vr(a)}
            s_mov_b64 exec, -1
            """))
        return q

    def acc_init(self):
        e = self.e
        for n in range(4):
            r = 22 + 2 * n
            for h in range(2):
                e.i(f"v_lshlrev_b32 {vr(acc(n, 0) + 2 * h)}, 16, {vr(r + h)}")
                e.i(f"v_and_b32 {vr(acc(n, 0) + 2 * h + 1)}, 0xffff0000, {vr(r + h)}")
            for k in range(4):
                e.i(f"v_mov_b32 {vr(acc(n, 1) + k)}, {vr(acc(n, 0) + k)}")

    def epi1(self, vtype):
        e = self.e
        e.wait(vm="bias")
        e.i("s_nop 1")
        for p in range(2):
            qa, qb = V_WB[1] + 8 * p, V_WB[1] + 8 * p + 4
            if vtype:
                for n, dst in ((2 * p, qa), (2 * p + 1, qb)):
                    for rt in range(2):
                        for h in range(2):
                            a = acc(n, rt) + 2 * h
                            e.i(f"v_cvt_pk_bf16_f32 {vr(dst + 2 * rt + h)}, {vr(a)}, {vr(a + 1)}")
            else:
                for k in range(16):
                    r = acc(2 * p, 0) + k
                    e.i(f"v_mul_f32 {vr(r)}, {sr(S_SCALE)}, {vr(r)}")
                for rt, dst in ((0, qa), (1, qb)):
                    for ab in range(2):
                        for h in range(2):
                            a = acc(2 * p + ab, rt) + 2 * h
                            e.i(f"v_cvt_pk_bf16_f32 {vr(dst + 2 * ab + h)}, {vr(a)}, {vr(a + 1)}")
                for k in range(0, 8, 2):
                    e.i(f"v_and_b32 {vr(qa + k)}, {sr(S_WB)}, {vr(qa + k)}")
                e.i(f"""
                s_mov_b64 exec, {sr((S_MA, S_MB)[p], 2)}
                v_swap_b32 {vr(qa + 2)}, {vr(qb)}
                v_swap_b32 {vr(qa + 3)}, {vr(qb + 1)}
                s_mov_b64 exec, -1
                """)
            for k, q in enumerate((qa, qb)):
                e.vmem(f"buffer_store_dwordx4 {vr(q, 4)}, {vr(V_ST + 2 * p + k)}, {sr(R_WS, 4)}, {sr(S_EPI)} offen sc1", "e1")
        self.acc_init()

    def job_issue(self):
        out = []
        for h in range(2):
            out.append(self.vm(f"s_add_u32 m0, {sr(S_M0)}, {JOBLDS + h * 1024}\ns_nop 0\n"
                               f"buffer_load_dwordx4 {vr(30 + h)}, {sr(R_JOB, 4)}, 0 offen lds", "job"))
        return out

    def job_addr(self):
        out = self.each(f"""
        v_lshlrev_b32 {vr(A_L16)}, 4, v0
        v_lshlrev_b32 {vr(A_T)}, 2, v0
        v_and_b32 v24, 1, {vr(V_G4)}
        v_lshlrev_b32 v27, 10, v24
        v_bfe_u32 v24, v0, 2, 2
        v_lshl_add_u32 v27, v24, 7, v27
        v_lshrrev_b32 v25, 5, v0
        v_lshl_add_u32 v27, v25, 5, v27
        v_and_b32 v24, 3, v0
        v_lshl_add_u32 v27, v24, 3, v27
        v_add_u32 v27, {sr(S_M0)}, v27
        v_lshl_add_u32 v29, v25, 9, {vr(A_L16)}
        """)
        return out

    def gate_issue(self):
        pre = f"""
        s_lshl_b32 {sr(T3)}, {sr(S_RB)}, 4
        s_add_u32 {sr(T3)}, {sr(T3)}, {sr(S_CG)}
        s_lshl_b32 {sr(T3)}, {sr(T3)}, 3
        s_add_u32 {sr(T3)}, {sr(T3)}, {sr(S_WV)}
        s_mul_i32 {sr(T3)}, {sr(T3)}, 1280
        """
        return [self.vm(pre + f"buffer_load_dwordx4 v[136:139], {vr(A_L16)}, {sr(R_X, 4)}, {sr(T3)} offen", "gate"),
                self.vm(f"buffer_load_dword v140, {vr(A_T)}, {sr(R_X, 4)}, {sr(T3)} offen offset:1024", "gate"),
                self.vm(f"buffer_load_dwordx4 v[142:145], {vr(A_L16)}, {sr(R_GW, 4)}, 0 offen", "gate"),
                self.vm(f"buffer_load_dword v146, {vr(A_T)}, {sr(R_GW, 4)}, 0 offen offset:1024", "gate")]

    def flag_store(self, val, check_init):
        e = self.e
        skip = self.lab("nofl")
        e.i(f"s_cmp_lg_u32 {sr(S_WV)}, 0\ns_cbranch_scc1 {skip}")
        if check_init:
            ok, lp = self.lab("iok"), self.lab("ilp")
            e.i(f"v_readfirstlane_b32 {sr(T1)}, v2\ns_cmp_eq_u32 {sr(T1)}, 0\ns_cbranch_scc1 {lp}")
            e.label(ok)
            self.cold.append(f"""
            {lp}:
            s_mov_b32 {sr(S_SPIN)}, {SPIN}
            {lp}_a:
            buffer_load_dword v2, off, {sr(R_DBG, 4)}, 0 sc1
            s_waitcnt vmcnt(0)
            v_readfirstlane_b32 {sr(T1)}, v2
            s_cmp_lg_u32 {sr(T1)}, 0
            s_cbranch_scc1 {ok}
            s_sleep 8
            s_sub_u32 {sr(S_SPIN)}, {sr(S_SPIN)}, 1
            s_cmp_lg_u32 {sr(S_SPIN)}, 0
            s_cbranch_scc1 {lp}_a
            s_branch {ok}
            """)
        e.i(f"""
        s_lshl_b32 {sr(T1)}, {sr(S_CG)}, 4
        s_add_u32 {sr(T1)}, {sr(T1)}, {sr(S_RB)}
        s_lshl_b32 {sr(T1)}, {sr(T1)}, 7
        v_mov_b32 v1, {val}
        s_mov_b64 exec, 1
        buffer_store_dword v1, off, {sr(R_WS, 4)}, {sr(T1)} sc1
        s_mov_b64 exec, -1
        """)
        e.label(skip)

    def side_job_read(self):
        e = self.e

        def f():
            e.wait(vm="job")
            for ph in range(2):
                for q in range(2):
                    e.lds(f"ds_read_b64_tr_b16 {vr(80 + 4 * ph + 2 * q, 2)}, v27 offset:{JOBLDS + q * 512 + ph * 64}", "jr")
        return [f]

    def side_job_store(self):
        return [self.vm(f"buffer_store_dwordx4 {vr(80 + 4 * ph, 4)}, v29, {sr(R_WS, 4)}, {sr(S_JST)} offen offset:{2048 * ph} sc1",
                        "js") for ph in range(2)]

    def side_gate(self):
        e = self.e
        out = [lambda: e.wait(vm="gate")]
        out += self.each("v_dot2_f32_bf16 v22, v136, v142, 0\n" +
                         "\n".join(f"v_dot2_f32_bf16 v22, {vr(136 + i)}, {vr(142 + i)}, v22" for i in range(1, 5)))
        out += self.each("\n".join(f"s_nop {2 if sh == 8 else 1}\nv_add_f32_dpp v22, v22, v22 row_ror:{sh} row_mask:0xf bank_mask:0xf"
                                   for sh in (8, 4, 2, 1)))
        out += self.each(f"""
        s_nop 0
        v_readlane_b32 {sr(T1)}, v22, 16
        v_readlane_b32 {sr(T2)}, v22, 32
        v_readlane_b32 {sr(T3)}, v22, 48
        v_add_f32 v22, {sr(T1)}, v22
        v_add_f32 v22, {sr(T2)}, v22
        v_add_f32 v22, {sr(T3)}, v22
        v_mul_f32 v22, {f32(-math.log2(math.e))}, v22
        v_exp_f32 v22, v22
        s_nop 0
        v_add_f32 v22, 1.0, v22
        v_rcp_f32 v22, v22
        """)
        out.append(self.vm(f"""
        s_lshl4_add_u32 {sr(T1)}, {sr(S_RB)}, {sr(S_CG)}
        s_lshl_b32 {sr(T1)}, {sr(T1)}, 7
        s_lshl2_add_u32 {sr(T1)}, {sr(S_WV)}, {sr(T1)}
        s_add_u32 {sr(T1)}, {sr(T1)}, {OFF_G}
        s_mov_b64 exec, 1
        buffer_store_dword v22, off, {sr(R_WS, 4)}, {sr(T1)} sc1
        s_mov_b64 exec, -1
        """, "gs"))
        return out

    def poll(self, vaddr, vdat, val, nlanes, tag):
        e = self.e
        mask = (1 << nlanes) - 1
        setx = "s_mov_b32 exec_hi, 0" if nlanes == 32 else f"s_mov_b64 exec, {mask:#x}"

        def issue():
            e.i(setx)
            e.vmem(f"buffer_load_dword {vr(vdat)}, {vr(vaddr)}, {sr(R_WS, 4)}, 0 offen sc1", tag)
            e.i("s_mov_b64 exec, -1")

        def check():
            ok, lp = self.lab("pok"), self.lab("plp")
            e.wait(vm=tag)
            e.i(f"""
            v_cmp_gt_u32 vcc, {val}, {vr(vdat)}
            s_and_b32 {sr(T1)}, vcc_lo, {mask:#x}
            s_cbranch_scc1 {lp}
            """)
            e.label(ok)
            self.cold.append(f"""
            {lp}:
            s_mov_b32 {sr(S_SPIN)}, {SPIN}
            {lp}_a:
            {setx}
            buffer_load_dword {vr(vdat)}, {vr(vaddr)}, {sr(R_WS, 4)}, 0 offen sc1
            s_mov_b64 exec, -1
            s_waitcnt vmcnt(0)
            v_cmp_gt_u32 vcc, {val}, {vr(vdat)}
            s_and_b32 {sr(T1)}, vcc_lo, {mask:#x}
            s_cbranch_scc0 {ok}
            s_sub_u32 {sr(S_SPIN)}, {sr(S_SPIN)}, 1
            s_cmp_lg_u32 {sr(S_SPIN)}, 0
            s_cbranch_scc1 {lp}_a
            s_branch {ok}
            """)
        return issue, check

    def poll1_addr(self):
        return self.each(f"""
        s_mul_i32 {sr(T4)}, {sr(S_HD)}, 20
        v_and_b32 v28, 1, v0
        v_mad_u32_u24 v28, v28, 19, {sr(T4)}
        v_lshrrev_b32 v28, 7, v28
        v_lshrrev_b32 v24, 2, v0
        v_mad_u32_u24 v28, v24, 5, v28
        v_bfe_u32 v25, v0, 1, 1
        v_lshl_add_u32 v25, v25, 3, {sr(S_WV)}
        """) + [self.ii(f"""
        s_lshr_b32 {sr(T4)}, {sr(S_RTQ)}, 2
        s_mov_b64 exec, 15
        v_mov_b32 v25, {sr(T4)}
        s_mov_b64 exec, -1
        """)] + self.each(f"""
        v_lshl_add_u32 v28, v28, 4, v25
        v_lshlrev_b32 {vr(A_P)}, 7, v28
        v_bfe_u32 v24, v0, 4, 1
        v_lshlrev_b32 v24, 3, v24
        v_lshl_add_u32 {vr(A_QA)}, {vr(V_L15)}, 4, v24
        """)

    def kv_dma(self, rnd):
        out = []
        for i in range(5):
            src = (rnd >> 1) * 81920 + (rnd & 1) * 5120 + i * 1024
            out.append(self.vm(f"s_add_u32 m0, {sr(S_KVL)}, {rnd * 40960 + i * 1024}\n"
                               f"s_add_u32 {sr(T2)}, {sr(S_KVB)}, {src}\n"
                               f"buffer_load_dwordx4 {vr(A_L16)}, {sr(R_WS, 4)}, {sr(T2)} offen sc1 lds", f"kv{rnd}"))
        return out

    def att_setup(self):
        out = self.each(f"""
        v_lshrrev_b32 v23, 5, v0
        v_bfe_u32 v24, v0, 3, 2
        v_and_b32 v25, 3, v0
        v_lshl_add_u32 v24, v24, 2, v25
        v_bfe_u32 v25, v0, 2, 1
        v_lshlrev_b32 v26, 9, v23
        v_lshl_add_u32 v26, v25, 8, v26
        v_lshl_add_u32 {vr(A_AK)}, v24, 4, v26
        v_mul_u32_u24 v26, 2560, v23
        v_lshl_add_u32 v26, v24, 4, v26
        v_lshl_add_u32 {vr(A_AKR)}, v25, 3, v26
        v_mul_u32_u24 v26, 192, v23
        v_sub_u32 {vr(A_AV)}, {vr(A_L16)}, v26
        """)
        return out

    def att_consts(self):
        e = self.e
        e.i(f"""
        v_mov_b32 {vr(A_IDX)}, 0xdddddddd
        v_mov_b32 {vr(A_VLO)}, 0
        s_mov_b32 exec_lo, 0x11000000
        s_mov_b32 exec_hi, 0x11000000
        v_mov_b32 {vr(A_VLO)}, 0x3f803f80
        s_mov_b64 exec, -1
        """)
        for r in range(A_VLO + 1, A_VLO + 12):
            e.i(f"v_mov_b32 {vr(r)}, {vr(A_VLO)}")
        for r in range(A_O, A_O + 16):
            e.i(f"v_mov_b32 {vr(r)}, 0")

    def q_loads(self):
        return [self.vm(f"buffer_load_dwordx4 {vr(A_QM, 4)}, {vr(A_L16)}, {sr(R_WS, 4)}, {sr(S_OBLK)} offen sc1", "q"),
                self.vm(f"buffer_load_dwordx2 {vr(A_QLO, 2)}, {vr(A_QA)}, {sr(R_WS, 4)}, {sr(S_OBLK)} offen offset:1024 sc1", "q")]

    def pass2(self, ch):
        e, c = self.e, self.c
        nt = 3 if ch else 4
        p_issue, p_check = self.poll(A_P, A_P + 1, 1, 12, "p1")
        prev = self.mfmas(0, nt, 0, False, False)
        late = [self.vm(t, g) for s in range(c.pre2 + 1, 15) for t, g in self.dma_stage(s)]
        late += self.job_issue() + self.gate_issue()

        def chk():
            self.stamp("u18")
            p_check()
            self.stamp("chk1")
        for u in range(1, 21):
            s, ksl = 10 + (u >> 2), u & 3
            if ksl == 0 and u < 20:
                assert len(late) <= 6 + 4 * (14 - s)
                self.stage_sync(s, ["e1", "dbg"] if u == c.u_flag1 else [])
            elif u == c.u_flag1:
                e.wait(vm=["e1", "dbg"])
                e.i("s_barrier")
            if u == c.u_flag1:
                self.stamp("fl1")
                self.flag_store(1, True)
            if u == 2:
                self.q += self.job_addr() + self.poll1_addr()
            if u >= c.u_late:
                for _ in range(3):
                    if late and (len(late) > 6 or u >= 12):
                        self.q += [late.pop(0), lambda: None]
            if u == c.u_poll1:
                assert not late
                self.q.append(p_issue)
            if u == c.u_chk1:
                self.q += [chk] + self.q_loads() + self.kv_dma(0)
            self.unit(prev, self.reads(s, ksl, nt, u & 1) if u < 20 else [],
                      drain=u >= c.u_late - 1 and u != c.u_chk1 or u == 20)
            if u < 20:
                prev = self.mfmas(u, nt, u & 1, False, False)
        self.stamp("p2end")
        pk = V_WB[0]
        e.i("s_nop 2")
        for p in range(2):
            tiles = [n for n in (2 * p, 2 * p + 1) if n < nt]
            for n in tiles:
                for k in range(8):
                    r = acc(n, 0) + k
                    e.i(f"v_max_f32 {vr(r)}, 0, {vr(r)}")
                for k in range(8):
                    r = acc(n, 0) + k
                    e.i(f"v_mul_f32 {vr(r)}, {vr(r)}, {vr(r)}")
            for rt in range(2):
                b = pk + 8 * p + (4 if len(tiles) == 2 else 2) * rt
                for ab, n in enumerate(tiles):
                    for h in range(2):
                        a = acc(n, rt) + 2 * h
                        e.i(f"v_cvt_pk_bf16_f32 {vr(b + 2 * ab + h)}, {vr(a)}, {vr(a + 1)}")
        if c.u_chk1 > 20:
            for x in [chk] + self.q_loads() + self.kv_dma(0):
                x()
        e.wait(lg="all")

    def bubble(self):
        e = self.e
        self.side_job_read()[0]()
        e.i("s_barrier")
        st = []
        for k in range(4):
            pre = f"s_cmp_eq_u32 {sr(S_CH)}, 0\ns_cselect_b32 {sr(S_HST)}, {sr(S_HST)}, {OOB}\n" if k == 3 else ""
            st.append(self.vm(pre + f"buffer_store_dwordx4 {vr(V_WB[0] + 4 * k, 4)}, {vr(A_L16)}, {sr(R_WS, 4)}, {sr(S_HST)} offen "
                              f"offset:{1024 * k} sc1", "hs"))
        gate = self.side_gate()
        st += self.side_job_store() + [gate.pop()]
        for x in st[:self.c.nst0] + gate + self.att_setup():
            x()
        self.att_consts()
        e.wait(lg="all")
        return st[self.c.nst0:]

    def lds_off(self, reg, off):
        base = self.win[reg]
        while off - base > 65535 - 2560:
            base += 61440
            self.e.i(f"v_add_u32 {vr(reg)}, 61440, {vr(reg)}")
        self.win[reg] = base
        return off - base

    def rd_k(self, t):
        if t < 64:
            o = self.lds_off(A_AK, t * 2560)
            self.e.lds(f"ds_read_b128 {vr(A_KM, 4)}, {vr(A_AK)} offset:{o}", f"k{t}")

    def rd_kr(self, t):
        if t < 64:
            o = self.lds_off(A_AKR, t * 2560)
            self.e.lds(f"ds_read_b64 {vr(A_KR, 2)}, {vr(A_AKR)} offset:{o + 1024}", f"r{t}")

    def rd_v(self, t):
        if t < 64:
            e = self.e
            o = self.lds_off(A_AV, t * 2560)
            e.i(f"s_mov_b64 exec, {sr(S_VMASK, 2)}")
            e.lds(f"ds_read_b128 {vr(A_VLO, 4)}, {vr(A_AV)} offset:{o + 1280}", f"vl{t}")
            e.lds(f"ds_read_b128 {vr(A_VHI[t & 1], 4)}, {vr(A_AV)} offset:{o + 1920}", f"vh{t}")
            e.i("s_mov_b64 exec, -1")

    def qk1(self, t):
        self.e.wait(lg=f"k{t}")
        self.e.i(f"v_mfma_f32_32x32x16_bf16 {vr(A_S[t & 1], 16)}, {vr(A_KM, 4)}, {vr(A_QM, 4)}, 0")
        self.rd_k(t + 1)

    def qk2(self, t):
        self.e.wait(lg=f"r{t & ~1}")
        s = vr(A_S[t & 1], 16)
        self.e.i(f"v_mfma_f32_32x32x8_bf16 {s}, {vr(A_KR, 2)}, {vr((A_QLO, A_QHI)[t & 1], 2)}, {s}")
        if t & 1:
            self.rd_kr(t + 1)

    def pvlo(self, t):
        self.e.wait(lg=f"vl{t}")
        self.e.i(f"v_smfmac_f32_32x32x32_bf16 {vr(A_O, 16)}, {vr(A_VLO, 4)}, {vr(A_S[t & 1], 8)}, {vr(A_IDX)}")
        self.rd_v(t + 1)

    def pvhi(self, t):
        self.e.wait(lg=f"vh{t}")
        self.e.i(f"v_smfmac_f32_32x32x32_bf16 {vr(A_O, 16)}, {vr(A_VHI[t & 1], 4)}, {vr(A_S[t & 1] + 8, 8)}, {vr(A_IDX)}")

    def ring_a(self, i, r):
        return A_RING + (i & 1) * 36 + 4 * r

    def ring_w(self, i, n):
        if i == 9:
            return self.ring_a(1, n) if n < 4 else 12
        return A_RING + (i & 1) * 36 + 16 + 4 * n

    def ld_w(self, i, n):
        if i < 7:
            pre = f"s_add_u32 {sr(T2)}, {sr(S_WB)}, {i * 40960 + n * 1024}"
        elif i < 9:
            pre = f"s_add_u32 {sr(T2)}, {sr(S_EPI)}, {(i - 7) * 40960 + n * 1024}"
        else:
            pre = f"s_add_u32 {sr(T2)}, {sr(S_WOB)}, {n * 1024}"
        return self.vm(f"{pre}\nbuffer_load_dwordx4 {vr(self.ring_w(i, n), 4)}, {vr(A_L16)}, {sr(R_WS, 4)}, {sr(T2)} offen sc1",
                       f"w{i}_{n}")

    def ld_a(self, i, r):
        slot = 7 * (i // 3) + 2 * (i % 3) + (r & 1) if i < 6 else 6 + 7 * (r & 1)
        return self.vm(f"s_add_u32 {sr(T2)}, {sr((S_HB, S_HB2)[r >> 1])}, {slot * 1024}\n"
                       f"buffer_load_dwordx4 {vr(self.ring_a(i, r), 4)}, {vr(A_L16)}, {sr(R_WS, 4)}, {sr(T2)} offen sc1",
                       f"a{i}_{r}")

    def facc(self, r, n):
        return A_FACC + (r * 5 + n) * 4

    def ffn_prep(self, fs):
        e = self.e
        tags = []
        for i, n, r in fs:
            tags += [f"w{i}_{n}", f"a{i}_{r}"]
        if (6, 0, 0) in fs:
            tags += [f"a6_{r}" for r in range(4)]
        pend = {t for t in tags if t not in self.issued}
        while pend:
            self.pop(1)
            pend = {t for t in tags if t not in self.issued}
        e.wait(vm=tags)
        if (6, 0, 0) in fs:
            for r in (0, 2):
                for k in range(2):
                    e.i(f"v_swap_b32 {vr(self.ring_a(6, r) + 2 + k)}, {vr(self.ring_a(6, r + 1) + k)}")
            e.i("s_nop 1")

    def ffn_mfma(self, i, n, r):
        d = vr(self.facc(r, n), 4)
        self.e.i(f"v_mfma_f32_16x16x32_bf16 {d}, {vr(self.ring_w(i, n), 4)}, {vr(self.ring_a(i, r), 4)}, {'0' if i == 0 else d}")
        if r == 3:
            self.q.append(self.ld_w(i + 2, n))
        if n == 4:
            if i + 2 < 7:
                self.q.append(self.ld_a(i + 2, r))
            elif i == 5:
                self.q.append(self.ld_w(9, r))
                if r == 3:
                    self.q.append(self.ld_w(9, 4))

    def attention(self):
        e, c = self.e, self.c
        assert c.t_flag2 <= 15 and c.t_chk2 <= 31
        self.win = {A_AK: 0, A_AKR: 0, A_AV: 0}
        p_issue, p_check = self.poll(A_P, A_P + 1, 2, 32, "p2")
        left = self.bubble()
        e.i(f"""
        s_lshl_b32 {sr(T1)}, {sr(S_WV)}, 12
        v_lshl_add_u32 {vr(A_P)}, v0, 7, {sr(T1)}
        v_bfe_u32 {vr(A_T)}, v0, 3, 2
        v_and_b32 {vr(A_T + 1)}, 7, v0
        v_lshlrev_b32 {vr(A_T + 1)}, 2, {vr(A_T + 1)}
        v_lshl_add_u32 {vr(A_T)}, {vr(A_T)}, 7, {vr(A_T + 1)}
        v_and_b32 {vr(A_T + 1)}, 0xff, {vr(A_T)}
        s_mul_i32 {sr(T2)}, {sr(S_CT)}, 5120
        s_add_u32 {sr(T2)}, {sr(T2)}, {OFF_WT}
        s_mul_i32 {sr(T1)}, {sr(S_WV)}, {7 * 40960}
        s_add_u32 {sr(S_WB)}, {sr(T1)}, {sr(T2)}
        s_mul_i32 {sr(T1)}, {sr(S_RQ)}, {5 * 40960}
        s_add_u32 {sr(T1)}, {sr(T1)}, {sr(T2)}
        s_add_u32 {sr(S_WOB)}, {sr(T1)}, {60 * 40960}
        s_mul_i32 {sr(T2)}, {sr(S_CH)}, {2 * 40960}
        s_add_u32 {sr(T1)}, {sr(T1)}, {sr(T2)}
        s_add_u32 {sr(S_EPI)}, {sr(T1)}, {56 * 40960}
        s_lshl_b32 {sr(T1)}, {sr(S_RT)}, 1
        s_add_u32 {sr(S_BLK)}, {sr(T1)}, {sr(S_CH)}
        s_mul_i32 {sr(T2)}, {sr(S_WV)}, 14336
        s_add_u32 {sr(T2)}, {sr(T2)}, {OFF_H}
        s_mul_i32 {sr(T1)}, {sr(S_BLK)}, {112 * 1024}
        s_add_u32 {sr(S_HB)}, {sr(T1)}, {sr(T2)}
        s_xor_b32 {sr(T1)}, {sr(S_BLK)}, 1
        s_mul_i32 {sr(T1)}, {sr(T1)}, {112 * 1024}
        s_add_u32 {sr(S_HB2)}, {sr(T1)}, {sr(T2)}
        """)
        e.wait(vm=["kv0", "q"])
        e.i(f"""
        v_mov_b32 {vr(A_QHI)}, {vr(A_QLO)}
        v_mov_b32 {vr(A_QHI + 1)}, {vr(A_QLO + 1)}
        s_mov_b32 exec_hi, 0
        v_mov_b32 {vr(A_QHI)}, 0
        v_mov_b32 {vr(A_QHI + 1)}, 0
        s_not_b64 exec, exec
        v_mov_b32 {vr(A_QLO)}, 0
        v_mov_b32 {vr(A_QLO + 1)}, 0
        s_mov_b64 exec, -1
        s_barrier
        """)
        self.stamp("att0")
        self.rd_k(0)
        self.rd_kr(0)
        self.q += self.spaced(left, c.stgap)[:-c.stgap]
        ffn = [(i, n, r) for i in range(7) for n in range(5) for r in range(4)]
        nt = 64 - c.ffn_start
        done = 0
        for t in range(65):
            nf = 0
            if c.ffn_start <= t < 64:
                nf = (c.ffn_emb * (t - c.ffn_start + 1) + nt - 1) // nt - done
            fs = ffn[done:done + nf]
            done += nf
            if t == c.t_kv:
                self.q += self.kv_dma(1)
            if t == c.t_flag2:
                assert "gs" in self.issued
                self.stamp("fl2a")
                assert not self.q
                e.wait(vm=["hs", "gs", "kv1"])
                e.i("s_barrier")
                self.stamp("fl2b")
                self.flag_store(2, False)
                self.q += self.kv_dma(2) + self.kv_dma(3)
            if t == c.t_poll2:
                assert not self.q
                p_issue()
            if t == c.t_chk2:
                self.stamp("chk2a")
                p_check()
                e.i("s_barrier")
                self.stamp("chk2")
                self.after_flags2()
            self.stamp(f"t{t}")
            self.tile(t, fs)
        e.i("s_setprio 0")
        self.stamp("attend")
        self.ffn_left = ffn[done:]

    def after_flags2(self):
        for i in range(2):
            self.q += [self.ld_w(i, 0)] + [self.ld_a(i, r) for r in range(4)] + [self.ld_w(i, n) for n in range(1, 5)]
        self.q.append(self.vm(f"""
        s_lshl_b32 {sr(T2)}, {sr(S_RTQ)}, 9
        s_add_u32 {sr(T2)}, {sr(T2)}, {OFF_G}
        buffer_load_dword {vr(A_GA)}, {vr(A_T)}, {sr(R_WS, 4)}, {sr(T2)} offen sc1
        """, "g"))
        for r in range(4):
            self.q.append(self.vm(f"""
            s_xor_b32 {sr(T2)}, {sr(S_BLK)}, {r >> 1}
            s_lshl_b32 {sr(T2)}, {sr(T2)}, 9
            s_add_u32 {sr(T2)}, {sr(T2)}, {OFF_G + 256 * (r & 1)}
            buffer_load_dword {vr(A_GF + r)}, {vr(A_T + 1)}, {sr(R_WS, 4)}, {sr(T2)} offen sc1
            """, "g"))

    def pop(self, n):
        for _ in range(n):
            if self.q:
                self.q.pop(0)()

    def tile(self, t, fs):
        e, c = self.e, self.c
        e.i("s_setprio 2")
        if t < 64:
            self.qk1(t)
            self.pop(1)
        if t > 0:
            if t == 64:
                e.i("s_nop 0")
            self.pvlo(t - 1)
        else:
            self.rd_v(0)
        n0 = len(e.lines)
        if t < 64:
            self.qk2(t)
            self.pop(1)
        n1 = len(e.lines)
        if t > 0:
            self.pvhi(t - 1)
        if t == 64:
            return
        if fs:
            self.ffn_prep(fs)
            e.i("s_setprio 3")
        x = A_S[t & 1]
        for k in range(16):
            if k < len(fs):
                self.ffn_mfma(*fs[k])
            if k == len(fs):
                e.i("s_setprio 0")
            if k == (c.qpos if fs else 8):
                e.i("s_setprio 1")
            if k == 0:
                kk = max(i for i in range(n0, n1) if "32x32x8" in e.lines[i])
                pad = 12 - (len(e.lines) - 1 - kk)
                if pad > 0:
                    e.lines.insert(n1, f"s_nop {pad - 1}")
            e.i(f"v_exp_f32 {vr(x + k)}, {vr(x + k)}")

    def fallback(self, back):
        x, m = A_S[0], A_S[1]
        L = []
        A = L.append
        A(f"""
        L_fb:
        v_add_u32 {vr(A_AK)}, {(-self.win[A_AK]) & 0xffffffff:#x}, {vr(A_AK)}
        v_add_u32 {vr(A_AKR)}, {(-self.win[A_AKR]) & 0xffffffff:#x}, {vr(A_AKR)}
        v_add_u32 {vr(A_AV)}, {(-self.win[A_AV]) & 0xffffffff:#x}, {vr(A_AV)}
        v_mov_b32 {vr(m)}, 0xff800000
        """)
        for ps in range(2):
            A(f"s_mov_b32 {sr(T1)}, 0\nL_fb{ps}:")
            for par in range(2):
                A(f"""
                ds_read_b128 {vr(A_KM, 4)}, {vr(A_AK)} offset:{par * 2560}
                ds_read_b64 {vr(A_KR, 2)}, {vr(A_AKR)} offset:1024
                """)
                if ps:
                    A(f"""
                    s_mov_b64 exec, {sr(S_VMASK, 2)}
                    ds_read_b128 {vr(A_VLO, 4)}, {vr(A_AV)} offset:{par * 2560 + 1280}
                    ds_read_b128 {vr(A_VHI[0], 4)}, {vr(A_AV)} offset:{par * 2560 + 1920}
                    s_mov_b64 exec, -1
                    """)
                A(f"""
                s_waitcnt lgkmcnt(0)
                v_mfma_f32_32x32x16_bf16 {vr(x, 16)}, {vr(A_KM, 4)}, {vr(A_QM, 4)}, 0
                v_mfma_f32_32x32x8_bf16 {vr(x, 16)}, {vr(A_KR, 2)}, {vr((A_QLO, A_QHI)[par], 2)}, {vr(x, 16)}
                s_nop 11
                """)
                if ps == 0:
                    for k in range(0, 16, 2):
                        A(f"v_max3_f32 {vr(m)}, {vr(m)}, {vr(x + k)}, {vr(x + k + 1)}")
                else:
                    for k in range(16):
                        A(f"v_sub_f32 {vr(x + k)}, {vr(x + k)}, {vr(m)}\nv_exp_f32 {vr(x + k)}, {vr(x + k)}")
                    A(f"""
                    s_nop 1
                    v_smfmac_f32_32x32x32_bf16 {vr(A_O, 16)}, {vr(A_VLO, 4)}, {vr(x, 8)}, {vr(A_IDX)}
                    v_smfmac_f32_32x32x32_bf16 {vr(A_O, 16)}, {vr(A_VHI[0], 4)}, {vr(x + 8, 8)}, {vr(A_IDX)}
                    s_nop 7
                    """)
            A(f"""
            v_add_u32 {vr(A_AK)}, 5120, {vr(A_AK)}
            v_add_u32 {vr(A_AKR)}, 5120, {vr(A_AKR)}
            """)
            if ps:
                A(f"v_add_u32 {vr(A_AV)}, 5120, {vr(A_AV)}")
            A(f"""
            s_add_u32 {sr(T1)}, {sr(T1)}, 1
            s_cmp_lt_u32 {sr(T1)}, 32
            s_cbranch_scc1 L_fb{ps}
            """)
            if ps == 0:
                A(f"""
                v_mov_b32 {vr(m + 1)}, {vr(m)}
                v_add_u32 {vr(A_AK)}, {(-163840) & 0xffffffff:#x}, {vr(A_AK)}
                v_add_u32 {vr(A_AKR)}, {(-163840) & 0xffffffff:#x}, {vr(A_AKR)}
                v_permlane32_swap_b32 {vr(m)}, {vr(m + 1)}
                s_nop 1
                v_max_f32 {vr(m)}, {vr(m)}, {vr(m + 1)}
                """)
                for r in range(A_O, A_O + 16):
                    A(f"v_mov_b32 {vr(r)}, 0")
        A(f"s_nop 7\ns_branch {back}")
        self.cold.append("\n".join(L))

    def tail(self):
        e, c = self.e, self.c
        o, t0 = A_O, A_P
        back = "L_fb_back"
        e.i("s_nop 11")
        e.i(f"v_mov_b32 {vr(t0)}, {vr(o + 12)}")
        for k in range(12):
            e.i(f"v_fma_f32 {vr(t0)}, {vr(o + k)}, 0, {vr(t0)}")
        lo, hi = (2.0 ** 40, 2.0 ** -20) if c.force_fallback else (2.0 ** -20, 2.0 ** 40)
        e.i(f"""
        v_cmp_nle_f32 vcc, {f32(lo)}, {vr(t0)}
        s_mov_b64 {sr(S_MA, 2)}, vcc
        v_cmp_nge_f32 vcc, {f32(hi)}, {vr(t0)}
        s_or_b64 vcc, vcc, {sr(S_MA, 2)}
        s_cbranch_scc1 L_fb
        """)
        e.label(back)
        self.fallback(back)
        e.wait(vm="g")
        e.i(f"""
        v_rcp_f32 {vr(t0)}, {vr(o + 12)}
        v_and_b32 {vr(t0 + 1)}, 31, v0
        v_mul_f32 {vr(t0)}, {vr(t0)}, {vr(A_GA)}
        v_lshlrev_b32 {vr(t0 + 1)}, 3, {vr(t0 + 1)}
        """)
        for k in range(12):
            e.i(f"v_mul_f32 {vr(o + k)}, {vr(o + k)}, {vr(t0)}")
        for k in range(6):
            e.i(f"v_cvt_pk_bf16_f32 {vr(o + k)}, {vr(o + 2 * k)}, {vr(o + 2 * k + 1)}")
        for k in range(0, 6, 2):
            e.i(f"v_or_b32 {vr(o + k)}, 1, {vr(o + k)}")
        e.vmem(f"buffer_store_dwordx4 {vr(o, 4)}, {vr(A_L16)}, {sr(R_WS, 4)}, {sr(S_OBLK)} offen sc1", "os")
        e.i("s_mov_b32 exec_hi, 0")
        e.vmem(f"buffer_store_dwordx2 {vr(o + 4, 2)}, {vr(t0 + 1)}, {sr(R_WS, 4)}, {sr(S_OBLK)} offen offset:1024 sc1", "os")
        e.i("s_mov_b64 exec, -1")
        for f in self.ffn_left:
            self.ffn_prep([f])
            self.ffn_mfma(*f)
        while self.q:
            self.pop(1)
        e.i(f"""
        v_lshrrev_b32 v1, 4, v0
        v_lshlrev_b32 v2, 3, v1
        v_and_b32 v3, 15, v0
        """)
        so = (S_MA, S_MA + 1, S_MB)
        for k in range(3):
            e.i(f"""
            s_add_u32 {sr(T1)}, {sr(S_WV)}, {8 * k}
            s_mul_i32 {sr(T2)}, {sr(T1)}, 52
            s_lshr_b32 {sr(T2)}, {sr(T2)}, 8
            s_mul_i32 {sr(T3)}, {sr(T2)}, 5
            s_sub_u32 {sr(T1)}, {sr(T1)}, {sr(T3)}
            s_lshl_b32 {sr(T1)}, {sr(T1)}, 5
            s_mul_i32 {sr(T3)}, {sr(S_CT)}, 160
            s_add_u32 {sr(T1)}, {sr(T1)}, {sr(T3)}
            s_lshl_b32 {sr(T3)}, {sr(S_RT)}, 2
            s_add_u32 {sr(T2)}, {sr(T2)}, {sr(T3)}
            s_mul_i32 {sr(T3)}, {sr(T2)}, {16 * 1280}
            s_add_u32 {sr(so[k])}, {sr(T3)}, {sr(T1)}
            s_lshl_b32 {sr(T2)}, {sr(T2)}, 8
            s_add_u32 {sr(T2)}, {sr(T2)}, {OFF_G}
            """)
            e.vmem(f"buffer_load_dwordx2 {vr(106 + 2 * k, 2)}, v2, {sr(R_B2, 4)}, {sr(T1)} offen", "b2")
            e.vmem(f"buffer_load_dword {vr(112 + k)}, {vr(A_T + 1)}, {sr(R_WS, 4)}, {sr(T2)} offen sc1", "b2")
        for r in range(4):
            e.i(f"v_sub_f32 {vr(A_GF + r)}, 1.0, {vr(A_GF + r)}")
        e.i("s_barrier")
        for r in range(4):
            for k in range(20):
                e.i(f"v_mul_f32 {vr(A_FACC + 20 * r + k)}, {vr(A_FACC + 20 * r + k)}, {vr(A_GF + r)}")
        ob, ob2, orem = S_HB, S_HB2, S_WB
        hs = 64 * 1280
        e.i(f"""
        v_lshrrev_b32 v4, 1, v1
        v_mul_u32_u24 v4, {hs}, v4
        v_and_b32 v5, 1, v1
        v_lshl_add_u32 v4, v5, 9, v4
        v_lshl_add_u32 v4, v3, 4, v4
        v_mul_u32_u24 v5, {2 * hs}, v1
        v_lshl_add_u32 v5, v3, 3, v5
        s_mul_i32 {sr(T1)}, {sr(S_RQ)}, {8 * hs}
        s_add_u32 {sr(T1)}, {sr(T1)}, {OFF_Q}
        s_mul_i32 {sr(T2)}, {sr(S_BLK)}, 1280
        s_add_u32 {sr(orem)}, {sr(T1)}, {sr(T2)}
        s_mul_i32 {sr(T3)}, {sr(S_CH)}, {4 * hs}
        s_add_u32 {sr(ob)}, {sr(orem)}, {sr(T3)}
        s_xor_b32 {sr(T2)}, {sr(S_BLK)}, 1
        s_mulk_i32 {sr(T2)}, 1280
        s_add_u32 {sr(T1)}, {sr(T1)}, {sr(T3)}
        s_add_u32 {sr(ob2)}, {sr(T1)}, {sr(T2)}
        s_mul_i32 {sr(T1)}, {sr(S_WV)}, 20480
        s_mul_i32 {sr(T2)}, {sr(S_CH)}, 10240
        s_add_u32 {sr(T3)}, {sr(T1)}, {sr(T2)}
        v_add_u32 v6, {sr(T3)}, {vr(A_L16)}
        s_sub_u32 {sr(T3)}, {sr(T1)}, {sr(T2)}
        v_add_u32 v7, {sr(T3)}, {vr(A_L16)}
        v_add_u32 v124, {2 * hs}, v4
        v_add_u32 v125, {hs}, v5
        s_mov_b32 {sr(S_SPIN)}, {SPIN}
        """)
        oreg = {7: 152, 8: 168, 9: 116}

        def oloads(i):
            if i < 9:
                return [f"buffer_load_dwordx4 {vr(oreg[i] + 4 * r, 4)}, {vr((4, 124)[i - 7])}, {sr(R_WS, 4)}, "
                        f"{sr((ob, ob2)[r >> 1])} offen offset:{256 * (r & 1)} sc1" for r in range(4)]
            return [f"buffer_load_dwordx2 {vr(oreg[i] + 4 * r + 2 * a, 2)}, {vr((5, 125)[a])}, {sr(R_WS, 4)}, {sr(orem)} offen "
                    f"offset:{1024 + 128 * r} sc1" for r in range(2) for a in range(2)]

        def ocheck(i):
            n = 16 if i < 9 else 8
            L = [f"v_and_b32 v1, 1, {vr(oreg[i])}"]
            L += [f"v_and_b32 v1, v1, {vr(oreg[i] + k)}" for k in range(2, n, 2)]
            L.append("v_cmp_eq_u32 vcc, 0, v1")
            return "\n".join(L)
        e.wait(vm="os")
        self.stamp("odrain")
        for i in (7, 9, 8):
            for x in oloads(i):
                e.vmem(x, f"o{i}")
        pend = []
        for i in (7, 9, 8):
            e.wait(vm=f"o{i}")
            e.i(ocheck(i) + f"\ns_cbranch_vccnz L_ort{i}")
            e.label(f"L_ook{i}")
            if i == 7:
                self.stamp("oload")
            self.cold.append(f"L_ort{i}:\n" + "\n".join(oloads(i)) + "\ns_waitcnt vmcnt(0)\n" + ocheck(i) + f"""
            s_sub_u32 {sr(S_SPIN)}, {sr(S_SPIN)}, 1
            s_cmp_lt_i32 {sr(S_SPIN)}, 1
            s_cbranch_scc1 L_ook{i}
            s_cbranch_vccnz L_ort{i}
            s_branch L_ook{i}
            """)
            for r in range(2 if i == 9 else 4):
                for n in range(5):
                    d = vr(self.facc(r, n), 4)
                    e.i(f"v_mfma_f32_16x16x32_bf16 {d}, {vr(self.ring_w(i, n), 4)}, {vr(oreg[i] + 4 * r, 4)}, {d}")
                    if i == 8:
                        pend.append(f"ds_write_b128 {vr(6 + (r >> 1))}, {d} offset:{(r * 5 + n) * 1024}")
                        if len(pend) > 8:
                            e.lds(pend.pop(0), "dw")
        e.i("s_nop 0")
        for x in pend:
            e.lds(x, "dw")
        e.i(f"""
        s_lshl_b32 {sr(T1)}, {sr(S_WV)}, 10
        v_add_u32 v9, {sr(T1)}, {vr(A_L16)}
        v_add_u32 v10, 81920, v9
        v_mul_u32_u24 v11, 1280, v3
        v_add_u32 v11, v11, v2
        """)
        for k in range(3):
            e.i(f"v_sub_f32 {vr(112 + k)}, 1.0, {vr(112 + k)}")
        e.wait(lg="all")
        e.i("s_barrier")
        self.stamp("dumped")
        for k in range(3):
            if k == 2:
                e.i(f"s_cmp_ge_u32 {sr(S_WV)}, 4\ns_cbranch_scc1 L_fin")
            if k:
                e.i("v_add_u32 v9, 8192, v9\nv_add_u32 v10, 8192, v10")
            b = 16 + 32 * (k & 1)
            for w in range(8):
                e.lds(f"ds_read_b128 {vr(b + 4 * w, 4)}, {vr(9 + (w >> 2))} offset:{(w & 3) * 20480}", f"rr{w}")
            for j in range(4):
                src = 106 + 2 * k + (j >> 1)
                e.i(f"v_and_b32 {vr(12 + j)}, 0xffff0000, {vr(src)}" if j & 1 else f"v_lshlrev_b32 {vr(12 + j)}, 16, {vr(src)}")
            for w in range(8):
                e.wait(lg=f"rr{w}")
                for j in range(4):
                    if w == 0:
                        e.i(f"v_fma_f32 {vr(12 + j)}, {vr(12 + j)}, {vr(112 + k)}, {vr(b + j)}")
                    else:
                        e.i(f"v_add_f32 {vr(12 + j)}, {vr(12 + j)}, {vr(b + 4 * w + j)}")
            if c.perturb:
                for j in range(4):
                    e.i(f"v_add_f32 {vr(12 + j)}, {f32(c.perturb / 1000.0)}, {vr(12 + j)}")
            e.i(f"""
            v_cvt_pk_bf16_f32 {vr(b)}, v12, v13
            v_cvt_pk_bf16_f32 {vr(b + 1)}, v14, v15
            buffer_store_dwordx2 {vr(b, 2)}, v11, {sr(R_OUT, 4)}, {sr(so[k])} offen
            """)
        e.label("L_fin")
        if c.dev:
            self.dev_dump()

    def dev_dump(self):
        e = self.e
        e.i(f"""
        s_waitcnt vmcnt(0)
        {"s_memrealtime" if self.c.rt else "s_memtime"} s[36:37]
        s_memrealtime s[12:13]
        s_lshl_b32 {sr(T0)}, s2, 3
        s_add_u32 {sr(T0)}, {sr(T0)}, {sr(S_WV)}
        s_lshl_b32 {sr(T0)}, {sr(T0)}, 7
        s_add_u32 {sr(T0)}, {sr(T0)}, {OFF_DEV}
        s_waitcnt lgkmcnt(0)
        s_mov_b64 exec, 1
        """)
        for k in range(12):
            e.i(f"v_mov_b32 v1, {sr(16 + 2 * k)}\nbuffer_store_dword v1, off, {sr(R_WS, 4)}, {sr(T0)} offset:{4 * k}")
        e.i(f"v_mov_b32 v1, s12\nbuffer_store_dword v1, off, {sr(R_WS, 4)}, {sr(T0)} offset:48")
        e.i(f"v_mov_b32 v1, {sr(S_SPIN)}\nbuffer_store_dword v1, off, {sr(R_WS, 4)}, {sr(T0)} offset:52")
        if self.c.enc >= 0:
            k = self.c.enc
            e.i(f"s_cmp_lg_u32 {sr(T0)}, {OFF_DEV + 296 * 128}\ns_cbranch_scc1 L_end")
            e.i("s_add_u32 s14, s38, 6000" if k == 11 else f"s_add_u32 s14, {sr(16 + 2 * k)}, 6000")
            e.i(f"""
            s_mov_b32 s15, 100000
            L_enc:
            s_memrealtime s[12:13]
            s_waitcnt lgkmcnt(0)
            s_sub_u32 s15, s15, 1
            s_cmp_eq_u32 s15, 0
            s_cbranch_scc1 L_end
            s_sub_u32 s13, s12, s14
            s_cmp_lt_i32 s13, 0
            s_cbranch_scc1 L_enc
            """)
        if self.c.dbgwg >= 0:
            e.i(f"s_cmp_lg_u32 {sr(T0)}, {OFF_DEV + self.c.dbgwg * 128}\ns_cbranch_scc1 L_end")
            for k in range(1, 11):
                e.i(f"s_sub_u32 s13, {sr(16 + 2 * k)}, s16\nv_mov_b32 v1, s13\nbuffer_store_dword v1, off, {sr(R_DBG, 4)}, 0 offset:{4 * k}")
            e.i(f"s_sub_u32 s13, s12, s38\nv_mov_b32 v1, s13\nbuffer_store_dword v1, off, {sr(R_DBG, 4)}, 0 offset:44")

    def build(self):
        e = self.e
        self.prologue()
        e.i(f"s_cmp_eq_u32 {sr(S_SEC)}, 3\ns_cbranch_scc1 L_p1z\ns_cmp_eq_u32 {sr(S_SEC)}, 2\ns_cbranch_scc1 L_p1v")
        snap = e.snapshot()
        self.pass1(False)
        after = e.snapshot()
        e.i("s_branch L_p2")
        e.label("L_p1v")
        e.restore(snap)
        self.pass1(True)
        assert e.snapshot() == after
        main, e.lines = e.lines, []
        e.label("L_p1z")
        e.restore(snap)
        self.pass1_fill()
        assert e.snapshot() == after, (e.snapshot(), after)
        e.i("s_branch L_p2")
        self.cold.append("\n".join(e.lines))
        e.lines = main
        e.label("L_p2")
        e.i(f"s_cmp_lg_u32 {sr(S_CH)}, 0\ns_cbranch_scc1 L_p2b")
        self.pass2(0)
        after2 = e.snapshot()
        e.i("s_branch L_att")
        e.label("L_p2b")
        e.restore(after)
        self.pass2(1)
        assert e.snapshot() == after2
        e.label("L_att")
        if self.c.stop:
            e.i("s_branch L_fin")
        self.attention()
        self.tail()
        e.label("L_end")
        e.i("s_endpgm")
        for blk in self.cold:
            e.i(blk)
        return e


HEADER = """; Fused gate + multi-head attention block + squared-ReLU FFN, one persistent launch (generated by gen/gen.py).
; @launch grid=(256,1,1) block=(512,1,1) lds=163840
.amdgcn_target "amdgcn-amd-amdhsa--gfx950"
.text
.globl {n}_kernel
.p2align 8
.type {n}_kernel,@function
{n}_kernel:
"""
FOOTER = """
.section .rodata,"a"
.p2align 6
.amdhsa_kernel {n}_kernel
  .amdhsa_next_free_vgpr 256
  .amdhsa_next_free_sgpr 102
  .amdhsa_accum_offset 256
  .amdhsa_group_segment_fixed_size 0
  .amdhsa_kernarg_size 96
  .amdhsa_user_sgpr_count 2
  .amdhsa_user_sgpr_kernarg_segment_ptr 1
  .amdhsa_system_sgpr_workgroup_id_x 1
  .amdhsa_float_denorm_mode_32 3
.end_amdhsa_kernel
"""


def generate(**kw):
    cfg = Cfg()
    for k, v in kw.items():
        assert hasattr(cfg, k), k
        setattr(cfg, k, v)
    e = Gen(cfg).build()
    errs = check_hazards(e.lines)
    if errs:
        for x in errs[:40]:
            print("HAZARD", x, file=sys.stderr)
        raise SystemExit(f"{len(errs)} hazards")
    return HEADER.format(n=NAME) + e.text() + "\n" + FOOTER.format(n=NAME)


if __name__ == "__main__":
    out = sys.argv[1]
    kw = {}
    for a in sys.argv[2:]:
        k, v = a.split("=")
        kw[k] = int(v)
    open(out, "w").write(generate(**kw))
```

```python
import math
import struct
import sys

from asmlib import Emit, check_hazards, sr, vr

NAME = "gated_mix__mha_block__dense_activation_squared_relu__prompt"

OFF_FLG = 0
OFF_G = 32768
OFF_Q = 65536
OFF_KV = OFF_Q + 32 * 64 * 1280
OFF_H = OFF_KV + 32 * 64 * 2560
OFF_WT = OFF_H + 64 * 112 * 1024
OFF_DEV = OFF_WT + 152 * 20 * 1024
WS_SIZE = OFF_DEV + 2048 * 128
OOB = 0x40000000
JOBLDS = 81920
SPIN = 400000


def f32(x):
    return "0x%08x" % struct.unpack("<I", struct.pack("<f", x))[0]


S_WV, S_XCD, S_J, S_RB, S_CG, S_RQ, S_CH, S_M0 = 3, 4, 5, 6, 7, 8, 9, 10
T0, T1, T2, T3, T4 = 11, 12, 13, 14, 15
P_X, P_WQ, P_WO, P_W1, P_B1, P_W2, P_B2, P_GW, P_OUT, P_DBG, P_WS = 16, 18, 20, 24, 26, 28, 30, 32, 34, 36, 38
R_X, R_WQ, R_W1, R_WS, R_JOB, R_B1, R_B2, R_GW, R_OUT, R_DBG = 40, 44, 48, 52, 56, 60, 64, 68, 72, 76
S_HD, S_RTQ, S_RT, S_CT, S_BLK, S_SCALE = 80, 81, 82, 83, 84, 85
S_VMASK = 86
S_EPI, S_JST, S_OBLK, S_HB, S_WB, S_SEC, S_GAM, S_HST = 88, 89, 90, 91, 92, 93, 94, 95
S_HB2, S_WOB = S_SEC, S_GAM
S_MA, S_MB = 96, 98
S_SPIN = 100
S_KVB = 101
S_KVL = 1

V_LANE = 0
V_X0, V_X1, V_W, V_W1 = 1, 2, 3, 4
V_XR = 5
V_WR = 7
V_ST = 11
V_L15, V_G4 = 15, 16
V_WR2 = 17
V_T = 21
V_BIAS = 24
V_ACC = 32
V_WB = (64, 80)
V_XF = 96

A_AK, A_AKR, A_AV, A_IDX, A_GA = 104, 105, 132, 133, 134
A_L16, A_QA = 96, 97
A_T = 98
A_QLO, A_QHI, A_KR, A_QM, A_KM, A_VLO = 106, 108, 110, 112, 116, 120
A_VHI = (124, 128)
A_P = 100
A_O = 136
A_S = (152, 168)
A_RING = 184
A_FACC = 16
A_GF = 8


STAMPSETS = {
    0: [],
    1: ["karg", "b0", "p1end", "p2end", "att0", "chk2", "attend", "odrain", "oload", "dumped"],
    2: ["karg", "b0", "b6", "b2", "b7", "b8", "p1end", "e1end", "b11", "b12"],
    3: ["p1end", "e1end", "b11", "fl1", "b13", "b14", "u18", "chk1", "p2end", "att0"],
    5: ["karg", "iss0", "x", "b0", "x", "x", "x", "x", "x", "p1end"],
    4: ["karg", "att0", "fl2a", "fl2b", "chk2a", "chk2", "t16", "t32", "t48", "attend"],
}


class Cfg:
    dev = 0
    dbgwg = -1
    rt = 0
    enc = -1
    depth = 3
    ffn_start = 24
    ffn_emb = 140
    t_flag2 = 13
    t_kv = 8
    t_poll2 = 18
    t_chk2 = 20
    pre2 = 12
    u_late = 8
    u_flag1 = 8
    u_poll1 = 14
    u_chk1 = 17
    nst0 = 2
    stgap = 2
    qpos = 12
    rdfront = 9
    touch = 0
    perturb = 0
    stop = 0
    force_fallback = False


def acc(n, rt):
    return V_ACC + (n * 2 + rt) * 4


def xf(ks, rt):
    return V_XF + (ks * 2 + rt) * 4


def srd(r, p, size):
    return (f"s_mov_b64 {sr(r, 2)}, {sr(p, 2)}\ns_mov_b32 {sr(r + 2)}, {size}\ns_mov_b32 {sr(r + 3)}, 0x20000\n")


class Gen:
    def __init__(self, cfg):
        self.c = cfg
        self.e = Emit()
        self.cold = []
        self.nlab = 0
        self.q = []
        self.issued = set()

    def stamp(self, name):
        names = STAMPSETS[self.c.dev]
        if name in names:
            op = "s_memrealtime" if self.c.rt else "s_memtime"
            self.e.i(f"{op} {sr(16 + 2 * names.index(name), 2)}")

    def lab(self, base):
        self.nlab += 1
        return f"L_{base}_{self.nlab}"

    def dma_stage(self, s, fill=False):
        slot = (s % 5) * 32768
        out = []
        for i in range(4):
            m0 = slot + (i & 1) * 1024 + (i >> 1) * 16384
            if fill and s < 10 and i >= 2:
                continue
            if s < 10:
                if i < 2:
                    va, r, so = (V_X0, V_X1)[i], R_X, s * 128
                else:
                    va, r, so = V_W, R_WQ, (s * 64 + (i & 1) * 4) * 3840
            else:
                va, r, so = V_W1, R_W1, ((s - 10) * 128 + (i & 1) * 4 + (i >> 1) * 64) * 3456
            out.append((f"s_add_u32 m0, {sr(S_M0)}, {m0}\ns_mov_b32 {sr(S_SPIN)}, {so}\n"
                        f"buffer_load_dwordx4 {vr(va)}, {sr(r, 4)}, {sr(S_SPIN)} offen lds", f"st{s}"))
        return out

    def prologue(self):
        e = self.e
        top = "s_memrealtime" if self.c.rt else "s_memtime"
        e.i(f"""
        s_load_dwordx16 s[16:31], s[0:1], 0
        s_load_dwordx8 s[32:39], s[0:1], 64
        {"s_memrealtime vcc" if self.c.dev else ""}
        s_cmp_ge_u32 s2, 256
        s_cbranch_scc1 L_end
        v_lshrrev_b32 v21, 6, v0
        v_and_b32 v0, 63, v0
        v_readfirstlane_b32 {sr(S_WV)}, v21
        s_and_b32 {sr(S_XCD)}, s2, 7
        s_lshr_b32 {sr(S_J)}, s2, 3
        s_and_b32 {sr(T0)}, {sr(S_XCD)}, 1
        s_and_b32 {sr(T1)}, {sr(S_J)}, 7
        s_lshl3_add_u32 {sr(S_RB)}, {sr(T0)}, {sr(T1)}
        s_lshr_b32 {sr(T0)}, {sr(S_XCD)}, 1
        s_lshr_b32 {sr(T1)}, {sr(S_J)}, 3
        s_lshl2_add_u32 {sr(S_CG)}, {sr(T0)}, {sr(T1)}
        s_lshl_b32 {sr(S_M0)}, {sr(S_WV)}, 11
        v_and_b32 {vr(V_L15)}, 15, v0
        v_lshrrev_b32 {vr(V_G4)}, 4, v0
        v_lshrrev_b32 v21, 3, v0
        v_and_b32 v22, 7, v0
        v_xor_b32 v22, v22, {vr(V_G4)}
        s_lshl3_add_u32 {sr(T0)}, {sr(S_RB)}, {sr(S_WV)}
        s_mulk_i32 {sr(T0)}, 20480
        v_mul_u32_u24 v21, 1280, v21
        v_lshl_add_u32 v21, v22, 4, v21
        v_add_u32 {vr(V_X0)}, {sr(T0)}, v21
        v_xor_b32 {vr(V_X1)}, 64, {vr(V_X0)}
        v_add_u32 {vr(V_X1)}, 10240, {vr(V_X1)}
        s_and_b32 {sr(T0)}, {sr(S_WV)}, 1
        s_lshl_b32 {sr(T0)}, {sr(T0)}, 3
        v_lshl_or_b32 v29, {vr(V_G4)}, 1, {sr(T0)}
        v_xor_b32 v29, v29, {vr(V_L15)}
        s_mul_i32 {sr(T0)}, {sr(S_WV)}, {8 * 3840}
        s_lshl_b32 {sr(T1)}, {sr(S_CG)}, 8
        s_add_u32 {sr(T0)}, {sr(T0)}, {sr(T1)}
        s_cmp_eq_u32 {sr(S_CG)}, 15
        s_cselect_b32 {sr(T0)}, {OOB}, {sr(T0)}
        v_mul_u32_u24 v22, 3840, {vr(V_G4)}
        v_lshl_add_u32 v22, v29, 4, v22
        v_add_u32 {vr(V_W)}, {sr(T0)}, v22
        s_mov_b32 {sr(R_X + 2)}, {2048 * 1280}
        s_mov_b32 {sr(R_X + 3)}, 0x20000
        s_mov_b32 {sr(R_WQ + 2)}, {640 * 3840}
        s_mov_b32 {sr(R_WQ + 3)}, 0x20000
        s_waitcnt lgkmcnt(0)
        s_mov_b64 {sr(R_X, 2)}, {sr(P_X, 2)}
        s_mov_b64 {sr(R_WQ, 2)}, {sr(P_WQ, 2)}
        """)
        if self.c.dev:
            e.i("s_mov_b32 s0, vcc_lo")
        self.stamp("karg")
        for s in range(self.c.depth):
            for txt, tag in self.dma_stage(s):
                e.vmem(txt, tag)
            if s == 0:
                e.i("s_barrier")
                self.stamp("iss0")
                self.touch()
                e.i(f"""
                s_and_b32 {sr(S_RQ)}, {sr(S_WV)}, 3
                s_lshr_b32 {sr(S_CH)}, {sr(S_WV)}, 2
                s_lshl_b32 {sr(T0)}, {sr(S_RQ)}, 12
                v_lshrrev_b32 v21, 1, {vr(V_L15)}
                v_xor_b32 v21, v21, {vr(V_G4)}
                v_lshl_add_u32 v21, v21, 4, {sr(T0)}
                v_lshl_add_u32 {vr(V_XR)}, {vr(V_L15)}, 7, v21
                v_xor_b32 {vr(V_XR + 1)}, 64, {vr(V_XR)}
                v_lshrrev_b32 v22, 2, {vr(V_L15)}
                v_lshl_add_u32 v21, {vr(V_G4)}, 3, v22
                v_lshlrev_b32 v21, 8, v21
                v_xor_b32 v23, {sr(S_CH)}, {vr(V_G4)}
                v_and_b32 v23, 1, v23
                v_lshl_add_u32 v22, v23, 2, v22
                v_lshlrev_b32 v22, 1, v22
                v_and_b32 v23, 3, {vr(V_L15)}
                v_lshrrev_b32 v25, 1, v23
                v_xor_b32 v24, v25, v22
                v_lshl_add_u32 v24, v24, 4, v21
                v_and_b32 v26, 1, v23
                v_lshl_add_u32 {vr(V_WR2)}, v26, 3, v24
                s_mul_i32 {sr(S_SEC)}, {sr(S_CG)}, 52
                s_lshr_b32 {sr(S_SEC)}, {sr(S_SEC)}, 8
                """)

    def deferred(self):
        e = self.e
        q = [self.ii(srd(R_WS, P_WS, WS_SIZE) + srd(R_DBG, P_DBG, 256)),
             self.clear_flags,
             self.ii(srd(R_W1, P_W1, 640 * 3456) + srd(R_B1, P_B1, 3456)),
             self.ii(srd(R_B2, P_B2, 1280) + srd(R_GW, P_GW, 1280) + srd(R_OUT, P_OUT, 2048 * 1280))]
        q += self.each("\n".join(f"v_xor_b32 {vr(V_WR2 + n)}, {n << 5}, {vr(V_WR2)}" for n in range(1, 4)))
        q += self.each(f"""
        v_mul_u32_u24 v22, 3456, {vr(V_G4)}
        v_lshl_add_u32 v22, v29, 4, v22
        s_mul_i32 {sr(T0)}, {sr(S_CG)}, 224
        s_mul_i32 {sr(T1)}, {sr(S_WV)}, {8 * 3456}
        s_add_u32 {sr(T0)}, {sr(T0)}, {sr(T1)}
        v_add_u32 {vr(V_W1)}, {sr(T0)}, v22
        s_cmp_eq_u32 {sr(S_CG)}, 15
        s_cselect_b32 {sr(T0)}, 5, 13
        v_sub_u32 v22, {sr(T0)}, v29
        v_and_b32 v22, {OOB}, v22
        v_or_b32 {vr(V_W1)}, {vr(V_W1)}, v22
        """)
        q += [self.ii(x) for x in f"""
        s_lshr_b32 {sr(T1)}, {sr(S_J)}, 3
        s_lshl2_add_u32 {sr(S_HD)}, {sr(S_XCD)}, {sr(T1)}
        s_and_b32 {sr(T1)}, {sr(S_J)}, 3
        s_lshl2_add_u32 {sr(S_RT)}, {sr(S_XCD)}, {sr(T1)}
        s_lshr_b32 {sr(S_CT)}, {sr(S_J)}, 2
        --
        s_and_b32 {sr(T1)}, {sr(S_J)}, 7
        s_lshl3_add_u32 {sr(S_RTQ)}, {sr(T1)}, {sr(S_WV)}
        s_lshl2_add_u32 {sr(S_BLK)}, {sr(S_RB)}, {sr(S_RQ)}
        s_mul_i32 {sr(T0)}, {sr(S_SEC)}, 5
        s_sub_u32 {sr(S_GAM)}, {sr(S_CG)}, {sr(T0)}
        --
        s_mov_b32 {sr(S_VMASK)}, 0x000fffff
        s_mov_b32 {sr(S_VMASK + 1)}, 0x000fffff
        s_lshl_b32 {sr(T0)}, {sr(S_HD)}, 6
        s_add_u32 {sr(T0)}, {sr(T0)}, {sr(S_RTQ)}
        s_mulk_i32 {sr(T0)}, 1280
        s_add_u32 {sr(S_OBLK)}, {sr(T0)}, {OFF_Q}
        --
        s_lshl4_add_u32 {sr(T0)}, {sr(S_BLK)}, {sr(S_CG)}
        s_mulk_i32 {sr(T0)}, 7
        s_lshl2_add_u32 {sr(T0)}, {sr(S_CH)}, {sr(T0)}
        s_lshl_b32 {sr(T0)}, {sr(T0)}, 10
        s_add_u32 {sr(S_HST)}, {sr(T0)}, {OFF_H}
        --
        s_lshl4_add_u32 {sr(T0)}, {sr(S_HD)}, {sr(S_WV)}
        s_mulk_i32 {sr(T0)}, 10240
        s_add_u32 {sr(S_KVB)}, {sr(T0)}, {OFF_KV}
        s_mul_i32 {sr(S_KVL)}, {sr(S_WV)}, 5120
        """.split("--")]
        q += self.job_setup()
        if self.c.dev:
            q.append(self.ii("s_mov_b32 s38, s0"))
            q.append(lambda: self.stamp("pro"))
        return q

    def touch(self):
        e, c = self.e, self.c
        if not c.touch:
            return
        e.i(f"""
        s_lshl3_add_u32 {sr(T0)}, {sr(S_J)}, {sr(S_WV)}
        s_and_b32 {sr(T1)}, {sr(S_XCD)}, 1
        s_lshr_b32 {sr(T2)}, {sr(S_XCD)}, 1
        s_lshl2_add_u32 {sr(T3)}, {sr(T1)}, {sr(T2)}
        s_lshl_b32 {sr(T3)}, {sr(T3)}, 8
        s_add_u32 {sr(T3)}, {sr(T3)}, {sr(T0)}
        s_mulk_i32 {sr(T3)}, 1280
        v_lshlrev_b32 v250, 7, v0
        s_mulk_i32 {sr(T0)}, 10
        v_add_u32 v251, {sr(T0)}, v0
        v_lshrrev_b32 v252, 3, v251
        v_lshl_add_u32 v252, v252, 1, {sr(T1)}
        v_and_b32 v251, 7, v251
        v_lshlrev_b32 v251, 7, v251
        s_mov_b32 {sr(T0)}, 3840
        v_mad_u32_u24 v253, v252, {sr(T0)}, v251
        s_lshl_b32 {sr(T1)}, {sr(T2)}, 10
        s_mov_b64 exec, 0x3ff
        """)
        e.vmem(f"buffer_load_dword v250, v250, {sr(R_X, 4)}, {sr(T3)} offen", "touch")
        e.vmem(f"buffer_load_dword v253, v253, {sr(R_WQ, 4)}, {sr(T1)} offen", "touch")
        e.i("s_mov_b64 exec, -1")
        if c.touch == 2:
            e.i(srd(R_W1, P_W1, 640 * 3456))
            self.touch_w1()

    def touch_w1(self):
        self.e.vmem(f"""
        s_mov_b32 {sr(S_SPIN)}, 3456
        v_mad_u32_u24 v251, v252, {sr(S_SPIN)}, v251
        s_lshr_b32 {sr(S_SPIN)}, {sr(S_XCD)}, 1
        s_mulk_i32 {sr(S_SPIN)}, 896
        s_mov_b64 exec, 0x3ff
        buffer_load_dword v251, v251, {sr(R_W1, 4)}, {sr(S_SPIN)} offen
        s_mov_b64 exec, -1
        """, "touch")

    def clear_flags(self):
        go, back = self.lab("init"), self.lab("initr")
        self.e.i(f"""
        s_lshl3_add_u32 {sr(T0)}, s2, {sr(S_WV)}
        s_cmp_eq_u32 {sr(T0)}, 7
        s_cbranch_scc1 {go}
        """)
        self.e.label(back)
        self.cold.append(f"""
        {go}:
        v_lshlrev_b32 v27, 7, v0
        v_mov_b32 v28, 0
        s_mov_b32 {sr(T0)}, 8192
        s_mov_b32 {sr(T1)}, 16384
        s_mov_b32 {sr(T2)}, 24576
        buffer_store_dword v28, v27, {sr(R_WS, 4)}, 0 offen sc1
        buffer_store_dword v28, v27, {sr(R_WS, 4)}, {sr(T0)} offen sc1
        buffer_store_dword v28, v27, {sr(R_WS, 4)}, {sr(T1)} offen sc1
        buffer_store_dword v28, v27, {sr(R_WS, 4)}, {sr(T2)} offen sc1
        s_branch {back}
        """)

    def job_setup(self):
        kap, cp, base, a0, a2, a1, hf, t = T0, T1, T2, T3, T4, S_MA, S_MA + 1, S_MB
        q = [self.ii(x) for x in f"""
        s_lshl3_add_u32 {sr(cp)}, s2, {sr(S_WV)}
        s_mul_i32 {sr(kap)}, {sr(cp)}, 6554
        s_lshr_b32 {sr(kap)}, {sr(kap)}, 16
        s_mul_i32 {sr(base)}, {sr(kap)}, 10
        s_sub_u32 {sr(cp)}, {sr(cp)}, {sr(base)}
        --
        s_and_b32 {sr(hf)}, {sr(kap)}, 1
        s_lshr_b32 {sr(kap)}, {sr(kap)}, 1
        s_mul_i32 {sr(S_JST)}, {sr(kap)}, 10
        s_add_u32 {sr(S_JST)}, {sr(S_JST)}, {sr(cp)}
        s_lshl3_add_u32 {sr(S_JST)}, {sr(S_JST)}, {sr(hf)}
        --
        s_lshl_b32 {sr(S_JST)}, {sr(S_JST)}, 9
        s_add_u32 {sr(S_JST)}, {sr(S_JST)}, {OFF_WT}
        s_cmp_ge_u32 {sr(kap)}, 76
        s_cselect_b32 {sr(S_JST)}, {OOB}, {sr(S_JST)}
        --
        s_cmp_ge_u32 {sr(kap)}, 56
        s_cselect_b64 {sr(R_JOB, 2)}, {sr(P_WO, 2)}, {sr(P_W2, 2)}
        s_mov_b32 {sr(R_JOB + 2)}, {1728 * 1280}
        s_cselect_b32 {sr(R_JOB + 2)}, {640 * 1280}, {sr(R_JOB + 2)}
        s_mov_b32 {sr(R_JOB + 3)}, 0x20000
        --
        s_mul_i32 {sr(a0)}, {sr(kap)}, 9363
        s_lshr_b32 {sr(a0)}, {sr(a0)}, 16
        s_mul_i32 {sr(base)}, {sr(a0)}, 224
        s_mulk_i32 {sr(a0)}, 7
        s_sub_u32 {sr(t)}, {sr(kap)}, {sr(a0)}
        --
        s_lshl_b32 {sr(a0)}, {sr(t)}, 5
        s_cmp_ge_u32 {sr(t)}, 3
        s_cselect_b32 {sr(a2)}, 16, 0
        s_add_u32 {sr(a0)}, {sr(a0)}, {sr(a2)}
        --
        s_cmp_eq_u32 {sr(t)}, 6
        s_cselect_b32 {sr(a0)}, 96, {sr(a0)}
        s_cselect_b32 {sr(a2)}, 112, 16
        s_add_u32 {sr(base)}, {sr(base)}, {sr(a0)}
        s_lshl3_add_u32 {sr(base)}, {sr(hf)}, {sr(base)}
        --
        s_add_u32 {sr(t)}, {sr(kap)}, 4
        s_mul_i32 {sr(a0)}, {sr(t)}, 13108
        s_lshr_b32 {sr(a0)}, {sr(a0)}, 16
        s_mul_i32 {sr(a1)}, {sr(a0)}, 160
        s_mulk_i32 {sr(a0)}, 5
        --
        s_sub_u32 {sr(t)}, {sr(t)}, {sr(a0)}
        s_mul_i32 {sr(a0)}, {sr(t)}, 40
        s_cmp_eq_u32 {sr(t)}, 4
        s_cselect_b32 {sr(a0)}, 16, {sr(a0)}
        s_cselect_b32 {sr(t + 1)}, 80, 20
        s_add_u32 {sr(a1)}, {sr(a1)}, {sr(a0)}
        --
        s_mul_i32 {sr(hf)}, {sr(hf)}, {sr(t + 1)}
        s_add_u32 {sr(a1)}, {sr(a1)}, {sr(hf)}
        s_sub_u32 {sr(a1)}, {sr(a1)}, {12 * 160}
        s_cmp_eq_u32 {sr(t)}, 4
        s_cselect_b32 {sr(a0)}, 40, 4
        s_cselect_b32 {sr(t)}, 20, 8
        --
        s_cmp_ge_u32 {sr(kap)}, 56
        s_cselect_b32 {sr(base)}, {sr(a1)}, {sr(base)}
        s_cselect_b32 {sr(a0)}, {sr(a0)}, 4
        s_cselect_b32 {sr(a2)}, {sr(t)}, {sr(a2)}
        """.split("--")]
        return q + self.each(f"""
        v_lshrrev_b32 v21, 5, v0
        v_mul_u32_u24 v21, {sr(a2)}, v21
        v_bfe_u32 v22, v0, 3, 2
        v_add3_u32 v21, v21, v22, {sr(base)}
        v_mul_u32_u24 v21, 1280, v21
        v_and_b32 v22, 7, v0
        v_lshl_add_u32 v21, v22, 4, v21
        s_lshl_b32 {sr(cp)}, {sr(cp)}, 7
        v_add_u32 v30, {sr(cp)}, v21
        s_mulk_i32 {sr(a0)}, 1280
        v_add_u32 v31, {sr(a0)}, v30
        """)

    def reads(self, s, ksl, ntiles, buf):
        off = (s % 5) * 32768 - ((s % 5) >> 1) * 65536
        xs, ws = [], []
        if s < 10:
            ks = 2 * s + ksl
            for rt in range(2):
                xs.append((f"ds_read_b128 {vr(xf(ks, rt), 4)}, {vr(V_XR + ksl)} offset:{off + rt * 2048}", f"x{buf}{rt}"))
            wbase, wr = off + 16384, V_WR
        else:
            wbase, wr = off, V_WR2
        for n in range(ntiles):
            for q in range(2):
                ws.append((f"ds_read_b64_tr_b16 {vr(V_WB[buf] + 4 * n + 2 * q, 2)}, {vr(wr + n)} "
                           f"offset:{wbase + ksl * 8192 + q * 1024}", f"w{buf}{n}"))
        return xs[:1] + ws[:2] + xs[1:] + ws[2:]

    def window(self, s):
        slot = s % 5
        if s in (0, 10) or slot in (1, 3):
            return []
        d = 65536 if slot in (2, 4) else -131072
        rs = [V_XR, V_XR + 1] + [V_WR + n for n in range(4)] if s < 10 else [V_WR2 + n for n in range(4)]
        return [f"v_add_u32 {vr(r)}, {d & 0xffffffff:#x}, {vr(r)}" for r in rs]

    def mfmas(self, ks, ntiles, buf, vtype, first):
        out = []
        for n in range(ntiles):
            for rt in range(2):
                w, x, d = vr(V_WB[buf] + 4 * n, 4), vr(xf(ks, rt), 4), vr(acc(n, rt), 4)
                a, b = (x, w) if vtype else (w, x)
                out.append((f"v_mfma_f32_16x16x32_bf16 {d}, {a}, {b}, {'0' if first else d}", [f"x{buf}{rt}", f"w{buf}{n}"]))
        return out

    def unit(self, mf, rd, rate=1, drain=False):
        e = self.e
        rd = list(rd)
        nr, done = len(rd), 0
        for k, (m, tags) in enumerate(mf):
            e.wait(lg=tags)
            e.i(m)
            want = min(nr, -(-nr * (k + 1) * self.c.rdfront // (len(mf) * 8)))
            while done < want:
                e.lds(*rd[done])
                done += 1
            for _ in range(rate):
                if self.q:
                    self.q.pop(0)()
        for r in rd[done:]:
            e.lds(*r)
        while drain and self.q:
            self.q.pop(0)()

    def vm(self, txt, tag):
        def f():
            self.e.vmem(txt, tag)
            self.issued.add(tag)
        return f

    def ii(self, txt):
        return lambda: self.e.i(txt)

    def each(self, txt):
        out, cur = [], []
        for ln in txt.strip().split("\n"):
            ln = ln.strip()
            if not ln:
                continue
            cur.append(ln)
            if not ln.startswith("s_"):
                out.append(self.ii("\n".join(cur)))
                cur = []
        if cur:
            out.append(self.ii("\n".join(cur)))
        return out

    def spaced(self, items, gap):
        out = []
        for x in items:
            out.append(x)
            out += [lambda: None] * gap
        return out

    def stage_sync(self, s, vmtags=()):
        e = self.e
        for w in self.window(s):
            e.i(w)
        e.wait(vm=[f"st{s}"] + list(vmtags), lg="all" if (self.c.depth > 3 or (s == 10 and self.c.pre2 > 13)) else None)
        e.i("s_barrier")
        self.stamp(f"b{s}")

    def pass1(self, vtype):
        e = self.e
        if vtype:
            e.i(f"v_mov_b32 {vr(V_WR)}, {vr(V_WR2)}")
        else:
            e.i(f"""
            v_xor_b32 v24, v23, v22
            v_lshl_add_u32 v24, v24, 4, v21
            v_lshl_add_u32 {vr(V_WR)}, v25, 3, v24
            """)
        for n in range(1, 4):
            e.i(f"v_xor_b32 {vr(V_WR + n)}, {n << 5 if vtype else ((n >> 1) << 6) | ((n & 1) << 3)}, {vr(V_WR)}")
        side = self.deferred() + self.epi1_addr(vtype)
        prev = []
        dp = self.c.depth
        for s in range(10):
            for ksl in range(2):
                if ksl == 0:
                    self.stage_sync(s)
                    if s == dp + 1:
                        self.publish_init()
                    if self.c.touch > 2 and s == self.c.touch - 2:
                        self.touch_w1()
                    if s == 9:
                        assert not side
                        self.q += self.bias_loads()
                    if s + dp <= self.c.pre2:
                        for t, g in self.dma_stage(s + dp):
                            self.q.append(self.vm(t, g))
                            for _ in range(3 if 0 < s < 9 else 1):
                                self.q.append(side.pop(0) if side else (lambda: None))
                self.unit(prev, self.reads(s, ksl, 4, ksl), drain=ksl == 1)
                prev = self.mfmas(2 * s + ksl, 4, ksl, vtype, s == 0 and ksl == 0)
        self.stage_sync(10)
        for s in range(10 + dp, self.c.pre2 + 1):
            self.q += [self.vm(t, g) for t, g in self.dma_stage(s)]
        self.unit(prev, self.reads(10, 0, 4, 0), drain=True)
        self.stamp("p1end")
        self.epi1(vtype)
        self.stamp("e1end")

    def pass1_fill(self):
        e = self.e
        dp = self.c.depth
        for x in self.deferred():
            x()
        for s in range(10):
            self.stage_sync(s)
            if self.c.touch > 2 and s == self.c.touch - 2:
                self.touch_w1()
            for r, tag in self.reads(s, 0, 0, 0) + self.reads(s, 1, 0, 1):
                e.lds(r, tag)
            if s == 9:
                for x in self.bias_loads():
                    x()
            if s + dp <= self.c.pre2:
                for t, g in self.dma_stage(s + dp, True):
                    e.vmem(t, g)
            e.wait(lg="all")
        self.stage_sync(10)
        for r, tag in self.reads(10, 0, 4, 0):
            e.lds(r, tag)
        for s in range(10 + dp, self.c.pre2 + 1):
            for t, g in self.dma_stage(s):
                e.vmem(t, g)
        self.stamp("p1end")
        e.wait(vm="bias")
        e.i(f"s_mov_b32 {sr(T0)}, {OOB}")
        for k in range(4):
            e.vmem(f"buffer_store_dword v0, off, {sr(R_WS, 4)}, {sr(T0)}", "e1")
        self.acc_init()
        self.stamp("e1end")

    def publish_init(self):
        go, back = self.lab("pub"), self.lab("pubr")
        self.e.i(f"""
        s_lshl3_add_u32 {sr(S_SPIN)}, s2, {sr(S_WV)}
        s_cmp_eq_u32 {sr(S_SPIN)}, 7
        s_cbranch_scc1 {go}
        """)
        self.e.label(back)
        self.cold.append(f"""
        {go}:
        v_mov_b32 v255, 1
        s_mov_b64 exec, 1
        buffer_store_dword v255, off, {sr(R_DBG, 4)}, 0 sc1
        s_mov_b64 exec, -1
        s_branch {back}
        """)

    def bias_loads(self):
        out = self.each(f"""
        s_mul_i32 {sr(T1)}, {sr(S_CG)}, 224
        s_lshl_b32 {sr(T2)}, {sr(S_CH)}, 7
        s_add_u32 {sr(T1)}, {sr(T1)}, {sr(T2)}
        v_lshlrev_b32 v21, 3, {vr(V_G4)}
        """)
        regs = (22, 24, 26, 28)
        for n in range(4):
            out.append(self.vm(f"buffer_load_dwordx2 {vr(regs[n], 2)}, v21, {sr(R_B1, 4)}, {sr(T1)} offen offset:{32 * n}",
                               "bias"))
        out.append(self.vm(f"buffer_load_dword v2, off, {sr(R_DBG, 4)}, 0 sc1", "dbg"))
        return out

    def epi1_addr(self, vtype):
        if vtype:
            txt = f"""
            s_lshl1_add_u32 {sr(T1)}, {sr(S_GAM)}, {sr(S_CH)}
            s_lshl_b32 {sr(T1)}, {sr(T1)}, 6
            s_mov_b32 {sr(T2)}, {64 * 2560 - 320}
            v_mul_u32_u24 v26, 320, {vr(V_G4)}
            s_mul_i32 {sr(T3)}, {sr(S_BLK)}, 2560
            s_add_u32 {sr(S_EPI)}, {sr(T3)}, {OFF_KV + 1280}
            """
            for n in range(4):
                txt += f"""
                v_add3_u32 v24, {vr(V_L15)}, {sr(T1)}, {16 * n}
                v_mul_u32_u24 v25, 3277, v24
                v_lshrrev_b32 v25, 16, v25
                v_lshl_add_u32 v24, v24, 4, v26
                v_mad_u32_u24 {vr(V_ST + n)}, v25, {sr(T2)}, v24
                """
            return self.each(txt)
        q = [self.ii(x) for x in f"""
        s_lshl1_add_u32 {sr(T1)}, {sr(S_GAM)}, {sr(S_CH)}
        s_lshl_b32 {sr(T1)}, {sr(T1)}, 3
        s_lshl_b32 {sr(T3)}, 1280, {sr(S_SEC)}
        s_lshl_b32 {sr(T2)}, {sr(T3)}, 6
        s_mul_i32 {sr(T3)}, {sr(T3)}, {sr(S_BLK)}
        --
        s_cmp_eq_u32 {sr(S_SEC)}, 0
        s_mov_b32 {sr(T4)}, {OFF_KV}
        s_cselect_b32 {sr(T4)}, {OFF_Q}, {sr(T4)}
        s_cselect_b32 {sr(S_SCALE)}, {f32(math.log2(math.e) / math.sqrt(20.0))}, 1.0
        s_cselect_b32 {sr(S_WB)}, 0xfffe0000, -1
        s_cselect_b32 {sr(S_HB)}, 0x10000, 0
        s_add_u32 {sr(S_EPI)}, {sr(T3)}, {sr(T4)}
        """.split("--")]
        q += self.each(f"v_lshrrev_b32 v27, 1, {vr(V_G4)}")
        for p in range(2):
            mask, a, b = (S_MA, S_MB)[p], V_ST + 2 * p, V_ST + 2 * p + 1
            q += self.each(f"""
            v_add3_u32 v24, {vr(V_G4)}, {sr(T1)}, {4 * p}
            v_mul_u32_u24 v25, 410, v24
            v_lshrrev_b32 v25, 10, v25
            v_mad_u32_u24 v26, v25, 5, 1
            v_lshrrev_b32 v26, 1, v26
            v_sub_u32 v26, v24, v26
            v_cmp_eq_u32 {sr(mask, 2)}, 2, v26
            v_lshlrev_b32 v26, 9, v26
            v_lshl_add_u32 v26, {vr(V_L15)}, 4, v26
            v_mad_u32_u24 {vr(a)}, v25, {sr(T2)}, v26
            v_add_u32 {vr(b)}, 256, {vr(a)}
            v_xor_b32 v28, 1, v27
            """)
            q.append(self.ii(f"""
            s_mov_b64 exec, {sr(mask, 2)}
            v_mad_u32_u24 {vr(b)}, v28, {sr(T2)}, {vr(a)}
            v_mad_u32_u24 {vr(a)}, v27, {sr(T2)}, {vr(a)}
            s_mov_b64 exec, -1
            """))
        return q

    def acc_init(self):
        e = self.e
        for n in range(4):
            r = 22 + 2 * n
            for h in range(2):
                e.i(f"v_lshlrev_b32 {vr(acc(n, 0) + 2 * h)}, 16, {vr(r + h)}")
                e.i(f"v_and_b32 {vr(acc(n, 0) + 2 * h + 1)}, 0xffff0000, {vr(r + h)}")
            for k in range(4):
                e.i(f"v_mov_b32 {vr(acc(n, 1) + k)}, {vr(acc(n, 0) + k)}")

    def epi1(self, vtype):
        e = self.e
        e.wait(vm="bias")
        e.i("s_nop 1")
        for p in range(2):
            qa, qb = V_WB[1] + 8 * p, V_WB[1] + 8 * p + 4
            if vtype:
                for n, dst in ((2 * p, qa), (2 * p + 1, qb)):
                    for rt in range(2):
                        for h in range(2):
                            a = acc(n, rt) + 2 * h
                            e.i(f"v_cvt_pk_bf16_f32 {vr(dst + 2 * rt + h)}, {vr(a)}, {vr(a + 1)}")
            else:
                for k in range(16):
                    r = acc(2 * p, 0) + k
                    e.i(f"v_mul_f32 {vr(r)}, {sr(S_SCALE)}, {vr(r)}")
                for op, sg in (("v_add_u32", S_HB), ("v_and_b32", S_WB)):
                    for k in range(0, 16, 4):
                        r = acc(2 * p, 0) + k
                        e.i(f"{op} {vr(r)}, {sr(sg)}, {vr(r)}")
                for rt, dst in ((0, qa), (1, qb)):
                    for ab in range(2):
                        for h in range(2):
                            a = acc(2 * p + ab, rt) + 2 * h
                            e.i(f"v_cvt_pk_bf16_f32 {vr(dst + 2 * ab + h)}, {vr(a)}, {vr(a + 1)}")
                e.i(f"""
                s_mov_b64 exec, {sr((S_MA, S_MB)[p], 2)}
                v_swap_b32 {vr(qa + 2)}, {vr(qb)}
                v_swap_b32 {vr(qa + 3)}, {vr(qb + 1)}
                s_mov_b64 exec, -1
                """)
            for k, q in enumerate((qa, qb)):
                e.vmem(f"buffer_store_dwordx4 {vr(q, 4)}, {vr(V_ST + 2 * p + k)}, {sr(R_WS, 4)}, {sr(S_EPI)} offen sc1", "e1")
        self.acc_init()

    def job_issue(self):
        out = []
        for h in range(2):
            out.append(self.vm(f"s_add_u32 m0, {sr(S_M0)}, {JOBLDS + h * 1024}\ns_nop 0\n"
                               f"buffer_load_dwordx4 {vr(30 + h)}, {sr(R_JOB, 4)}, 0 offen lds", "job"))
        return out

    def job_addr(self):
        out = self.each(f"""
        v_lshlrev_b32 {vr(A_L16)}, 4, v0
        v_lshlrev_b32 {vr(A_T)}, 2, v0
        v_and_b32 v24, 1, {vr(V_G4)}
        v_lshlrev_b32 v27, 10, v24
        v_bfe_u32 v24, v0, 2, 2
        v_lshl_add_u32 v27, v24, 7, v27
        v_lshrrev_b32 v25, 5, v0
        v_lshl_add_u32 v27, v25, 5, v27
        v_and_b32 v24, 3, v0
        v_lshl_add_u32 v27, v24, 3, v27
        s_add_u32 {sr(T4)}, {sr(S_M0)}, {JOBLDS}
        v_add_u32 v27, {sr(T4)}, v27
        v_lshl_add_u32 v29, v25, 9, {vr(A_L16)}
        """)
        return out

    def gate_issue(self):
        pre = f"""
        s_lshl_b32 {sr(T3)}, {sr(S_RB)}, 4
        s_add_u32 {sr(T3)}, {sr(T3)}, {sr(S_CG)}
        s_lshl_b32 {sr(T3)}, {sr(T3)}, 3
        s_add_u32 {sr(T3)}, {sr(T3)}, {sr(S_WV)}
        s_mul_i32 {sr(T3)}, {sr(T3)}, 1280
        """
        return [self.vm(pre + f"buffer_load_dwordx4 v[136:139], {vr(A_L16)}, {sr(R_X, 4)}, {sr(T3)} offen", "gate"),
                self.vm(f"buffer_load_dword v140, {vr(A_T)}, {sr(R_X, 4)}, {sr(T3)} offen offset:1024", "gate"),
                self.vm(f"buffer_load_dwordx4 v[142:145], {vr(A_L16)}, {sr(R_GW, 4)}, 0 offen", "gate"),
                self.vm(f"buffer_load_dword v146, {vr(A_T)}, {sr(R_GW, 4)}, 0 offen offset:1024", "gate")]

    def flag_store(self, val, check_init):
        e = self.e
        skip = self.lab("nofl")
        e.i(f"s_cmp_lg_u32 {sr(S_WV)}, 0\ns_cbranch_scc1 {skip}")
        if check_init:
            ok, lp = self.lab("iok"), self.lab("ilp")
            e.i(f"v_readfirstlane_b32 {sr(T1)}, v2\ns_cmp_eq_u32 {sr(T1)}, 0\ns_cbranch_scc1 {lp}")
            e.label(ok)
            self.cold.append(f"""
            {lp}:
            s_mov_b32 {sr(S_SPIN)}, {SPIN}
            {lp}_a:
            buffer_load_dword v2, off, {sr(R_DBG, 4)}, 0 sc1
            s_waitcnt vmcnt(0)
            v_readfirstlane_b32 {sr(T1)}, v2
            s_cmp_lg_u32 {sr(T1)}, 0
            s_cbranch_scc1 {ok}
            s_sleep 8
            s_sub_u32 {sr(S_SPIN)}, {sr(S_SPIN)}, 1
            s_cmp_lg_u32 {sr(S_SPIN)}, 0
            s_cbranch_scc1 {lp}_a
            s_branch {ok}
            """)
        e.i(f"""
        s_lshl_b32 {sr(T1)}, {sr(S_CG)}, 4
        s_add_u32 {sr(T1)}, {sr(T1)}, {sr(S_RB)}
        s_lshl_b32 {sr(T1)}, {sr(T1)}, 7
        v_mov_b32 v1, {val}
        s_mov_b64 exec, 1
        buffer_store_dword v1, off, {sr(R_WS, 4)}, {sr(T1)} sc1
        s_mov_b64 exec, -1
        """)
        e.label(skip)

    def side_job_read(self):
        e = self.e

        def f():
            e.wait(vm="job")
            for ph in range(2):
                for q in range(2):
                    e.lds(f"ds_read_b64_tr_b16 {vr(80 + 4 * ph + 2 * q, 2)}, v27 offset:{q * 512 + ph * 64}", "jr")
        return [f]

    def side_job_store(self):
        return [self.vm(f"buffer_store_dwordx4 {vr(80 + 4 * ph, 4)}, v29, {sr(R_WS, 4)}, {sr(S_JST)} offen offset:{2048 * ph} sc1",
                        "js") for ph in range(2)]

    def side_gate(self):
        e = self.e
        out = [lambda: e.wait(vm="gate")]
        out += self.each("v_dot2_f32_bf16 v22, v136, v142, 0\n" +
                         "\n".join(f"v_dot2_f32_bf16 v22, {vr(136 + i)}, {vr(142 + i)}, v22" for i in range(1, 5)))
        out += self.each("\n".join(f"s_nop {2 if sh == 8 else 1}\nv_add_f32_dpp v22, v22, v22 row_ror:{sh} row_mask:0xf bank_mask:0xf"
                                   for sh in (8, 4, 2, 1)))
        out += self.each(f"""
        s_nop 0
        v_readlane_b32 {sr(T1)}, v22, 16
        v_readlane_b32 {sr(T2)}, v22, 32
        v_readlane_b32 {sr(T3)}, v22, 48
        v_add_f32 v22, {sr(T1)}, v22
        v_add_f32 v22, {sr(T2)}, v22
        v_add_f32 v22, {sr(T3)}, v22
        v_mul_f32 v22, {f32(-math.log2(math.e))}, v22
        v_exp_f32 v22, v22
        s_nop 0
        v_add_f32 v22, 1.0, v22
        v_rcp_f32 v22, v22
        """)
        out.append(self.vm(f"""
        s_lshl4_add_u32 {sr(T1)}, {sr(S_RB)}, {sr(S_CG)}
        s_lshl_b32 {sr(T1)}, {sr(T1)}, 7
        s_lshl2_add_u32 {sr(T1)}, {sr(S_WV)}, {sr(T1)}
        s_add_u32 {sr(T1)}, {sr(T1)}, {OFF_G}
        s_mov_b64 exec, 1
        buffer_store_dword v22, off, {sr(R_WS, 4)}, {sr(T1)} sc1
        s_mov_b64 exec, -1
        """, "gs"))
        return out

    def poll(self, vaddr, vdat, val, nlanes, tag):
        e = self.e
        mask = (1 << nlanes) - 1
        setx = "s_mov_b32 exec_hi, 0" if nlanes == 32 else f"s_mov_b64 exec, {mask:#x}"

        def issue():
            e.i(setx)
            e.vmem(f"buffer_load_dword {vr(vdat)}, {vr(vaddr)}, {sr(R_WS, 4)}, 0 offen sc1", tag)
            e.i("s_mov_b64 exec, -1")

        def check():
            ok, lp = self.lab("pok"), self.lab("plp")
            e.wait(vm=tag)
            e.i(f"""
            v_cmp_gt_u32 vcc, {val}, {vr(vdat)}
            s_and_b32 {sr(T1)}, vcc_lo, {mask:#x}
            s_cbranch_scc1 {lp}
            """)
            e.label(ok)
            self.cold.append(f"""
            {lp}:
            s_mov_b32 {sr(S_SPIN)}, {SPIN}
            {lp}_a:
            {setx}
            buffer_load_dword {vr(vdat)}, {vr(vaddr)}, {sr(R_WS, 4)}, 0 offen sc1
            s_mov_b64 exec, -1
            s_waitcnt vmcnt(0)
            v_cmp_gt_u32 vcc, {val}, {vr(vdat)}
            s_and_b32 {sr(T1)}, vcc_lo, {mask:#x}
            s_cbranch_scc0 {ok}
            s_sub_u32 {sr(S_SPIN)}, {sr(S_SPIN)}, 1
            s_cmp_lg_u32 {sr(S_SPIN)}, 0
            s_cbranch_scc1 {lp}_a
            s_branch {ok}
            """)
        return issue, check

    def poll1_addr(self):
        return self.each(f"""
        s_mul_i32 {sr(T4)}, {sr(S_HD)}, 20
        v_and_b32 v28, 1, v0
        v_mad_u32_u24 v28, v28, 19, {sr(T4)}
        v_lshrrev_b32 v28, 7, v28
        v_lshrrev_b32 v24, 2, v0
        v_mad_u32_u24 v28, v24, 5, v28
        v_bfe_u32 v25, v0, 1, 1
        v_lshl_add_u32 v25, v25, 3, {sr(S_WV)}
        """) + [self.ii(f"""
        s_lshr_b32 {sr(T4)}, {sr(S_RTQ)}, 2
        s_mov_b64 exec, 15
        v_mov_b32 v25, {sr(T4)}
        s_mov_b64 exec, -1
        """)] + self.each(f"""
        v_lshl_add_u32 v28, v28, 4, v25
        v_lshlrev_b32 {vr(A_P)}, 7, v28
        v_bfe_u32 v24, v0, 4, 1
        v_lshlrev_b32 v24, 3, v24
        v_lshl_add_u32 {vr(A_QA)}, {vr(V_L15)}, 4, v24
        """)

    def kv_dma(self, rnd):
        out = []
        for i in range(5):
            src = (rnd >> 1) * 81920 + (rnd & 1) * 5120 + i * 1024
            out.append(self.vm(f"s_add_u32 m0, {sr(S_KVL)}, {rnd * 40960 + i * 1024}\n"
                               f"s_add_u32 {sr(T2)}, {sr(S_KVB)}, {src}\n"
                               f"buffer_load_dwordx4 {vr(A_L16)}, {sr(R_WS, 4)}, {sr(T2)} offen sc1 lds", f"kv{rnd}"))
        return out

    def att_setup(self):
        out = self.each(f"""
        v_lshrrev_b32 v23, 5, v0
        v_bfe_u32 v24, v0, 3, 2
        v_and_b32 v25, 3, v0
        v_lshl_add_u32 v24, v24, 2, v25
        v_bfe_u32 v25, v0, 2, 1
        v_lshlrev_b32 v26, 9, v23
        v_lshl_add_u32 v26, v25, 8, v26
        v_lshl_add_u32 {vr(A_AK)}, v24, 4, v26
        v_mul_u32_u24 v26, 2560, v23
        v_lshl_add_u32 v26, v24, 4, v26
        v_lshl_add_u32 {vr(A_AKR)}, v25, 3, v26
        v_mul_u32_u24 v26, 192, v23
        v_sub_u32 {vr(A_AV)}, {vr(A_L16)}, v26
        """)
        return out

    def att_consts(self):
        e = self.e
        e.i(f"""
        v_mov_b32 {vr(A_IDX)}, 0xdddddddd
        v_mov_b32 {vr(A_VLO)}, 0
        s_mov_b32 exec_lo, 0x11000000
        s_mov_b32 exec_hi, 0x11000000
        v_mov_b32 {vr(A_VLO)}, 0x3f803f80
        s_mov_b64 exec, -1
        """)
        for r in range(A_VLO + 1, A_VLO + 12):
            e.i(f"v_mov_b32 {vr(r)}, {vr(A_VLO)}")
        for r in range(A_O, A_O + 16):
            e.i(f"v_mov_b32 {vr(r)}, 0")

    def q_loads(self):
        return [self.vm(f"buffer_load_dwordx4 {vr(A_QM, 4)}, {vr(A_L16)}, {sr(R_WS, 4)}, {sr(S_OBLK)} offen sc1", "q"),
                self.vm(f"buffer_load_dwordx2 {vr(A_QLO, 2)}, {vr(A_QA)}, {sr(R_WS, 4)}, {sr(S_OBLK)} offen offset:1024 sc1", "q")]

    def pass2(self, ch):
        e, c = self.e, self.c
        nt = 3 if ch else 4
        assert c.u_chk1 >= 16
        p_issue, p_check = self.poll(A_P, A_P + 1, 1, 12, "p1")
        prev = self.mfmas(0, nt, 0, False, False)
        late = [self.vm(t, g) for s in range(c.pre2 + 1, 15) for t, g in self.dma_stage(s)]
        late += self.gate_issue()

        def chk():
            self.stamp("u18")
            p_check()
            self.stamp("chk1")
        for u in range(1, 21):
            s, ksl = 10 + (u >> 2), u & 3
            if ksl == 0 and u < 20:
                assert len(late) <= 4 + 4 * (14 - s)
                self.stage_sync(s, ["e1", "dbg"] if u == c.u_flag1 else [])
            elif u == c.u_flag1:
                e.wait(vm=["e1", "dbg"])
                e.i("s_barrier")
            if u == c.u_flag1:
                self.stamp("fl1")
                self.flag_store(1, True)
            if u == 2:
                self.q += self.job_addr() + self.poll1_addr()
            if u >= c.u_late:
                for _ in range(3):
                    if late:
                        self.q += [late.pop(0), lambda: None]
            if u == c.u_poll1:
                assert not late
                self.q.append(p_issue)
            if u == c.u_chk1:
                self.q += [chk] + self.q_loads() + self.kv_dma(0) + self.job_issue()
            self.unit(prev, self.reads(s, ksl, nt, u & 1) if u < 20 else [],
                      drain=u >= c.u_late - 1 and u != c.u_chk1 or u == 20)
            if u < 20:
                prev = self.mfmas(u, nt, u & 1, False, False)
        self.stamp("p2end")
        pk = V_WB[0]
        e.i("s_nop 2")
        for p in range(2):
            tiles = [n for n in (2 * p, 2 * p + 1) if n < nt]
            for n in tiles:
                for k in range(8):
                    r = acc(n, 0) + k
                    e.i(f"v_max_f32 {vr(r)}, 0, {vr(r)}")
                for k in range(8):
                    r = acc(n, 0) + k
                    e.i(f"v_mul_f32 {vr(r)}, {vr(r)}, {vr(r)}")
            for rt in range(2):
                b = pk + 8 * p + (4 if len(tiles) == 2 else 2) * rt
                for ab, n in enumerate(tiles):
                    for h in range(2):
                        a = acc(n, rt) + 2 * h
                        e.i(f"v_cvt_pk_bf16_f32 {vr(b + 2 * ab + h)}, {vr(a)}, {vr(a + 1)}")
        if c.u_chk1 > 20:
            for x in [chk] + self.q_loads() + self.kv_dma(0) + self.job_issue():
                x()
        e.wait(lg="all")

    def bubble(self):
        e = self.e
        e.i("s_barrier")
        st = []
        for k in range(4):
            pre = f"s_cmp_eq_u32 {sr(S_CH)}, 0\ns_cselect_b32 {sr(S_HST)}, {sr(S_HST)}, {OOB}\n" if k == 3 else ""
            st.append(self.vm(pre + f"buffer_store_dwordx4 {vr(V_WB[0] + 4 * k, 4)}, {vr(A_L16)}, {sr(R_WS, 4)}, {sr(S_HST)} offen "
                              f"offset:{1024 * k} sc1", "hs"))
        gate = self.side_gate()
        js = self.side_job_store()
        st += [gate.pop()] + self.side_job_read() + [lambda: (e.wait(lg="jr"), js[0]()), js[1]]
        for x in st[:self.c.nst0] + gate + self.att_setup():
            x()
        self.att_consts()
        return st[self.c.nst0:]

    def lds_off(self, reg, off):
        base = self.win[reg]
        while off - base > 65535 - 2560:
            base += 61440
            self.e.i(f"v_add_u32 {vr(reg)}, 61440, {vr(reg)}")
        self.win[reg] = base
        return off - base

    def rd_k(self, t):
        if t < 64:
            o = self.lds_off(A_AK, t * 2560)
            self.e.lds(f"ds_read_b128 {vr(A_KM, 4)}, {vr(A_AK)} offset:{o}", f"k{t}")

    def rd_kr(self, t):
        if t < 64:
            o = self.lds_off(A_AKR, t * 2560)
            self.e.lds(f"ds_read_b64 {vr(A_KR, 2)}, {vr(A_AKR)} offset:{o + 1024}", f"r{t}")

    def rd_v(self, t):
        if t < 64:
            e = self.e
            o = self.lds_off(A_AV, t * 2560)
            e.i(f"s_mov_b64 exec, {sr(S_VMASK, 2)}")
            e.lds(f"ds_read_b128 {vr(A_VLO, 4)}, {vr(A_AV)} offset:{o + 1280}", f"vl{t}")
            e.lds(f"ds_read_b128 {vr(A_VHI[t & 1], 4)}, {vr(A_AV)} offset:{o + 1920}", f"vh{t}")
            e.i("s_mov_b64 exec, -1")

    def qk1(self, t):
        self.e.wait(lg=f"k{t}")
        self.e.i(f"v_mfma_f32_32x32x16_bf16 {vr(A_S[t & 1], 16)}, {vr(A_KM, 4)}, {vr(A_QM, 4)}, 0")
        self.rd_k(t + 1)

    def qk2(self, t):
        self.e.wait(lg=f"r{t & ~1}")
        s = vr(A_S[t & 1], 16)
        self.e.i(f"v_mfma_f32_32x32x8_bf16 {s}, {vr(A_KR, 2)}, {vr((A_QLO, A_QHI)[t & 1], 2)}, {s}")
        if t & 1:
            self.rd_kr(t + 1)

    def pvlo(self, t):
        self.e.wait(lg=f"vl{t}")
        self.e.i(f"v_smfmac_f32_32x32x32_bf16 {vr(A_O, 16)}, {vr(A_VLO, 4)}, {vr(A_S[t & 1], 8)}, {vr(A_IDX)}")
        self.rd_v(t + 1)

    def pvhi(self, t):
        self.e.wait(lg=f"vh{t}")
        self.e.i(f"v_smfmac_f32_32x32x32_bf16 {vr(A_O, 16)}, {vr(A_VHI[t & 1], 4)}, {vr(A_S[t & 1] + 8, 8)}, {vr(A_IDX)}")

    def ring_a(self, i, r):
        return A_RING + (i & 1) * 36 + 4 * r

    def ring_w(self, i, n):
        if i == 9:
            return self.ring_a(1, n) if n < 4 else 12
        return A_RING + (i & 1) * 36 + 16 + 4 * n

    def ld_w(self, i, n):
        if i < 7:
            pre = f"s_add_u32 {sr(T2)}, {sr(S_WB)}, {i * 40960 + n * 1024}"
        elif i < 9:
            pre = f"s_add_u32 {sr(T2)}, {sr(S_EPI)}, {(i - 7) * 40960 + n * 1024}"
        else:
            pre = f"s_add_u32 {sr(T2)}, {sr(S_WOB)}, {n * 1024}"
        return self.vm(f"{pre}\nbuffer_load_dwordx4 {vr(self.ring_w(i, n), 4)}, {vr(A_L16)}, {sr(R_WS, 4)}, {sr(T2)} offen sc1",
                       f"w{i}_{n}")

    def ld_a(self, i, r):
        slot = 7 * (i // 3) + 2 * (i % 3) + (r & 1) if i < 6 else 6 + 7 * (r & 1)
        return self.vm(f"s_add_u32 {sr(T2)}, {sr((S_HB, S_HB2)[r >> 1])}, {slot * 1024}\n"
                       f"buffer_load_dwordx4 {vr(self.ring_a(i, r), 4)}, {vr(A_L16)}, {sr(R_WS, 4)}, {sr(T2)} offen sc1",
                       f"a{i}_{r}")

    def facc(self, r, n):
        return A_FACC + (r * 5 + n) * 4

    def ffn_prep(self, fs):
        e = self.e
        tags = []
        for i, n, r in fs:
            tags += [f"w{i}_{n}", f"a{i}_{r}"]
        if (6, 0, 0) in fs:
            tags += [f"a6_{r}" for r in range(4)]
        pend = {t for t in tags if t not in self.issued}
        while pend:
            self.pop(1)
            pend = {t for t in tags if t not in self.issued}
        e.wait(vm=tags)
        if (6, 0, 0) in fs:
            for r in (0, 2):
                for k in range(2):
                    e.i(f"v_swap_b32 {vr(self.ring_a(6, r) + 2 + k)}, {vr(self.ring_a(6, r + 1) + k)}")
            e.i("s_nop 1")

    def ffn_mfma(self, i, n, r):
        d = vr(self.facc(r, n), 4)
        self.e.i(f"v_mfma_f32_16x16x32_bf16 {d}, {vr(self.ring_w(i, n), 4)}, {vr(self.ring_a(i, r), 4)}, {'0' if i == 0 else d}")
        if r == 3:
            self.q.append(self.ld_w(i + 2, n))
        if n == 4:
            if i + 2 < 7:
                self.q.append(self.ld_a(i + 2, r))
            elif i == 5:
                self.q.append(self.ld_w(9, r))
                if r == 3:
                    self.q.append(self.ld_w(9, 4))

    def attention(self):
        e, c = self.e, self.c
        assert c.t_flag2 <= 15 and c.t_chk2 <= 31
        self.win = {A_AK: 0, A_AKR: 0, A_AV: 0}
        p_issue, p_check = self.poll(A_P, A_P + 1, 2, 32, "p2")
        left = self.bubble()
        e.i(f"""
        s_lshl_b32 {sr(T1)}, {sr(S_WV)}, 12
        v_lshl_add_u32 {vr(A_P)}, v0, 7, {sr(T1)}
        v_bfe_u32 {vr(A_T)}, v0, 3, 2
        v_and_b32 {vr(A_T + 1)}, 7, v0
        v_lshlrev_b32 {vr(A_T + 1)}, 2, {vr(A_T + 1)}
        v_lshl_add_u32 {vr(A_T)}, {vr(A_T)}, 7, {vr(A_T + 1)}
        v_and_b32 {vr(A_T + 1)}, 0xff, {vr(A_T)}
        s_mul_i32 {sr(T2)}, {sr(S_CT)}, 5120
        s_add_u32 {sr(T2)}, {sr(T2)}, {OFF_WT}
        s_mul_i32 {sr(T1)}, {sr(S_WV)}, {7 * 40960}
        s_add_u32 {sr(S_WB)}, {sr(T1)}, {sr(T2)}
        s_mul_i32 {sr(T1)}, {sr(S_RQ)}, {5 * 40960}
        s_add_u32 {sr(T1)}, {sr(T1)}, {sr(T2)}
        s_add_u32 {sr(S_WOB)}, {sr(T1)}, {60 * 40960}
        s_mul_i32 {sr(T2)}, {sr(S_CH)}, {2 * 40960}
        s_add_u32 {sr(T1)}, {sr(T1)}, {sr(T2)}
        s_add_u32 {sr(S_EPI)}, {sr(T1)}, {56 * 40960}
        s_lshl_b32 {sr(T1)}, {sr(S_RT)}, 1
        s_add_u32 {sr(S_BLK)}, {sr(T1)}, {sr(S_CH)}
        s_mul_i32 {sr(T2)}, {sr(S_WV)}, 14336
        s_add_u32 {sr(T2)}, {sr(T2)}, {OFF_H}
        s_mul_i32 {sr(T1)}, {sr(S_BLK)}, {112 * 1024}
        s_add_u32 {sr(S_HB)}, {sr(T1)}, {sr(T2)}
        s_xor_b32 {sr(T1)}, {sr(S_BLK)}, 1
        s_mul_i32 {sr(T1)}, {sr(T1)}, {112 * 1024}
        s_add_u32 {sr(S_HB2)}, {sr(T1)}, {sr(T2)}
        """)
        e.wait(vm=["kv0", "q"])
        e.i(f"""
        v_mov_b32 {vr(A_QHI)}, {vr(A_QLO)}
        v_mov_b32 {vr(A_QHI + 1)}, {vr(A_QLO + 1)}
        s_mov_b32 exec_hi, 0
        v_mov_b32 {vr(A_QHI)}, 0
        v_mov_b32 {vr(A_QHI + 1)}, 0
        s_not_b64 exec, exec
        v_mov_b32 {vr(A_QLO)}, 0
        v_mov_b32 {vr(A_QLO + 1)}, 0
        s_mov_b64 exec, -1
        s_barrier
        """)
        self.stamp("att0")
        self.rd_k(0)
        self.rd_kr(0)
        self.q += self.spaced(left, c.stgap)[:-c.stgap]
        ffn = [(i, n, r) for i in range(7) for n in range(5) for r in range(4)]
        nt = 64 - c.ffn_start
        done = 0
        for t in range(65):
            nf = 0
            if c.ffn_start <= t < 64:
                nf = (c.ffn_emb * (t - c.ffn_start + 1) + nt - 1) // nt - done
            fs = ffn[done:done + nf]
            done += nf
            if t == c.t_kv:
                self.q += self.kv_dma(1)
            if t == c.t_flag2:
                assert "js" in self.issued
                self.stamp("fl2a")
                assert not self.q
                e.wait(vm=["hs", "gs", "js", "kv1"])
                e.i("s_barrier")
                self.stamp("fl2b")
                self.flag_store(2, False)
                self.q += self.kv_dma(2) + self.kv_dma(3)
            if t == c.t_poll2:
                assert not self.q
                p_issue()
            if t == c.t_chk2:
                self.stamp("chk2a")
                p_check()
                e.i("s_barrier")
                self.stamp("chk2")
                self.after_flags2()
            self.stamp(f"t{t}")
            self.tile(t, fs)
        e.i("s_setprio 0")
        self.stamp("attend")
        self.ffn_left = ffn[done:]

    def after_flags2(self):
        for i in range(2):
            self.q += [self.ld_w(i, 0)] + [self.ld_a(i, r) for r in range(4)] + [self.ld_w(i, n) for n in range(1, 5)]
        self.q.append(self.vm(f"""
        s_lshl_b32 {sr(T2)}, {sr(S_RTQ)}, 9
        s_add_u32 {sr(T2)}, {sr(T2)}, {OFF_G}
        buffer_load_dword {vr(A_GA)}, {vr(A_T)}, {sr(R_WS, 4)}, {sr(T2)} offen sc1
        """, "g"))
        for r in range(4):
            self.q.append(self.vm(f"""
            s_xor_b32 {sr(T2)}, {sr(S_BLK)}, {r >> 1}
            s_lshl_b32 {sr(T2)}, {sr(T2)}, 9
            s_add_u32 {sr(T2)}, {sr(T2)}, {OFF_G + 256 * (r & 1)}
            buffer_load_dword {vr(A_GF + r)}, {vr(A_T + 1)}, {sr(R_WS, 4)}, {sr(T2)} offen sc1
            """, "g"))

    def pop(self, n):
        for _ in range(n):
            if self.q:
                self.q.pop(0)()

    def tile(self, t, fs):
        e, c = self.e, self.c
        e.i("s_setprio 2")
        if t < 64:
            self.qk1(t)
            self.pop(1)
        if t > 0:
            if t == 64:
                e.i("s_nop 0")
            self.pvlo(t - 1)
        else:
            self.rd_v(0)
        n0 = len(e.lines)
        if t < 64:
            self.qk2(t)
            self.pop(1)
        n1 = len(e.lines)
        if t > 0:
            self.pvhi(t - 1)
        if t == 64:
            return
        if fs:
            self.ffn_prep(fs)
            e.i("s_setprio 3")
        x = A_S[t & 1]
        for k in range(16):
            if k < len(fs):
                self.ffn_mfma(*fs[k])
            if k == len(fs):
                e.i("s_setprio 0")
            if k == (c.qpos if fs else 8):
                e.i("s_setprio 1")
            if k == 0:
                kk = max(i for i in range(n0, n1) if "32x32x8" in e.lines[i])
                pad = 12 - (len(e.lines) - 1 - kk)
                if pad > 0:
                    e.lines.insert(n1, f"s_nop {pad - 1}")
            e.i(f"v_exp_f32 {vr(x + k)}, {vr(x + k)}")

    def fallback(self, back):
        x, m = A_S[0], A_S[1]
        L = []
        A = L.append
        A(f"""
        L_fb:
        v_add_u32 {vr(A_AK)}, {(-self.win[A_AK]) & 0xffffffff:#x}, {vr(A_AK)}
        v_add_u32 {vr(A_AKR)}, {(-self.win[A_AKR]) & 0xffffffff:#x}, {vr(A_AKR)}
        v_add_u32 {vr(A_AV)}, {(-self.win[A_AV]) & 0xffffffff:#x}, {vr(A_AV)}
        v_mov_b32 {vr(m)}, 0xff800000
        """)
        for ps in range(2):
            A(f"s_mov_b32 {sr(T1)}, 0\nL_fb{ps}:")
            for par in range(2):
                A(f"""
                ds_read_b128 {vr(A_KM, 4)}, {vr(A_AK)} offset:{par * 2560}
                ds_read_b64 {vr(A_KR, 2)}, {vr(A_AKR)} offset:1024
                """)
                if ps:
                    A(f"""
                    s_mov_b64 exec, {sr(S_VMASK, 2)}
                    ds_read_b128 {vr(A_VLO, 4)}, {vr(A_AV)} offset:{par * 2560 + 1280}
                    ds_read_b128 {vr(A_VHI[0], 4)}, {vr(A_AV)} offset:{par * 2560 + 1920}
                    s_mov_b64 exec, -1
                    """)
                A(f"""
                s_waitcnt lgkmcnt(0)
                v_mfma_f32_32x32x16_bf16 {vr(x, 16)}, {vr(A_KM, 4)}, {vr(A_QM, 4)}, 0
                v_mfma_f32_32x32x8_bf16 {vr(x, 16)}, {vr(A_KR, 2)}, {vr((A_QLO, A_QHI)[par], 2)}, {vr(x, 16)}
                s_nop 11
                """)
                if ps == 0:
                    for k in range(0, 16, 2):
                        A(f"v_max3_f32 {vr(m)}, {vr(m)}, {vr(x + k)}, {vr(x + k + 1)}")
                else:
                    for k in range(16):
                        A(f"v_sub_f32 {vr(x + k)}, {vr(x + k)}, {vr(m)}\nv_exp_f32 {vr(x + k)}, {vr(x + k)}")
                    A(f"""
                    s_nop 1
                    v_smfmac_f32_32x32x32_bf16 {vr(A_O, 16)}, {vr(A_VLO, 4)}, {vr(x, 8)}, {vr(A_IDX)}
                    v_smfmac_f32_32x32x32_bf16 {vr(A_O, 16)}, {vr(A_VHI[0], 4)}, {vr(x + 8, 8)}, {vr(A_IDX)}
                    s_nop 7
                    """)
            A(f"""
            v_add_u32 {vr(A_AK)}, 5120, {vr(A_AK)}
            v_add_u32 {vr(A_AKR)}, 5120, {vr(A_AKR)}
            """)
            if ps:
                A(f"v_add_u32 {vr(A_AV)}, 5120, {vr(A_AV)}")
            A(f"""
            s_add_u32 {sr(T1)}, {sr(T1)}, 1
            s_cmp_lt_u32 {sr(T1)}, 32
            s_cbranch_scc1 L_fb{ps}
            """)
            if ps == 0:
                A(f"""
                v_mov_b32 {vr(m + 1)}, {vr(m)}
                v_add_u32 {vr(A_AK)}, {(-163840) & 0xffffffff:#x}, {vr(A_AK)}
                v_add_u32 {vr(A_AKR)}, {(-163840) & 0xffffffff:#x}, {vr(A_AKR)}
                v_permlane32_swap_b32 {vr(m)}, {vr(m + 1)}
                s_nop 1
                v_max_f32 {vr(m)}, {vr(m)}, {vr(m + 1)}
                """)
                for r in range(A_O, A_O + 16):
                    A(f"v_mov_b32 {vr(r)}, 0")
        A(f"s_nop 7\ns_branch {back}")
        self.cold.append("\n".join(L))

    def tail(self):
        e, c = self.e, self.c
        o, t0 = A_O, A_P
        back = "L_fb_back"
        e.i("s_nop 11")
        e.i(f"v_mov_b32 {vr(t0)}, {vr(o + 12)}")
        for k in range(12):
            e.i(f"v_fma_f32 {vr(t0)}, {vr(o + k)}, 0, {vr(t0)}")
        lo, hi = (2.0 ** 40, 2.0 ** -20) if c.force_fallback else (2.0 ** -20, 2.0 ** 40)
        e.i(f"""
        v_cmp_nle_f32 vcc, {f32(lo)}, {vr(t0)}
        s_mov_b64 {sr(S_MA, 2)}, vcc
        v_cmp_nge_f32 vcc, {f32(hi)}, {vr(t0)}
        s_or_b64 vcc, vcc, {sr(S_MA, 2)}
        s_cbranch_scc1 L_fb
        """)
        e.label(back)
        self.fallback(back)
        e.wait(vm="g")
        e.i(f"""
        v_rcp_f32 {vr(t0)}, {vr(o + 12)}
        v_and_b32 {vr(t0 + 1)}, 31, v0
        v_mul_f32 {vr(t0)}, {vr(t0)}, {vr(A_GA)}
        v_lshlrev_b32 {vr(t0 + 1)}, 3, {vr(t0 + 1)}
        """)
        for k in range(12):
            e.i(f"v_mul_f32 {vr(o + k)}, {vr(o + k)}, {vr(t0)}")
        for k in range(0, 12, 4):
            e.i(f"v_and_b32 {vr(o + k)}, 0xfffe0000, {vr(o + k)}")
        for k in range(6):
            e.i(f"v_cvt_pk_bf16_f32 {vr(o + k)}, {vr(o + 2 * k)}, {vr(o + 2 * k + 1)}")
        for k in range(0, 6, 2):
            e.i(f"v_or_b32 {vr(o + k)}, 1, {vr(o + k)}")
        e.vmem(f"buffer_store_dwordx4 {vr(o, 4)}, {vr(A_L16)}, {sr(R_WS, 4)}, {sr(S_OBLK)} offen sc1", "os")
        e.i("s_mov_b32 exec_hi, 0")
        e.vmem(f"buffer_store_dwordx2 {vr(o + 4, 2)}, {vr(t0 + 1)}, {sr(R_WS, 4)}, {sr(S_OBLK)} offen offset:1024 sc1", "os")
        e.i("s_mov_b64 exec, -1")
        for f in self.ffn_left:
            self.ffn_prep([f])
            self.ffn_mfma(*f)
        while self.q:
            self.pop(1)
        e.i(f"""
        v_lshrrev_b32 v1, 4, v0
        v_lshlrev_b32 v2, 3, v1
        v_and_b32 v3, 15, v0
        """)
        so = (S_MA, S_MA + 1, S_MB)
        for k in range(3):
            e.i(f"""
            s_add_u32 {sr(T1)}, {sr(S_WV)}, {8 * k}
            s_mul_i32 {sr(T2)}, {sr(T1)}, 52
            s_lshr_b32 {sr(T2)}, {sr(T2)}, 8
            s_mul_i32 {sr(T3)}, {sr(T2)}, 5
            s_sub_u32 {sr(T1)}, {sr(T1)}, {sr(T3)}
            s_lshl_b32 {sr(T1)}, {sr(T1)}, 5
            s_mul_i32 {sr(T3)}, {sr(S_CT)}, 160
            s_add_u32 {sr(T1)}, {sr(T1)}, {sr(T3)}
            s_lshl_b32 {sr(T3)}, {sr(S_RT)}, 2
            s_add_u32 {sr(T2)}, {sr(T2)}, {sr(T3)}
            s_mul_i32 {sr(T3)}, {sr(T2)}, {16 * 1280}
            s_add_u32 {sr(so[k])}, {sr(T3)}, {sr(T1)}
            s_lshl_b32 {sr(T2)}, {sr(T2)}, 8
            s_add_u32 {sr(T2)}, {sr(T2)}, {OFF_G}
            """)
            e.vmem(f"buffer_load_dwordx2 {vr(106 + 2 * k, 2)}, v2, {sr(R_B2, 4)}, {sr(T1)} offen", "b2")
            e.vmem(f"buffer_load_dword {vr(112 + k)}, {vr(A_T + 1)}, {sr(R_WS, 4)}, {sr(T2)} offen sc1", "b2")
        for r in range(4):
            e.i(f"v_sub_f32 {vr(A_GF + r)}, 1.0, {vr(A_GF + r)}")
        e.i("s_barrier")
        for r in range(4):
            for k in range(20):
                e.i(f"v_mul_f32 {vr(A_FACC + 20 * r + k)}, {vr(A_FACC + 20 * r + k)}, {vr(A_GF + r)}")
        ob, ob2, orem = S_HB, S_HB2, S_WB
        hs = 64 * 1280
        e.i(f"""
        v_lshrrev_b32 v4, 1, v1
        v_mul_u32_u24 v4, {hs}, v4
        v_and_b32 v5, 1, v1
        v_lshl_add_u32 v4, v5, 9, v4
        v_lshl_add_u32 v4, v3, 4, v4
        v_mul_u32_u24 v5, {2 * hs}, v1
        v_lshl_add_u32 v5, v3, 3, v5
        s_mul_i32 {sr(T1)}, {sr(S_RQ)}, {8 * hs}
        s_add_u32 {sr(T1)}, {sr(T1)}, {OFF_Q}
        s_mul_i32 {sr(T2)}, {sr(S_BLK)}, 1280
        s_add_u32 {sr(orem)}, {sr(T1)}, {sr(T2)}
        s_mul_i32 {sr(T3)}, {sr(S_CH)}, {4 * hs}
        s_add_u32 {sr(ob)}, {sr(orem)}, {sr(T3)}
        s_xor_b32 {sr(T2)}, {sr(S_BLK)}, 1
        s_mulk_i32 {sr(T2)}, 1280
        s_add_u32 {sr(T1)}, {sr(T1)}, {sr(T3)}
        s_add_u32 {sr(ob2)}, {sr(T1)}, {sr(T2)}
        s_mul_i32 {sr(T1)}, {sr(S_WV)}, 20480
        s_mul_i32 {sr(T2)}, {sr(S_CH)}, 10240
        s_add_u32 {sr(T3)}, {sr(T1)}, {sr(T2)}
        v_add_u32 v6, {sr(T3)}, {vr(A_L16)}
        s_sub_u32 {sr(T3)}, {sr(T1)}, {sr(T2)}
        v_add_u32 v7, {sr(T3)}, {vr(A_L16)}
        v_add_u32 v124, {2 * hs}, v4
        v_add_u32 v125, {hs}, v5
        s_mov_b32 {sr(S_SPIN)}, {SPIN}
        """)
        oreg = {7: 152, 8: 168, 9: 116}

        def oloads(i):
            if i < 9:
                return [f"buffer_load_dwordx4 {vr(oreg[i] + 4 * r, 4)}, {vr((4, 124)[i - 7])}, {sr(R_WS, 4)}, "
                        f"{sr((ob, ob2)[r >> 1])} offen offset:{256 * (r & 1)} sc1" for r in range(4)]
            return [f"buffer_load_dwordx2 {vr(oreg[i] + 4 * r + 2 * a, 2)}, {vr((5, 125)[a])}, {sr(R_WS, 4)}, {sr(orem)} offen "
                    f"offset:{1024 + 128 * r} sc1" for r in range(2) for a in range(2)]

        def ocheck(i):
            n = 16 if i < 9 else 8
            L = [f"v_and_b32 v1, 1, {vr(oreg[i])}"]
            L += [f"v_and_b32 v1, v1, {vr(oreg[i] + k)}" for k in range(2, n, 2)]
            L.append("v_cmp_eq_u32 vcc, 0, v1")
            return "\n".join(L)
        e.wait(vm="os")
        self.stamp("odrain")
        for i in (7, 9, 8):
            for x in oloads(i):
                e.vmem(x, f"o{i}")
        pend = []
        for i in (7, 9, 8):
            e.wait(vm=f"o{i}")
            e.i(ocheck(i) + f"\ns_cbranch_vccnz L_ort{i}")
            e.label(f"L_ook{i}")
            if i == 7:
                self.stamp("oload")
            self.cold.append(f"L_ort{i}:\n" + "\n".join(oloads(i)) + "\ns_waitcnt vmcnt(0)\n" + ocheck(i) + f"""
            s_sub_u32 {sr(S_SPIN)}, {sr(S_SPIN)}, 1
            s_cmp_lt_i32 {sr(S_SPIN)}, 1
            s_cbranch_scc1 L_ook{i}
            s_cbranch_vccnz L_ort{i}
            s_branch L_ook{i}
            """)
            for r in range(2 if i == 9 else 4):
                for n in range(5):
                    d = vr(self.facc(r, n), 4)
                    e.i(f"v_mfma_f32_16x16x32_bf16 {d}, {vr(self.ring_w(i, n), 4)}, {vr(oreg[i] + 4 * r, 4)}, {d}")
                    if i == 8:
                        pend.append(f"ds_write_b128 {vr(6 + (r >> 1))}, {d} offset:{(r * 5 + n) * 1024}")
                        if len(pend) > 8:
                            e.lds(pend.pop(0), "dw")
        e.i("s_nop 0")
        for x in pend:
            e.lds(x, "dw")
        e.i(f"""
        s_lshl_b32 {sr(T1)}, {sr(S_WV)}, 10
        v_add_u32 v9, {sr(T1)}, {vr(A_L16)}
        v_add_u32 v10, 81920, v9
        v_mul_u32_u24 v11, 1280, v3
        v_add_u32 v11, v11, v2
        """)
        for k in range(3):
            e.i(f"v_sub_f32 {vr(112 + k)}, 1.0, {vr(112 + k)}")
        e.wait(lg="all")
        e.i("s_barrier")
        self.stamp("dumped")
        for k in range(3):
            if k == 2:
                e.i(f"s_cmp_ge_u32 {sr(S_WV)}, 4\ns_cbranch_scc1 L_fin")
            if k:
                e.i("v_add_u32 v9, 8192, v9\nv_add_u32 v10, 8192, v10")
            b = 16 + 32 * (k & 1)
            for w in range(8):
                e.lds(f"ds_read_b128 {vr(b + 4 * w, 4)}, {vr(9 + (w >> 2))} offset:{(w & 3) * 20480}", f"rr{w}")
            for j in range(4):
                src = 106 + 2 * k + (j >> 1)
                e.i(f"v_and_b32 {vr(12 + j)}, 0xffff0000, {vr(src)}" if j & 1 else f"v_lshlrev_b32 {vr(12 + j)}, 16, {vr(src)}")
            for w in range(8):
                e.wait(lg=f"rr{w}")
                for j in range(4):
                    if w == 0:
                        e.i(f"v_fma_f32 {vr(12 + j)}, {vr(12 + j)}, {vr(112 + k)}, {vr(b + j)}")
                    else:
                        e.i(f"v_add_f32 {vr(12 + j)}, {vr(12 + j)}, {vr(b + 4 * w + j)}")
            if c.perturb:
                for j in range(4):
                    e.i(f"v_add_f32 {vr(12 + j)}, {f32(c.perturb / 1000.0)}, {vr(12 + j)}")
            e.i(f"""
            v_cvt_pk_bf16_f32 {vr(b)}, v12, v13
            v_cvt_pk_bf16_f32 {vr(b + 1)}, v14, v15
            buffer_store_dwordx2 {vr(b, 2)}, v11, {sr(R_OUT, 4)}, {sr(so[k])} offen
            """)
        e.label("L_fin")
        if c.dev:
            self.dev_dump()

    def dev_dump(self):
        e = self.e
        e.i(f"""
        s_waitcnt vmcnt(0)
        {"s_memrealtime" if self.c.rt else "s_memtime"} s[36:37]
        s_memrealtime s[12:13]
        s_lshl_b32 {sr(T0)}, s2, 3
        s_add_u32 {sr(T0)}, {sr(T0)}, {sr(S_WV)}
        s_lshl_b32 {sr(T0)}, {sr(T0)}, 7
        s_add_u32 {sr(T0)}, {sr(T0)}, {OFF_DEV}
        s_waitcnt lgkmcnt(0)
        s_mov_b64 exec, 1
        """)
        for k in range(12):
            e.i(f"v_mov_b32 v1, {sr(16 + 2 * k)}\nbuffer_store_dword v1, off, {sr(R_WS, 4)}, {sr(T0)} offset:{4 * k}")
        e.i(f"v_mov_b32 v1, s12\nbuffer_store_dword v1, off, {sr(R_WS, 4)}, {sr(T0)} offset:48")
        e.i(f"v_mov_b32 v1, {sr(S_SPIN)}\nbuffer_store_dword v1, off, {sr(R_WS, 4)}, {sr(T0)} offset:52")
        if self.c.enc >= 0:
            k = self.c.enc
            e.i(f"s_cmp_lg_u32 {sr(T0)}, {OFF_DEV + 296 * 128}\ns_cbranch_scc1 L_end")
            e.i("s_add_u32 s14, s38, 6000" if k == 11 else f"s_add_u32 s14, {sr(16 + 2 * k)}, 6000")
            e.i(f"""
            s_mov_b32 s15, 100000
            L_enc:
            s_memrealtime s[12:13]
            s_waitcnt lgkmcnt(0)
            s_sub_u32 s15, s15, 1
            s_cmp_eq_u32 s15, 0
            s_cbranch_scc1 L_end
            s_sub_u32 s13, s12, s14
            s_cmp_lt_i32 s13, 0
            s_cbranch_scc1 L_enc
            """)
        if self.c.dbgwg >= 0:
            e.i(f"s_cmp_lg_u32 {sr(T0)}, {OFF_DEV + self.c.dbgwg * 128}\ns_cbranch_scc1 L_end")
            for k in range(1, 11):
                e.i(f"s_sub_u32 s13, {sr(16 + 2 * k)}, s16\nv_mov_b32 v1, s13\nbuffer_store_dword v1, off, {sr(R_DBG, 4)}, 0 offset:{4 * k}")
            e.i(f"s_sub_u32 s13, s12, s38\nv_mov_b32 v1, s13\nbuffer_store_dword v1, off, {sr(R_DBG, 4)}, 0 offset:44")

    def build(self):
        e = self.e
        self.prologue()
        e.i(f"s_cmp_eq_u32 {sr(S_SEC)}, 3\ns_cbranch_scc1 L_p1z\ns_cmp_eq_u32 {sr(S_SEC)}, 2\ns_cbranch_scc1 L_p1v")
        snap = e.snapshot()
        self.pass1(False)
        after = e.snapshot()
        e.i("s_branch L_p2")
        e.label("L_p1v")
        e.restore(snap)
        self.pass1(True)
        assert e.snapshot() == after
        main, e.lines = e.lines, []
        e.label("L_p1z")
        e.restore(snap)
        self.pass1_fill()
        assert e.snapshot() == after, (e.snapshot(), after)
        e.i("s_branch L_p2")
        self.cold.append("\n".join(e.lines))
        e.lines = main
        e.label("L_p2")
        e.i(f"s_cmp_lg_u32 {sr(S_CH)}, 0\ns_cbranch_scc1 L_p2b")
        self.pass2(0)
        after2 = e.snapshot()
        e.i("s_branch L_att")
        e.label("L_p2b")
        e.restore(after)
        self.pass2(1)
        assert e.snapshot() == after2
        e.label("L_att")
        if self.c.stop:
            e.i("s_branch L_fin")
        self.attention()
        self.tail()
        e.label("L_end")
        e.i("s_endpgm")
        for blk in self.cold:
            e.i(blk)
        return e


HEADER = """; Fused gate + multi-head attention block + squared-ReLU FFN, one persistent launch (generated by gen/gen.py).
; @launch grid=(256,1,1) block=(512,1,1) lds=163840
.amdgcn_target "amdgcn-amd-amdhsa--gfx950"
.text
.globl {n}_kernel
.p2align 8
.type {n}_kernel,@function
{n}_kernel:
"""
FOOTER = """
.section .rodata,"a"
.p2align 6
.amdhsa_kernel {n}_kernel
  .amdhsa_next_free_vgpr 256
  .amdhsa_next_free_sgpr 102
  .amdhsa_accum_offset 256
  .amdhsa_group_segment_fixed_size 0
  .amdhsa_kernarg_size 96
  .amdhsa_user_sgpr_count 2
  .amdhsa_user_sgpr_kernarg_segment_ptr 1
  .amdhsa_system_sgpr_workgroup_id_x 1
  .amdhsa_float_denorm_mode_32 3
.end_amdhsa_kernel
"""


def generate(**kw):
    cfg = Cfg()
    for k, v in kw.items():
        assert hasattr(cfg, k), k
        setattr(cfg, k, v)
    e = Gen(cfg).build()
    errs = check_hazards(e.lines)
    if errs:
        for x in errs[:40]:
            print("HAZARD", x, file=sys.stderr)
        raise SystemExit(f"{len(errs)} hazards")
    return HEADER.format(n=NAME) + e.text() + "\n" + FOOTER.format(n=NAME)


if __name__ == "__main__":
    out = sys.argv[1]
    kw = {}
    for a in sys.argv[2:]:
        k, v = a.split("=")
        kw[k] = int(v)
    open(out, "w").write(generate(**kw))
```

```python
import math
import struct
import sys

from asmlib import Emit, check_hazards, sr, vr

NAME = "gated_mix__mha_block__dense_activation_squared_relu__prompt"

OFF_FLG = 0
OFF_G = 32768
OFF_Q = 65536
OFF_KV = OFF_Q + 32 * 64 * 1280
OFF_H = OFF_KV + 32 * 64 * 2560
OFF_WT = OFF_H + 64 * 112 * 1024
OFF_DEV = OFF_WT + 152 * 20 * 1024
WS_SIZE = OFF_DEV + 2048 * 128
OOB = 0x40000000
SPIN = 400000


def f32(x):
    return "0x%08x" % struct.unpack("<I", struct.pack("<f", x))[0]


S_WV, S_XCD, S_J, S_RB, S_CG, S_RQ, S_CH, S_M0 = 3, 4, 5, 6, 7, 8, 9, 10
T0, T1, T2, T3, T4 = 11, 12, 13, 14, 15
P_X, P_WQ, P_WO, P_W1, P_B1, P_W2, P_B2, P_GW, P_OUT, P_DBG, P_WS = 16, 18, 20, 24, 26, 28, 30, 32, 34, 36, 38
R_X, R_WQ, R_W1, R_WS, R_JOB, R_B1, R_B2, R_GW, R_OUT, R_DBG = 40, 44, 48, 52, 56, 60, 64, 68, 72, 76
S_HD, S_RTQ, S_RT, S_CT, S_BLK, S_SCALE = 80, 81, 82, 83, 84, 85
S_VMASK = 86
S_EPI, S_JST, S_OBLK, S_HB, S_WB, S_SEC, S_GAM, S_HST = 88, 89, 90, 91, 92, 93, 94, 95
S_HB2, S_WOB = S_SEC, S_GAM
S_MA, S_MB = 96, 98
S_SPIN = 100
S_KVB = 101
S_KVL = 1

V_LANE = 0
V_X0, V_X1, V_W, V_W1 = 1, 2, 3, 4
V_XR = 5
V_WR = 7
V_ST = 11
V_L15, V_G4 = 15, 16
V_WR2 = 17
V_T = 21
V_BIAS = 24
V_ACC = 32
V_WB = (64, 80)
V_XF = 96

A_AK, A_AKR, A_AV, A_IDX, A_GA = 104, 105, 132, 133, 134
A_L16, A_QA = 96, 97
A_T = 98
A_QLO, A_QHI, A_KR, A_QM, A_KM, A_VLO = 106, 108, 110, 112, 116, 120
A_VHI = (124, 128)
A_P = 100
A_O = 136
A_S = (152, 168)
A_RING = 184
A_FACC = 16
A_GF = 8


STAMPSETS = {
    0: [],
    1: ["karg", "b0", "p1end", "p2end", "att0", "chk2", "attend", "odrain", "oload", "dumped"],
    2: ["b0", "b1", "b6", "b2", "b8", "p1end", "b11", "b12", "b13", "b14"],
    3: ["p1end", "e1end", "b11", "fl1", "b13", "b14", "u18", "chk1", "p2end", "att0"],
    5: ["karg", "iss0", "x", "b0", "x", "x", "x", "x", "x", "p1end"],
    8: ["karg", "b0", "p1end", "b11", "p2end", "att0", "fl2a", "chk2", "attend", "dumped"],
    6: ["att0", "t2", "t4", "t6", "t8", "t10", "fl2a", "fl2b", "chk2a", "chk2"],
    7: ["chk2", "t24", "t28", "t32", "t40", "t48", "t56", "attend", "odrain", "oload"],
    4: ["karg", "att0", "fl2a", "fl2b", "chk2a", "chk2", "t16", "t32", "t48", "attend"],
}


class Cfg:
    dev = 0
    dbgwg = -1
    rt = 0
    enc = -1
    depth = 3
    ffn_start = 22
    ffn_emb = 140
    t_flag2 = 9
    t_kv = 3
    t_poll2 = 15
    t_chk2 = 18
    pre2 = 12
    u_late = 8
    nlate = 2
    u_flag1 = 8
    u_poll1 = 14
    u_chk1 = 17
    nst0 = 2
    stgap = 3
    qpos = 12
    rdfront = 8
    touch = 1
    perturb = 0
    p1x = 0
    gprio = 1
    stop = 0
    force_fallback = False


def acc(n, rt):
    return V_ACC + (n * 2 + rt) * 4


def xf(ks, rt):
    return V_XF + (ks * 2 + rt) * 4


def srd(r, p, size):
    return (f"s_mov_b64 {sr(r, 2)}, {sr(p, 2)}\ns_mov_b32 {sr(r + 2)}, {size}\ns_mov_b32 {sr(r + 3)}, 0x20000\n")


class Gen:
    def __init__(self, cfg):
        self.c = cfg
        self.e = Emit()
        self.cold = []
        self.nlab = 0
        self.q = []
        self.issued = set()

    def stamp(self, name):
        names = STAMPSETS[self.c.dev]
        if name in names:
            op = "s_memrealtime" if self.c.rt else "s_memtime"
            self.e.i(f"{op} {sr(16 + 2 * names.index(name), 2)}")

    def lab(self, base):
        self.nlab += 1
        return f"L_{base}_{self.nlab}"

    def dma_stage(self, s):
        slot = (s % 5) * 32768
        out = []
        for i in range(4):
            m0 = slot + (i & 1) * 1024 + (i >> 1) * 16384
            if self.c.p1x & 2 and s >= self.c.depth:
                out.append((f"s_mov_b32 {sr(S_SPIN)}, {OOB}\nbuffer_load_dword v249, off, {sr(R_X, 4)}, {sr(S_SPIN)}", f"st{s}"))
                continue
            if s < 10:
                if i < 2:
                    va, r, so = (V_X0, V_X1)[i], R_X, s * 128
                else:
                    va, r, so = V_W, R_WQ, (s * 64 + (i & 1) * 4) * 3840
            else:
                va, r, so = V_W1, R_W1, ((s - 10) * 128 + (i & 1) * 4 + (i >> 1) * 64) * 3456
            out.append((f"s_add_u32 m0, {sr(S_M0)}, {m0}\ns_mov_b32 {sr(S_SPIN)}, {so}\n"
                        f"buffer_load_dwordx4 {vr(va)}, {sr(r, 4)}, {sr(S_SPIN)} offen lds", f"st{s}"))
        return out

    def prologue(self):
        e = self.e
        top = "s_memrealtime" if self.c.rt else "s_memtime"
        e.i(f"""
        s_load_dwordx16 s[16:31], s[0:1], 0
        s_load_dwordx8 s[32:39], s[0:1], 64
        {"s_memrealtime vcc" if self.c.dev else ""}
        s_cmp_ge_u32 s2, 256
        s_cbranch_scc1 L_end
        v_lshrrev_b32 v21, 6, v0
        v_and_b32 v0, 63, v0
        v_readfirstlane_b32 {sr(S_WV)}, v21
        s_and_b32 {sr(S_XCD)}, s2, 7
        s_lshr_b32 {sr(S_J)}, s2, 3
        s_lshr_b32 {sr(T0)}, {sr(S_XCD)}, 1
        s_cmp_ge_u32 {sr(S_J)}, 30
        s_cselect_b32 {sr(T1)}, 2, 30
        s_cselect_b32 {sr(T2)}, 90, 0
        s_cselect_b32 {sr(T3)}, {OOB}, 0
        s_mul_i32 {sr(T0)}, {sr(T0)}, {sr(T1)}
        s_add_u32 {sr(T0)}, {sr(T0)}, {sr(S_J)}
        s_add_u32 {sr(T0)}, {sr(T0)}, {sr(T2)}
        s_lshr_b32 {sr(S_CG)}, {sr(T0)}, 3
        s_and_b32 {sr(T0)}, {sr(T0)}, 7
        s_and_b32 {sr(T1)}, {sr(S_XCD)}, 1
        s_lshl3_add_u32 {sr(S_RB)}, {sr(T1)}, {sr(T0)}
        s_lshl_b32 {sr(S_M0)}, {sr(S_WV)}, 11
        v_and_b32 {vr(V_L15)}, 15, v0
        v_lshrrev_b32 {vr(V_G4)}, 4, v0
        v_lshrrev_b32 v21, 3, v0
        v_and_b32 v22, 7, v0
        v_xor_b32 v22, v22, {vr(V_G4)}
        s_lshl3_add_u32 {sr(T0)}, {sr(S_RB)}, {sr(S_WV)}
        s_mulk_i32 {sr(T0)}, 20480
        s_add_u32 {sr(T0)}, {sr(T0)}, {sr(T3)}
        v_mul_u32_u24 v21, 1280, v21
        v_lshl_add_u32 v21, v22, 4, v21
        v_add_u32 {vr(V_X0)}, {sr(T0)}, v21
        v_xor_b32 {vr(V_X1)}, 64, {vr(V_X0)}
        v_add_u32 {vr(V_X1)}, 10240, {vr(V_X1)}
        s_and_b32 {sr(T0)}, {sr(S_WV)}, 1
        s_lshl_b32 {sr(T0)}, {sr(T0)}, 3
        v_lshl_or_b32 v29, {vr(V_G4)}, 1, {sr(T0)}
        v_xor_b32 v29, v29, {vr(V_L15)}
        s_mul_i32 {sr(T0)}, {sr(S_WV)}, {8 * 3840}
        s_lshl_b32 {sr(T1)}, {sr(S_CG)}, 8
        s_add_u32 {sr(T0)}, {sr(T0)}, {sr(T1)}
        s_add_u32 {sr(T0)}, {sr(T0)}, {sr(T3)}
        v_mul_u32_u24 v22, 3840, {vr(V_G4)}
        v_lshl_add_u32 v22, v29, 4, v22
        v_add_u32 {vr(V_W)}, {sr(T0)}, v22
        s_mov_b32 {sr(R_X + 2)}, {2048 * 1280}
        s_mov_b32 {sr(R_X + 3)}, 0x20000
        s_mov_b32 {sr(R_WQ + 2)}, {640 * 3840}
        s_mov_b32 {sr(R_WQ + 3)}, 0x20000
        s_waitcnt lgkmcnt(0)
        s_mov_b64 {sr(R_X, 2)}, {sr(P_X, 2)}
        s_mov_b64 {sr(R_WQ, 2)}, {sr(P_WQ, 2)}
        """)
        if self.c.dev:
            e.i("s_mov_b32 s0, vcc_lo")
        self.stamp("karg")
        for s in range(self.c.depth):
            for txt, tag in self.dma_stage(s):
                e.vmem(txt, tag)
            if s == 0:
                e.i("s_barrier")
                self.stamp("iss0")
                self.touch()
                e.i(f"""
                s_and_b32 {sr(S_RQ)}, {sr(S_WV)}, 3
                s_lshr_b32 {sr(S_CH)}, {sr(S_WV)}, 2
                s_lshl_b32 {sr(T0)}, {sr(S_RQ)}, 12
                v_lshrrev_b32 v21, 1, {vr(V_L15)}
                v_xor_b32 v21, v21, {vr(V_G4)}
                v_lshl_add_u32 v21, v21, 4, {sr(T0)}
                v_lshl_add_u32 {vr(V_XR)}, {vr(V_L15)}, 7, v21
                v_xor_b32 {vr(V_XR + 1)}, 64, {vr(V_XR)}
                v_lshrrev_b32 v22, 2, {vr(V_L15)}
                v_lshl_add_u32 v21, {vr(V_G4)}, 3, v22
                v_lshlrev_b32 v21, 8, v21
                v_xor_b32 v23, {sr(S_CH)}, {vr(V_G4)}
                v_and_b32 v23, 1, v23
                v_lshl_add_u32 v22, v23, 2, v22
                v_lshlrev_b32 v22, 1, v22
                v_and_b32 v23, 3, {vr(V_L15)}
                v_lshrrev_b32 v25, 1, v23
                v_xor_b32 v24, v25, v22
                v_lshl_add_u32 v24, v24, 4, v21
                v_and_b32 v26, 1, v23
                v_lshl_add_u32 {vr(V_WR2)}, v26, 3, v24
                s_mul_i32 {sr(S_SEC)}, {sr(S_CG)}, 52
                s_lshr_b32 {sr(S_SEC)}, {sr(S_SEC)}, 8
                s_cmp_eq_u32 {sr(S_SEC)}, 3
                s_cbranch_scc1 L_p1z
                """)
                self.snap_z = e.snapshot()

    def deferred(self):
        e = self.e
        q = [self.ii(srd(R_WS, P_WS, WS_SIZE) + srd(R_DBG, P_DBG, 256)),
             self.clear_flags,
             self.ii(srd(R_W1, P_W1, 640 * 3456) + srd(R_B1, P_B1, 3456)),
             self.ii(srd(R_B2, P_B2, 1280) + srd(R_GW, P_GW, 1280) + srd(R_OUT, P_OUT, 2048 * 1280))]
        q += self.each("\n".join(f"v_xor_b32 {vr(V_WR2 + n)}, {n << 5}, {vr(V_WR2)}" for n in range(1, 4)))
        q += self.each(f"""
        v_mul_u32_u24 v22, 3456, {vr(V_G4)}
        v_lshl_add_u32 v22, v29, 4, v22
        s_lshl_b32 {sr(T0)}, {sr(S_CG)}, 8
        s_mul_i32 {sr(T1)}, {sr(S_WV)}, {8 * 3456}
        s_add_u32 {sr(T0)}, {sr(T0)}, {sr(T1)}
        v_add_u32 {vr(V_W1)}, {sr(T0)}, v22
        s_lshl_b32 {sr(T0)}, {sr(S_CG)}, 4
        s_sub_u32 {sr(T0)}, 215, {sr(T0)}
        v_sub_u32 v22, {sr(T0)}, v29
        v_and_b32 v22, {OOB}, v22
        v_or_b32 {vr(V_W1)}, {vr(V_W1)}, v22
        """)
        q += [self.ii(x) for x in f"""
        s_lshr_b32 {sr(T1)}, {sr(S_J)}, 3
        s_lshl2_add_u32 {sr(S_HD)}, {sr(S_XCD)}, {sr(T1)}
        s_and_b32 {sr(T1)}, {sr(S_J)}, 3
        s_lshl2_add_u32 {sr(S_RT)}, {sr(S_XCD)}, {sr(T1)}
        s_lshr_b32 {sr(S_CT)}, {sr(S_J)}, 2
        --
        s_and_b32 {sr(T1)}, {sr(S_J)}, 7
        s_lshl3_add_u32 {sr(S_RTQ)}, {sr(T1)}, {sr(S_WV)}
        s_lshl2_add_u32 {sr(S_BLK)}, {sr(S_RB)}, {sr(S_RQ)}
        s_mul_i32 {sr(T0)}, {sr(S_SEC)}, 5
        s_sub_u32 {sr(S_GAM)}, {sr(S_CG)}, {sr(T0)}
        --
        s_mov_b32 {sr(S_VMASK)}, 0x000fffff
        s_mov_b32 {sr(S_VMASK + 1)}, 0x000fffff
        s_lshl_b32 {sr(T0)}, {sr(S_HD)}, 6
        s_add_u32 {sr(T0)}, {sr(T0)}, {sr(S_RTQ)}
        s_mulk_i32 {sr(T0)}, 1280
        s_add_u32 {sr(S_OBLK)}, {sr(T0)}, {OFF_Q}
        --
        s_mul_i32 {sr(T0)}, {sr(S_BLK)}, 14
        s_add_u32 {sr(T0)}, {sr(T0)}, {sr(S_CG)}
        s_lshl1_add_u32 {sr(T0)}, {sr(T0)}, {sr(S_CH)}
        s_lshl_b32 {sr(T0)}, {sr(T0)}, 12
        s_add_u32 {sr(S_HST)}, {sr(T0)}, {OFF_H}
        --
        s_lshl4_add_u32 {sr(T0)}, {sr(S_HD)}, {sr(S_WV)}
        s_mulk_i32 {sr(T0)}, 10240
        s_add_u32 {sr(S_KVB)}, {sr(T0)}, {OFF_KV}
        s_mul_i32 {sr(S_KVL)}, {sr(S_WV)}, 5120
        """.split("--")]
        if self.c.dev:
            q.append(self.ii("s_mov_b32 s38, s0"))
            q.append(lambda: self.stamp("pro"))
        return q

    def touch(self):
        e, c = self.e, self.c
        if not c.touch:
            return
        e.i(f"""
        s_lshl3_add_u32 {sr(T0)}, {sr(S_J)}, {sr(S_WV)}
        s_and_b32 {sr(T1)}, {sr(S_XCD)}, 1
        s_lshr_b32 {sr(T2)}, {sr(S_XCD)}, 1
        s_lshl2_add_u32 {sr(T3)}, {sr(T1)}, {sr(T2)}
        s_lshl_b32 {sr(T3)}, {sr(T3)}, 8
        s_add_u32 {sr(T3)}, {sr(T3)}, {sr(T0)}
        s_mulk_i32 {sr(T3)}, 1280
        v_lshlrev_b32 v250, 7, v0
        s_mulk_i32 {sr(T0)}, 10
        v_add_u32 v251, {sr(T0)}, v0
        v_lshrrev_b32 v252, 3, v251
        v_lshl_add_u32 v252, v252, 1, {sr(T1)}
        v_and_b32 v251, 7, v251
        v_lshlrev_b32 v251, 7, v251
        s_mov_b32 {sr(T0)}, 3840
        v_mad_u32_u24 v253, v252, {sr(T0)}, v251
        s_lshl_b32 {sr(T1)}, {sr(T2)}, 10
        s_mov_b64 exec, 0x3ff
        """)
        e.vmem(f"buffer_load_dword v250, v250, {sr(R_X, 4)}, {sr(T3)} offen", "touch")
        e.vmem(f"buffer_load_dword v253, v253, {sr(R_WQ, 4)}, {sr(T1)} offen", "touch")
        e.i("s_mov_b64 exec, -1")

    def clear_flags(self):
        go, back = self.lab("init"), self.lab("initr")
        self.e.i(f"""
        s_lshl3_add_u32 {sr(T0)}, s2, {sr(S_WV)}
        s_cmp_eq_u32 {sr(T0)}, 7
        s_cbranch_scc1 {go}
        """)
        self.e.label(back)
        self.cold.append(f"""
        {go}:
        v_lshlrev_b32 v27, 7, v0
        v_mov_b32 v28, 0
        s_mov_b32 {sr(T0)}, 8192
        s_mov_b32 {sr(T1)}, 16384
        s_mov_b32 {sr(T2)}, 24576
        buffer_store_dword v28, v27, {sr(R_WS, 4)}, 0 offen sc1
        buffer_store_dword v28, v27, {sr(R_WS, 4)}, {sr(T0)} offen sc1
        buffer_store_dword v28, v27, {sr(R_WS, 4)}, {sr(T1)} offen sc1
        buffer_store_dword v28, v27, {sr(R_WS, 4)}, {sr(T2)} offen sc1
        s_branch {back}
        """)

    def reads(self, s, ksl, ntiles, buf):
        off = (s % 5) * 32768 - ((s % 5) >> 1) * 65536
        xs, ws = [], []
        if s < 10:
            ks = 2 * s + ksl
            for rt in range(2):
                xs.append((f"ds_read_b128 {vr(xf(ks, rt), 4)}, {vr(V_XR + ksl)} offset:{off + rt * 2048}", f"x{buf}{rt}"))
            wbase, wr = off + 16384, V_WR
        else:
            wbase, wr = off, V_WR2
        for n in range(ntiles):
            for q in range(2):
                ws.append((f"ds_read_b64_tr_b16 {vr(V_WB[buf] + 4 * n + 2 * q, 2)}, {vr(wr + n)} "
                           f"offset:{wbase + ksl * 8192 + q * 1024}", f"w{buf}{n}"))
        if self.c.p1x & 4:
            ws = []
        if self.c.p1x & 8:
            xs = []
        return xs[:1] + ws[:2] + xs[1:] + ws[2:]

    def window(self, s):
        slot = s % 5
        if s in (0, 10) or slot in (1, 3):
            return []
        d = 65536 if slot in (2, 4) else -131072
        rs = [V_XR, V_XR + 1] + [V_WR + n for n in range(4)] if s < 10 else [V_WR2 + n for n in range(4)]
        return [f"v_add_u32 {vr(r)}, {d & 0xffffffff:#x}, {vr(r)}" for r in rs]

    def mfmas(self, ks, ntiles, buf, vtype, first):
        out = []
        for n in range(ntiles):
            for rt in range(2):
                w, x, d = vr(V_WB[buf] + 4 * n, 4), vr(xf(ks, rt), 4), vr(acc(n, rt), 4)
                a, b = (x, w) if vtype else (w, x)
                out.append((f"v_mfma_f32_16x16x32_bf16 {d}, {a}, {b}, {'0' if first else d}", [f"x{buf}{rt}", f"w{buf}{n}"]))
        return out

    def unit(self, mf, rd, rate=1, drain=False, prio=()):
        e = self.e
        rd = list(rd)
        nr, done = len(rd), 0
        for k, (m, tags) in enumerate(mf):
            if self.c.gprio and prio and k % (len(mf) // len(prio)) == 0:
                e.i(f"s_setprio {prio[k // (len(mf) // len(prio))]}")
            e.wait(lg=tags)
            e.i("s_nop 0" if self.c.p1x & 1 else m)
            want = min(nr, -(-nr * (k + 1) * self.c.rdfront // (len(mf) * 8)))
            while done < want:
                e.lds(*rd[done])
                done += 1
            for _ in range(rate):
                if self.q:
                    self.q.pop(0)()
        for r in rd[done:]:
            e.lds(*r)
        while drain and self.q:
            self.q.pop(0)()

    def vm(self, txt, tag):
        def f():
            self.e.vmem(txt, tag)
            self.issued.add(tag)
        return f

    def ii(self, txt):
        return lambda: self.e.i(txt)

    def each(self, txt):
        out, cur = [], []
        for ln in txt.strip().split("\n"):
            ln = ln.strip()
            if not ln:
                continue
            cur.append(ln)
            if not ln.startswith("s_"):
                out.append(self.ii("\n".join(cur)))
                cur = []
        if cur:
            out.append(self.ii("\n".join(cur)))
        return out

    def spaced(self, items, gap):
        out = []
        for x in items:
            out.append(x)
            out += [lambda: None] * gap
        return out

    def stage_sync(self, s, vmtags=()):
        e = self.e
        for w in self.window(s):
            e.i(w)
        e.wait(vm=[f"st{s}"] + list(vmtags), lg="all" if (self.c.depth > 3 or (s == 10 and self.c.pre2 > 13)) else None)
        e.i("s_barrier")
        self.stamp(f"b{s}")

    def pass1(self, vtype):
        e = self.e
        if vtype:
            e.i(f"v_mov_b32 {vr(V_WR)}, {vr(V_WR2)}")
        else:
            e.i(f"""
            v_xor_b32 v24, v23, v22
            v_lshl_add_u32 v24, v24, 4, v21
            v_lshl_add_u32 {vr(V_WR)}, v25, 3, v24
            """)
        for n in range(1, 4):
            e.i(f"v_xor_b32 {vr(V_WR + n)}, {n << 5 if vtype else ((n >> 1) << 6) | ((n & 1) << 3)}, {vr(V_WR)}")
        side = self.deferred() + self.epi1_addr(vtype)
        prev = []
        dp = self.c.depth
        for s in range(10):
            for ksl in range(2):
                if ksl == 0:
                    self.stage_sync(s)
                    if s == dp + 1:
                        self.publish_init()
                    if s == 9:
                        assert not side
                        self.q += self.bias_loads()
                    if s + dp <= self.c.pre2:
                        for t, g in self.dma_stage(s + dp):
                            self.q.append(self.vm(t, g))
                            for _ in range(3 if 0 < s < 9 else 1):
                                self.q.append(side.pop(0) if side else (lambda: None))
                self.unit(prev, self.reads(s, ksl, 4, ksl), drain=ksl == 1, prio=(3 - 2 * ksl, 2 - 2 * ksl))
                prev = self.mfmas(2 * s + ksl, 4, ksl, vtype, s == 0 and ksl == 0)
        self.stage_sync(10)
        for s in range(10 + dp, self.c.pre2 + 1):
            self.q += [self.vm(t, g) for t, g in self.dma_stage(s)]
        self.unit(prev, self.reads(10, 0, 4, 0), drain=True, prio=(3,))
        self.stamp("p1end")
        self.epi1(vtype)
        self.stamp("e1end")

    def publish1(self, tags):
        e = self.e
        e.wait(vm=tags, lg="all")
        e.i("s_barrier")
        self.flag_store(1, True)
        e.i("s_barrier")

    def handover(self):
        e = self.e
        p_issue, p_check = self.poll(A_P, A_P + 1, 1, 12, "p1")
        for x in self.lane_addr() + self.poll1_addr():
            x()
        e.i(f"s_mov_b32 {sr(S_HST)}, {OOB}")
        for x in [p_issue, p_check] + self.q_loads() + self.kv_dma(0):
            x()
        e.wait(vm="all")
        e.i("s_branch L_att")

    def helper(self):
        e = self.e
        zw, ldsb = S_EPI, S_HB
        e.i(f"""
        {srd(R_W1, P_W1, 640 * 3456)}
        s_lshl3_add_u32 {sr(zw)}, {sr(S_RB)}, {sr(S_WV)}
        v_lshlrev_b32 v40, 7, v0
        s_lshl_b32 {sr(T0)}, {sr(zw)}, 13
        """)
        for i in range(3):
            e.vmem(f"buffer_load_dword {vr(41 + i)}, v40, {sr(R_W1, 4)}, {sr(T0)} offen", "touch")
            e.i(f"s_add_u32 {sr(T0)}, {sr(T0)}, {1 << 20}")
        e.i(f"s_mov_b64 {sr(S_MA, 2)}, {sr(P_WO, 2)}\ns_mov_b64 {sr(S_MB, 2)}, {sr(P_W2, 2)}")
        for x in self.deferred():
            x()
        e.i(f"""
        s_mul_i32 {sr(ldsb)}, {sr(S_WV)}, 20480
        v_lshrrev_b32 v44, 5, v0
        v_bfe_u32 v45, v0, 3, 2
        v_and_b32 v46, 7, v0
        v_lshlrev_b32 v46, 4, v46
        v_lshlrev_b32 v47, 4, v0
        v_bfe_u32 v48, v0, 2, 2
        v_lshlrev_b32 v48, 7, v48
        v_lshl_add_u32 v48, {vr(V_G4)}, 10, v48
        v_and_b32 v49, 3, v0
        v_lshl_add_u32 v48, v49, 3, v48
        v_add_u32 v48, {sr(ldsb)}, v48
        s_mov_b32 {sr(R_JOB + 3)}, 0x20000
        """)
        kap, cp, base, a0, a1, a2, t = T0, T1, T2, T3, T4, S_WB, S_JST

        def load(i):
            e.i(f"""
            s_add_u32 {sr(cp)}, {sr(zw)}, {128 * i}
            s_mul_i32 {sr(kap)}, {sr(cp)}, 6554
            s_lshr_b32 {sr(kap)}, {sr(kap)}, 16
            s_mul_i32 {sr(t)}, {sr(kap)}, 10
            s_sub_u32 {sr(cp)}, {sr(cp)}, {sr(t)}
            s_add_u32 {sr(t)}, {sr(kap)}, 4
            s_mul_i32 {sr(a0)}, {sr(t)}, 13108
            s_lshr_b32 {sr(a0)}, {sr(a0)}, 16
            s_mul_i32 {sr(base)}, {sr(a0)}, 160
            s_mulk_i32 {sr(a0)}, 5
            s_sub_u32 {sr(t)}, {sr(t)}, {sr(a0)}
            s_mul_i32 {sr(a0)}, {sr(t)}, 40
            s_cmp_eq_u32 {sr(t)}, 4
            s_cselect_b32 {sr(t)}, 16, {sr(a0)}
            s_cselect_b32 {sr(a0)}, 40, 4
            s_cselect_b32 {sr(a1)}, 80, 20
            s_cselect_b32 {sr(a2)}, 20, 8
            s_add_u32 {sr(base)}, {sr(base)}, {sr(t)}
            s_sub_u32 {sr(base)}, {sr(base)}, {12 * 160}
            s_lshl_b32 {sr(t)}, {sr(kap)}, 5
            s_cmp_ge_u32 {sr(kap)}, 56
            s_cselect_b32 {sr(base)}, {sr(base)}, {sr(t)}
            s_cselect_b32 {sr(a0)}, {sr(a0)}, 4
            s_cselect_b32 {sr(a1)}, {sr(a1)}, 8
            s_cselect_b32 {sr(a2)}, {sr(a2)}, 16
            s_cselect_b64 {sr(R_JOB, 2)}, {sr(S_MA, 2)}, {sr(S_MB, 2)}
            s_mov_b32 {sr(R_JOB + 2)}, {1728 * 1280}
            s_cselect_b32 {sr(R_JOB + 2)}, {640 * 1280}, {sr(R_JOB + 2)}
            v_mad_u32_u24 v49, v44, {sr(a2)}, v45
            v_mul_u32_u24 v49, 1280, v49
            v_add_u32 v49, v49, v46
            s_mulk_i32 {sr(base)}, 10
            s_add_u32 {sr(base)}, {sr(base)}, {sr(cp)}
            s_lshl_b32 {sr(base)}, {sr(base)}, 7
            s_mulk_i32 {sr(a0)}, 1280
            s_mulk_i32 {sr(a1)}, 1280
            """)
            for g in range(4):
                if g == 2:
                    e.i(f"s_add_u32 {sr(base)}, {sr(base)}, {sr(a1)}")
                e.i(f"s_add_u32 m0, {sr(ldsb)}, {(i % 5) * 4096 + g * 1024}")
                e.i(f"s_add_u32 {sr(t)}, {sr(base)}, {sr(a0) if g & 1 else 0}")
                e.vmem(f"buffer_load_dwordx4 v49, {sr(R_JOB, 4)}, {sr(t)} offen lds", f"job{i}")
        e.wait(vm="st0")
        e.i("s_barrier")
        for i in range(5):
            load(i)
        for i in range(6):
            b = 64 + 16 * (i & 1)
            e.wait(vm=f"job{i}")
            for ph in range(4):
                for q in range(2):
                    e.lds(f"ds_read_b64_tr_b16 {vr(b + 4 * ph + 2 * q, 2)}, v48 offset:{(i % 5) * 4096 + q * 512 + ph * 32}", "jr")
            e.wait(lg="all")
            if i == 0:
                load(5)
            e.i(f"""
            s_add_u32 {sr(T0)}, {sr(zw)}, {128 * i}
            s_lshl_b32 {sr(T1)}, {sr(T0)}, 12
            s_add_u32 {sr(T1)}, {sr(T1)}, {OFF_WT}
            s_cmp_ge_u32 {sr(T0)}, 760
            s_cselect_b32 {sr(T1)}, {OOB}, {sr(T1)}
            """)
            for ph in range(4):
                e.vmem(f"buffer_store_dwordx4 {vr(b + 4 * ph, 4)}, v47, {sr(R_WS, 4)}, {sr(T1)} offen offset:{1024 * ph} sc1", "js")
        e.vmem(f"buffer_load_dword v2, off, {sr(R_DBG, 4)}, 0 sc1", "dbg")
        self.stamp("p1end")
        self.publish1("all")
        self.handover()

    def gate(self):
        e = self.e
        e.wait(lg="all")
        e.i(f"v_lshlrev_b32 v21, 4, {vr(V_G4)}")
        for half in range(2):
            for k in range(10):
                e.vmem(f"buffer_load_dwordx4 {vr(56 + 4 * k, 4)}, v21, {sr(R_GW, 4)}, 0 offen offset:{64 * (10 * half + k)}", "gw")
            if half == 0:
                self.publish1(["e1", "dbg"])
            e.wait(vm="gw")
            for k in range(10):
                for rt in range(2):
                    d = vr(32 + 4 * rt, 4)
                    e.i(f"v_mfma_f32_16x16x32_bf16 {d}, {vr(56 + 4 * k, 4)}, {vr(xf(10 * half + k, rt), 4)}, "
                        f"{'0' if half == 0 and k == 0 else d}")
        e.i(f"""
        s_nop 7
        s_mov_b32 exec_lo, 0xffff0000
        v_mov_b32 v32, v36
        s_mov_b32 exec_lo, -1
        v_mul_f32 v32, {f32(-math.log2(math.e))}, v32
        v_exp_f32 v32, v32
        v_lshlrev_b32 v21, 2, v0
        v_add_f32 v32, 1.0, v32
        v_rcp_f32 v32, v32
        s_lshl_b32 {sr(T0)}, {sr(S_BLK)}, 7
        s_add_u32 {sr(T0)}, {sr(T0)}, {OFF_G}
        s_cmp_eq_u32 {sr(S_CH)}, 0
        s_cselect_b32 {sr(T0)}, {sr(T0)}, {OOB}
        s_mov_b32 exec_hi, 0
        """)
        e.vmem(f"buffer_store_dword v32, v21, {sr(R_WS, 4)}, {sr(T0)} offen sc1", "gs")
        e.i("s_mov_b64 exec, -1")
        self.handover()

    def publish_init(self):
        go, back = self.lab("pub"), self.lab("pubr")
        self.e.i(f"""
        s_lshl3_add_u32 {sr(S_SPIN)}, s2, {sr(S_WV)}
        s_cmp_eq_u32 {sr(S_SPIN)}, 7
        s_cbranch_scc1 {go}
        """)
        self.e.label(back)
        self.cold.append(f"""
        {go}:
        v_mov_b32 v255, 1
        s_mov_b64 exec, 1
        buffer_store_dword v255, off, {sr(R_DBG, 4)}, 0 sc1
        s_mov_b64 exec, -1
        s_branch {back}
        """)

    def bias_loads(self):
        out = self.each(f"""
        s_lshl1_add_u32 {sr(T1)}, {sr(S_CG)}, {sr(S_CH)}
        s_lshl_b32 {sr(T1)}, {sr(T1)}, 7
        v_lshlrev_b32 v21, 3, {vr(V_G4)}
        """)
        regs = (22, 24, 26, 28)
        for n in range(4):
            out.append(self.vm(f"buffer_load_dwordx2 {vr(regs[n], 2)}, v21, {sr(R_B1, 4)}, {sr(T1)} offen offset:{32 * n}",
                               "bias"))
        out.append(self.vm(f"buffer_load_dword v2, off, {sr(R_DBG, 4)}, 0 sc1", "dbg"))
        return out

    def epi1_addr(self, vtype):
        if vtype:
            txt = f"""
            s_lshl1_add_u32 {sr(T1)}, {sr(S_GAM)}, {sr(S_CH)}
            s_lshl_b32 {sr(T1)}, {sr(T1)}, 6
            s_mov_b32 {sr(T2)}, {64 * 2560 - 320}
            v_mul_u32_u24 v26, 320, {vr(V_G4)}
            s_mul_i32 {sr(T3)}, {sr(S_BLK)}, 2560
            s_add_u32 {sr(S_EPI)}, {sr(T3)}, {OFF_KV + 1280}
            """
            for n in range(4):
                txt += f"""
                v_add3_u32 v24, {vr(V_L15)}, {sr(T1)}, {16 * n}
                v_mul_u32_u24 v25, 3277, v24
                v_lshrrev_b32 v25, 16, v25
                v_lshl_add_u32 v24, v24, 4, v26
                v_mad_u32_u24 {vr(V_ST + n)}, v25, {sr(T2)}, v24
                """
            return self.each(txt)
        q = [self.ii(x) for x in f"""
        s_lshl1_add_u32 {sr(T1)}, {sr(S_GAM)}, {sr(S_CH)}
        s_lshl_b32 {sr(T1)}, {sr(T1)}, 3
        s_lshl_b32 {sr(T3)}, 1280, {sr(S_SEC)}
        s_lshl_b32 {sr(T2)}, {sr(T3)}, 6
        s_mul_i32 {sr(T3)}, {sr(T3)}, {sr(S_BLK)}
        --
        s_cmp_eq_u32 {sr(S_SEC)}, 0
        s_mov_b32 {sr(T4)}, {OFF_KV}
        s_cselect_b32 {sr(T4)}, {OFF_Q}, {sr(T4)}
        s_cselect_b32 {sr(S_SCALE)}, {f32(math.log2(math.e) / math.sqrt(20.0))}, 1.0
        s_cselect_b32 {sr(S_WB)}, 0xfffe0000, -1
        s_cselect_b32 {sr(S_HB)}, 0x10000, 0
        s_add_u32 {sr(S_EPI)}, {sr(T3)}, {sr(T4)}
        """.split("--")]
        q += self.each(f"v_lshrrev_b32 v27, 1, {vr(V_G4)}")
        for p in range(2):
            mask, a, b = (S_MA, S_MB)[p], V_ST + 2 * p, V_ST + 2 * p + 1
            q += self.each(f"""
            v_add3_u32 v24, {vr(V_G4)}, {sr(T1)}, {4 * p}
            v_mul_u32_u24 v25, 410, v24
            v_lshrrev_b32 v25, 10, v25
            v_mad_u32_u24 v26, v25, 5, 1
            v_lshrrev_b32 v26, 1, v26
            v_sub_u32 v26, v24, v26
            v_cmp_eq_u32 {sr(mask, 2)}, 2, v26
            v_lshlrev_b32 v26, 9, v26
            v_lshl_add_u32 v26, {vr(V_L15)}, 4, v26
            v_mad_u32_u24 {vr(a)}, v25, {sr(T2)}, v26
            v_add_u32 {vr(b)}, 256, {vr(a)}
            v_xor_b32 v28, 1, v27
            """)
            q.append(self.ii(f"""
            s_mov_b64 exec, {sr(mask, 2)}
            v_mad_u32_u24 {vr(b)}, v28, {sr(T2)}, {vr(a)}
            v_mad_u32_u24 {vr(a)}, v27, {sr(T2)}, {vr(a)}
            s_mov_b64 exec, -1
            """))
        return q

    def acc_init(self):
        e = self.e
        for n in range(4):
            r = 22 + 2 * n
            for h in range(2):
                e.i(f"v_lshlrev_b32 {vr(acc(n, 0) + 2 * h)}, 16, {vr(r + h)}")
                e.i(f"v_and_b32 {vr(acc(n, 0) + 2 * h + 1)}, 0xffff0000, {vr(r + h)}")
            for k in range(4):
                e.i(f"v_mov_b32 {vr(acc(n, 1) + k)}, {vr(acc(n, 0) + k)}")

    def epi1(self, vtype):
        e = self.e
        e.wait(vm="bias")
        e.i("s_nop 1")
        for p in range(2):
            qa, qb = V_WB[1] + 8 * p, V_WB[1] + 8 * p + 4
            if vtype:
                for n, dst in ((2 * p, qa), (2 * p + 1, qb)):
                    for rt in range(2):
                        for h in range(2):
                            a = acc(n, rt) + 2 * h
                            e.i(f"v_cvt_pk_bf16_f32 {vr(dst + 2 * rt + h)}, {vr(a)}, {vr(a + 1)}")
            else:
                for k in range(16):
                    r = acc(2 * p, 0) + k
                    e.i(f"v_mul_f32 {vr(r)}, {sr(S_SCALE)}, {vr(r)}")
                for op, sg in (("v_add_u32", S_HB), ("v_and_b32", S_WB)):
                    for k in range(0, 16, 4):
                        r = acc(2 * p, 0) + k
                        e.i(f"{op} {vr(r)}, {sr(sg)}, {vr(r)}")
                for rt, dst in ((0, qa), (1, qb)):
                    for ab in range(2):
                        for h in range(2):
                            a = acc(2 * p + ab, rt) + 2 * h
                            e.i(f"v_cvt_pk_bf16_f32 {vr(dst + 2 * ab + h)}, {vr(a)}, {vr(a + 1)}")
                e.i(f"""
                s_mov_b64 exec, {sr((S_MA, S_MB)[p], 2)}
                v_swap_b32 {vr(qa + 2)}, {vr(qb)}
                v_swap_b32 {vr(qa + 3)}, {vr(qb + 1)}
                s_mov_b64 exec, -1
                """)
            for k, q in enumerate((qa, qb)):
                e.vmem(f"buffer_store_dwordx4 {vr(q, 4)}, {vr(V_ST + 2 * p + k)}, {sr(R_WS, 4)}, {sr(S_EPI)} offen sc1", "e1")
        self.acc_init()

    def lane_addr(self):
        return self.each(f"v_lshlrev_b32 {vr(A_L16)}, 4, v0")

    def flag_store(self, val, check_init):
        e = self.e
        skip = self.lab("nofl")
        e.i(f"s_cmp_lg_u32 {sr(S_WV)}, 0\ns_cbranch_scc1 {skip}")
        if check_init:
            ok, lp = self.lab("iok"), self.lab("ilp")
            e.i(f"v_readfirstlane_b32 {sr(T1)}, v2\ns_cmp_eq_u32 {sr(T1)}, 0\ns_cbranch_scc1 {lp}")
            e.label(ok)
            self.cold.append(f"""
            {lp}:
            s_mov_b32 {sr(S_SPIN)}, {SPIN}
            {lp}_a:
            buffer_load_dword v2, off, {sr(R_DBG, 4)}, 0 sc1
            s_waitcnt vmcnt(0)
            v_readfirstlane_b32 {sr(T1)}, v2
            s_cmp_lg_u32 {sr(T1)}, 0
            s_cbranch_scc1 {ok}
            s_sleep 8
            s_sub_u32 {sr(S_SPIN)}, {sr(S_SPIN)}, 1
            s_cmp_lg_u32 {sr(S_SPIN)}, 0
            s_cbranch_scc1 {lp}_a
            s_branch {ok}
            """)
        e.i(f"""
        s_lshl_b32 {sr(T1)}, {sr(S_CG)}, 4
        s_add_u32 {sr(T1)}, {sr(T1)}, {sr(S_RB)}
        s_lshl_b32 {sr(T1)}, {sr(T1)}, 7
        v_mov_b32 v1, {val}
        s_mov_b64 exec, 1
        buffer_store_dword v1, off, {sr(R_WS, 4)}, {sr(T1)} sc1
        s_mov_b64 exec, -1
        """)
        e.label(skip)

    def poll(self, vaddr, vdat, val, nlanes, tag):
        e = self.e
        mask = (1 << nlanes) - 1
        setx = "s_mov_b32 exec_hi, 0" if nlanes == 32 else f"s_mov_b64 exec, {mask:#x}"

        def issue():
            e.i(setx)
            e.vmem(f"buffer_load_dword {vr(vdat)}, {vr(vaddr)}, {sr(R_WS, 4)}, 0 offen sc1", tag)
            e.i("s_mov_b64 exec, -1")

        def check():
            ok, lp = self.lab("pok"), self.lab("plp")
            e.wait(vm=tag)
            e.i(f"""
            v_cmp_gt_u32 vcc, {val}, {vr(vdat)}
            s_and_b32 {sr(T1)}, vcc_lo, {mask:#x}
            s_cbranch_scc1 {lp}
            """)
            e.label(ok)
            self.cold.append(f"""
            {lp}:
            s_mov_b32 {sr(S_SPIN)}, {SPIN}
            {lp}_a:
            {setx}
            buffer_load_dword {vr(vdat)}, {vr(vaddr)}, {sr(R_WS, 4)}, 0 offen sc1
            s_mov_b64 exec, -1
            s_waitcnt vmcnt(0)
            v_cmp_gt_u32 vcc, {val}, {vr(vdat)}
            s_and_b32 {sr(T1)}, vcc_lo, {mask:#x}
            s_cbranch_scc0 {ok}
            s_sub_u32 {sr(S_SPIN)}, {sr(S_SPIN)}, 1
            s_cmp_lg_u32 {sr(S_SPIN)}, 0
            s_cbranch_scc1 {lp}_a
            s_branch {ok}
            """)
        return issue, check

    def poll1_addr(self):
        return self.each(f"""
        s_mul_i32 {sr(T4)}, {sr(S_HD)}, 20
        v_and_b32 v28, 1, v0
        v_mad_u32_u24 v28, v28, 19, {sr(T4)}
        v_lshrrev_b32 v28, 7, v28
        v_lshrrev_b32 v24, 2, v0
        v_mad_u32_u24 v28, v24, 5, v28
        v_bfe_u32 v25, v0, 1, 1
        v_lshl_add_u32 v25, v25, 3, {sr(S_WV)}
        """) + [self.ii(f"""
        s_lshr_b32 {sr(T4)}, {sr(S_RTQ)}, 2
        s_mov_b64 exec, 15
        v_mov_b32 v25, {sr(T4)}
        s_mov_b64 exec, -1
        """)] + self.each(f"""
        v_lshl_add_u32 v28, v28, 4, v25
        v_lshlrev_b32 {vr(A_P)}, 7, v28
        v_bfe_u32 v24, v0, 4, 1
        v_lshlrev_b32 v24, 3, v24
        v_lshl_add_u32 {vr(A_QA)}, {vr(V_L15)}, 4, v24
        """)

    def kv_dma(self, rnd):
        out = []
        for i in range(5):
            src = (rnd >> 1) * 81920 + (rnd & 1) * 5120 + i * 1024
            out.append(self.vm(f"s_add_u32 m0, {sr(S_KVL)}, {rnd * 40960 + i * 1024}\n"
                               f"s_add_u32 {sr(T2)}, {sr(S_KVB)}, {src}\n"
                               f"buffer_load_dwordx4 {vr(A_L16)}, {sr(R_WS, 4)}, {sr(T2)} offen sc1 lds", f"kv{rnd}"))
        return out

    def att_setup(self):
        out = self.each(f"""
        v_lshrrev_b32 v23, 5, v0
        v_bfe_u32 v24, v0, 3, 2
        v_and_b32 v25, 3, v0
        v_lshl_add_u32 v24, v24, 2, v25
        v_bfe_u32 v25, v0, 2, 1
        v_lshlrev_b32 v26, 9, v23
        v_lshl_add_u32 v26, v25, 8, v26
        v_lshl_add_u32 {vr(A_AK)}, v24, 4, v26
        v_mul_u32_u24 v26, 2560, v23
        v_lshl_add_u32 v26, v24, 4, v26
        v_lshl_add_u32 {vr(A_AKR)}, v25, 3, v26
        v_mul_u32_u24 v26, 192, v23
        v_sub_u32 {vr(A_AV)}, {vr(A_L16)}, v26
        """)
        return out

    def att_consts(self):
        e = self.e
        e.i(f"""
        v_mov_b32 {vr(A_IDX)}, 0xdddddddd
        v_mov_b32 {vr(A_VLO)}, 0
        s_mov_b32 exec_lo, 0x11000000
        s_mov_b32 exec_hi, 0x11000000
        v_mov_b32 {vr(A_VLO)}, 0x3f803f80
        s_mov_b64 exec, -1
        """)
        for r in range(A_VLO + 1, A_VLO + 12):
            e.i(f"v_mov_b32 {vr(r)}, {vr(A_VLO)}")
        for r in range(A_O, A_O + 16):
            e.i(f"v_mov_b32 {vr(r)}, 0")

    def q_loads(self):
        return [self.vm(f"buffer_load_dwordx4 {vr(A_QM, 4)}, {vr(A_L16)}, {sr(R_WS, 4)}, {sr(S_OBLK)} offen sc1", "q"),
                self.vm(f"buffer_load_dwordx2 {vr(A_QLO, 2)}, {vr(A_QA)}, {sr(R_WS, 4)}, {sr(S_OBLK)} offen offset:1024 sc1", "q")]

    def pass2(self):
        e, c = self.e, self.c
        assert c.u_chk1 >= 12
        p_issue, p_check = self.poll(A_P, A_P + 1, 1, 12, "p1")
        prev = self.mfmas(0, 4, 0, False, False)
        late = [self.vm(t, g) for s in range(c.pre2 + 1, 15) for t, g in self.dma_stage(s)]

        def chk():
            self.stamp("u18")
            p_check()
            self.stamp("chk1")
        for u in range(1, 21):
            s, ksl = 10 + (u >> 2), u & 3
            if ksl == 0 and u < 20:
                assert len(late) <= 4 * (14 - s)
                self.stage_sync(s, ["e1", "dbg"] if u == c.u_flag1 else [])
            elif u == c.u_flag1:
                e.wait(vm=["e1", "dbg"])
                e.i("s_barrier")
            if u == c.u_flag1:
                self.stamp("fl1")
                self.flag_store(1, True)
            if u == 2:
                self.q += self.spaced(self.lane_addr() + self.poll1_addr(), 1)
            if u >= c.u_late:
                for _ in range(c.nlate):
                    if late:
                        self.q += [late.pop(0), lambda: None]
            if u == c.u_poll1:
                self.q.append(p_issue)
            if u == c.u_chk1:
                self.q += [chk] + self.spaced(self.q_loads() + self.kv_dma(0), 1)
            self.unit(prev, self.reads(s, ksl, 4, u & 1) if u < 20 else [],
                      drain=u >= c.u_late - 1 and u != c.u_chk1 or u == 20, prio=(3 - ksl if u < 20 else 0,))
            if u < 20:
                prev = self.mfmas(u, 4, u & 1, False, False)
        self.stamp("p2end")
        pk = V_WB[0]
        e.i("s_nop 0")
        for p in range(2):
            for k in range(16):
                r = acc(2 * p, 0) + k
                e.i(f"v_max_f32 {vr(r)}, 0, {vr(r)}")
            for k in range(16):
                r = acc(2 * p, 0) + k
                e.i(f"v_mul_f32 {vr(r)}, {vr(r)}, {vr(r)}")
            for rt in range(2):
                for ab in range(2):
                    for h in range(2):
                        a = acc(2 * p + ab, rt) + 2 * h
                        e.i(f"v_cvt_pk_bf16_f32 {vr(pk + 8 * p + 4 * rt + 2 * ab + h)}, {vr(a)}, {vr(a + 1)}")
        if c.u_chk1 > 20:
            for x in [chk] + self.q_loads() + self.kv_dma(0):
                x()

    def bubble(self):
        e = self.e
        st = [self.vm(f"buffer_store_dwordx4 {vr(V_WB[0] + 4 * k, 4)}, {vr(A_L16)}, {sr(R_WS, 4)}, {sr(S_HST)} offen "
                      f"offset:{1024 * k} sc1", "hs") for k in range(4)]
        if self.c.u_chk1 > 18 and self.c.nst0:
            e.i("s_barrier")
        for x in st[:self.c.nst0] + self.att_setup():
            x()
        self.att_consts()
        return st[self.c.nst0:]

    def lds_off(self, reg, off):
        base = self.win[reg]
        while off - base > 65535 - 2560:
            base += 61440
            self.e.i(f"v_add_u32 {vr(reg)}, 61440, {vr(reg)}")
        self.win[reg] = base
        return off - base

    def rd_k(self, t):
        if t < 64:
            o = self.lds_off(A_AK, t * 2560)
            self.e.lds(f"ds_read_b128 {vr(A_KM, 4)}, {vr(A_AK)} offset:{o}", f"k{t}")

    def rd_kr(self, t):
        if t < 64:
            o = self.lds_off(A_AKR, t * 2560)
            self.e.lds(f"ds_read_b64 {vr(A_KR, 2)}, {vr(A_AKR)} offset:{o + 1024}", f"r{t}")

    def rd_v(self, t):
        if t < 64:
            e = self.e
            o = self.lds_off(A_AV, t * 2560)
            e.i(f"s_mov_b64 exec, {sr(S_VMASK, 2)}")
            e.lds(f"ds_read_b128 {vr(A_VLO, 4)}, {vr(A_AV)} offset:{o + 1280}", f"vl{t}")
            e.lds(f"ds_read_b128 {vr(A_VHI[t & 1], 4)}, {vr(A_AV)} offset:{o + 1920}", f"vh{t}")
            e.i("s_mov_b64 exec, -1")

    def qk1(self, t):
        self.e.wait(lg=f"k{t}")
        self.e.i(f"v_mfma_f32_32x32x16_bf16 {vr(A_S[t & 1], 16)}, {vr(A_KM, 4)}, {vr(A_QM, 4)}, 0")
        self.rd_k(t + 1)

    def qk2(self, t):
        self.e.wait(lg=f"r{t & ~1}")
        s = vr(A_S[t & 1], 16)
        self.e.i(f"v_mfma_f32_32x32x8_bf16 {s}, {vr(A_KR, 2)}, {vr((A_QLO, A_QHI)[t & 1], 2)}, {s}")
        if t & 1:
            self.rd_kr(t + 1)

    def pvlo(self, t):
        self.e.wait(lg=f"vl{t}")
        self.e.i(f"v_smfmac_f32_32x32x32_bf16 {vr(A_O, 16)}, {vr(A_VLO, 4)}, {vr(A_S[t & 1], 8)}, {vr(A_IDX)}")
        self.rd_v(t + 1)

    def pvhi(self, t):
        self.e.wait(lg=f"vh{t}")
        self.e.i(f"v_smfmac_f32_32x32x32_bf16 {vr(A_O, 16)}, {vr(A_VHI[t & 1], 4)}, {vr(A_S[t & 1] + 8, 8)}, {vr(A_IDX)}")

    def ring_a(self, i, r):
        return A_RING + (i & 1) * 36 + 4 * r

    def ring_w(self, i, n):
        if i == 9:
            return self.ring_a(1, n) if n < 4 else 12
        return A_RING + (i & 1) * 36 + 16 + 4 * n

    def ld_w(self, i, n):
        if i < 7:
            pre = f"s_add_u32 {sr(T2)}, {sr(S_WB)}, {i * 40960 + n * 1024}"
        elif i < 9:
            pre = f"s_add_u32 {sr(T2)}, {sr(S_EPI)}, {(i - 7) * 40960 + n * 1024}"
        else:
            pre = f"s_add_u32 {sr(T2)}, {sr(S_WOB)}, {n * 1024}"
        return self.vm(f"{pre}\nbuffer_load_dwordx4 {vr(self.ring_w(i, n), 4)}, {vr(A_L16)}, {sr(R_WS, 4)}, {sr(T2)} offen sc1",
                       f"w{i}_{n}")

    def ld_a(self, i, r):
        slot = 2 * i + (r & 1)
        return self.vm(f"s_add_u32 {sr(T2)}, {sr((S_HB, S_HB2)[r >> 1])}, {slot * 1024}\n"
                       f"buffer_load_dwordx4 {vr(self.ring_a(i, r), 4)}, {vr(A_L16)}, {sr(R_WS, 4)}, {sr(T2)} offen sc1",
                       f"a{i}_{r}")

    def facc(self, r, n):
        return A_FACC + (r * 5 + n) * 4

    def ffn_prep(self, fs):
        e = self.e
        tags = []
        for i, n, r in fs:
            tags += [f"w{i}_{n}", f"a{i}_{r}"]
        pend = {t for t in tags if t not in self.issued}
        while pend:
            self.pop(1)
            pend = {t for t in tags if t not in self.issued}
        e.wait(vm=tags)

    def ffn_mfma(self, i, n, r):
        d = vr(self.facc(r, n), 4)
        self.e.i(f"v_mfma_f32_16x16x32_bf16 {d}, {vr(self.ring_w(i, n), 4)}, {vr(self.ring_a(i, r), 4)}, {'0' if i == 0 else d}")
        if r == 3:
            self.q.append(self.ld_w(i + 2, n))
        if n == 4:
            if i + 2 < 7:
                self.q.append(self.ld_a(i + 2, r))
            elif i == 5:
                self.q.append(self.ld_w(9, r))
                if r == 3:
                    self.q.append(self.ld_w(9, 4))

    def attention(self):
        e, c = self.e, self.c
        assert c.t_flag2 <= 15 and c.t_chk2 <= 31
        self.win = {A_AK: 0, A_AKR: 0, A_AV: 0}
        p_issue, p_check = self.poll(A_P, A_P + 1, 2, 32, "p2")
        left = self.bubble()
        e.i(f"""
        s_lshl_b32 {sr(T1)}, {sr(S_WV)}, 12
        v_lshl_add_u32 {vr(A_P)}, v0, 7, {sr(T1)}
        v_lshlrev_b32 {vr(A_T)}, 2, v0
        v_and_b32 {vr(A_T + 1)}, 60, {vr(A_T)}
        v_and_b32 {vr(A_T)}, 124, {vr(A_T)}
        s_mul_i32 {sr(T2)}, {sr(S_CT)}, 5120
        s_add_u32 {sr(T2)}, {sr(T2)}, {OFF_WT}
        s_mul_i32 {sr(T1)}, {sr(S_WV)}, {7 * 40960}
        s_add_u32 {sr(S_WB)}, {sr(T1)}, {sr(T2)}
        s_mul_i32 {sr(T1)}, {sr(S_RQ)}, {5 * 40960}
        s_add_u32 {sr(T1)}, {sr(T1)}, {sr(T2)}
        s_add_u32 {sr(S_WOB)}, {sr(T1)}, {60 * 40960}
        s_mul_i32 {sr(T2)}, {sr(S_CH)}, {2 * 40960}
        s_add_u32 {sr(T1)}, {sr(T1)}, {sr(T2)}
        s_add_u32 {sr(S_EPI)}, {sr(T1)}, {56 * 40960}
        s_lshl_b32 {sr(T1)}, {sr(S_RT)}, 1
        s_add_u32 {sr(S_BLK)}, {sr(T1)}, {sr(S_CH)}
        s_mul_i32 {sr(T2)}, {sr(S_WV)}, 14336
        s_add_u32 {sr(T2)}, {sr(T2)}, {OFF_H}
        s_mul_i32 {sr(T1)}, {sr(S_BLK)}, {112 * 1024}
        s_add_u32 {sr(S_HB)}, {sr(T1)}, {sr(T2)}
        s_xor_b32 {sr(T1)}, {sr(S_BLK)}, 1
        s_mul_i32 {sr(T1)}, {sr(T1)}, {112 * 1024}
        s_add_u32 {sr(S_HB2)}, {sr(T1)}, {sr(T2)}
        """)
        e.wait(vm=["kv0", "q"])
        e.i(f"""
        v_mov_b32 {vr(A_QHI)}, {vr(A_QLO)}
        v_mov_b32 {vr(A_QHI + 1)}, {vr(A_QLO + 1)}
        s_mov_b32 exec_hi, 0
        v_mov_b32 {vr(A_QHI)}, 0
        v_mov_b32 {vr(A_QHI + 1)}, 0
        s_not_b64 exec, exec
        v_mov_b32 {vr(A_QLO)}, 0
        v_mov_b32 {vr(A_QLO + 1)}, 0
        s_mov_b64 exec, -1
        s_barrier
        """)
        self.stamp("att0")
        self.rd_k(0)
        self.rd_kr(0)
        self.q += self.spaced(left, c.stgap)
        ffn = [(i, n, r) for i in range(7) for n in range(5) for r in range(4)]
        nt = 64 - c.ffn_start
        done = 0
        for t in range(65):
            nf = 0
            if c.ffn_start <= t < 64:
                nf = (c.ffn_emb * (t - c.ffn_start + 1) + nt - 1) // nt - done
            fs = ffn[done:done + nf]
            done += nf
            if t == c.t_kv:
                self.q += self.kv_dma(1)
            if t == c.t_flag2:
                self.stamp("fl2a")
                assert not self.q
                e.wait(vm=["hs", "kv1"])
                e.i("s_barrier")
                self.stamp("fl2b")
                self.flag_store(2, False)
                self.q += self.kv_dma(2) + self.kv_dma(3)
            if t == c.t_poll2:
                assert not self.q
                p_issue()
            if t == c.t_chk2:
                self.stamp("chk2a")
                p_check()
                e.i("s_barrier")
                self.stamp("chk2")
                self.after_flags2()
            self.stamp(f"t{t}")
            self.tile(t, fs)
        e.i("s_setprio 0")
        self.stamp("attend")
        self.ffn_left = ffn[done:]

    def after_flags2(self):
        for i in range(2):
            self.q += [self.ld_w(i, 0)] + [self.ld_a(i, r) for r in range(4)] + [self.ld_w(i, n) for n in range(1, 5)]
        self.q.append(self.vm(f"""
        s_lshl_b32 {sr(T2)}, {sr(S_RTQ)}, 7
        s_add_u32 {sr(T2)}, {sr(T2)}, {OFF_G}
        buffer_load_dword {vr(A_GA)}, {vr(A_T)}, {sr(R_WS, 4)}, {sr(T2)} offen sc1
        """, "g"))
        for r in range(4):
            self.q.append(self.vm(f"""
            s_xor_b32 {sr(T2)}, {sr(S_BLK)}, {r >> 1}
            s_lshl_b32 {sr(T2)}, {sr(T2)}, 7
            s_add_u32 {sr(T2)}, {sr(T2)}, {OFF_G + 64 * (r & 1)}
            buffer_load_dword {vr(A_GF + r)}, {vr(A_T + 1)}, {sr(R_WS, 4)}, {sr(T2)} offen sc1
            """, "g"))

    def pop(self, n):
        for _ in range(n):
            if self.q:
                self.q.pop(0)()

    def tile(self, t, fs):
        e, c = self.e, self.c
        e.i("s_setprio 2")
        if t < 64:
            self.qk1(t)
            self.pop(1)
        if t > 0:
            if t == 64:
                e.i("s_nop 0")
            self.pvlo(t - 1)
        else:
            self.rd_v(0)
        n0 = len(e.lines)
        if t < 64:
            self.qk2(t)
            self.pop(1)
        n1 = len(e.lines)
        if t > 0:
            self.pvhi(t - 1)
        if t == 64:
            return
        if fs:
            self.ffn_prep(fs)
            e.i("s_setprio 3")
        x = A_S[t & 1]
        for k in range(16):
            if k < len(fs):
                self.ffn_mfma(*fs[k])
            if k == len(fs):
                e.i("s_setprio 0")
            if k == (c.qpos if fs else 8):
                e.i("s_setprio 1")
            if k == 0:
                kk = max(i for i in range(n0, n1) if "32x32x8" in e.lines[i])
                pad = 12 - (len(e.lines) - 1 - kk)
                if pad > 0:
                    e.lines.insert(n1, f"s_nop {pad - 1}")
            e.i(f"v_exp_f32 {vr(x + k)}, {vr(x + k)}")

    def fallback(self, back):
        x, m = A_S[0], A_S[1]
        L = []
        A = L.append
        A(f"""
        L_fb:
        v_add_u32 {vr(A_AK)}, {(-self.win[A_AK]) & 0xffffffff:#x}, {vr(A_AK)}
        v_add_u32 {vr(A_AKR)}, {(-self.win[A_AKR]) & 0xffffffff:#x}, {vr(A_AKR)}
        v_add_u32 {vr(A_AV)}, {(-self.win[A_AV]) & 0xffffffff:#x}, {vr(A_AV)}
        v_mov_b32 {vr(m)}, 0xff800000
        """)
        for ps in range(2):
            A(f"s_mov_b32 {sr(T1)}, 0\nL_fb{ps}:")
            for par in range(2):
                A(f"""
                ds_read_b128 {vr(A_KM, 4)}, {vr(A_AK)} offset:{par * 2560}
                ds_read_b64 {vr(A_KR, 2)}, {vr(A_AKR)} offset:1024
                """)
                if ps:
                    A(f"""
                    s_mov_b64 exec, {sr(S_VMASK, 2)}
                    ds_read_b128 {vr(A_VLO, 4)}, {vr(A_AV)} offset:{par * 2560 + 1280}
                    ds_read_b128 {vr(A_VHI[0], 4)}, {vr(A_AV)} offset:{par * 2560 + 1920}
                    s_mov_b64 exec, -1
                    """)
                A(f"""
                s_waitcnt lgkmcnt(0)
                v_mfma_f32_32x32x16_bf16 {vr(x, 16)}, {vr(A_KM, 4)}, {vr(A_QM, 4)}, 0
                v_mfma_f32_32x32x8_bf16 {vr(x, 16)}, {vr(A_KR, 2)}, {vr((A_QLO, A_QHI)[par], 2)}, {vr(x, 16)}
                s_nop 11
                """)
                if ps == 0:
                    for k in range(0, 16, 2):
                        A(f"v_max3_f32 {vr(m)}, {vr(m)}, {vr(x + k)}, {vr(x + k + 1)}")
                else:
                    for k in range(16):
                        A(f"v_sub_f32 {vr(x + k)}, {vr(x + k)}, {vr(m)}\nv_exp_f32 {vr(x + k)}, {vr(x + k)}")
                    A(f"""
                    s_nop 1
                    v_smfmac_f32_32x32x32_bf16 {vr(A_O, 16)}, {vr(A_VLO, 4)}, {vr(x, 8)}, {vr(A_IDX)}
                    v_smfmac_f32_32x32x32_bf16 {vr(A_O, 16)}, {vr(A_VHI[0], 4)}, {vr(x + 8, 8)}, {vr(A_IDX)}
                    s_nop 7
                    """)
            A(f"""
            v_add_u32 {vr(A_AK)}, 5120, {vr(A_AK)}
            v_add_u32 {vr(A_AKR)}, 5120, {vr(A_AKR)}
            """)
            if ps:
                A(f"v_add_u32 {vr(A_AV)}, 5120, {vr(A_AV)}")
            A(f"""
            s_add_u32 {sr(T1)}, {sr(T1)}, 1
            s_cmp_lt_u32 {sr(T1)}, 32
            s_cbranch_scc1 L_fb{ps}
            """)
            if ps == 0:
                A(f"""
                v_mov_b32 {vr(m + 1)}, {vr(m)}
                v_add_u32 {vr(A_AK)}, {(-163840) & 0xffffffff:#x}, {vr(A_AK)}
                v_add_u32 {vr(A_AKR)}, {(-163840) & 0xffffffff:#x}, {vr(A_AKR)}
                v_permlane32_swap_b32 {vr(m)}, {vr(m + 1)}
                s_nop 1
                v_max_f32 {vr(m)}, {vr(m)}, {vr(m + 1)}
                """)
                for r in range(A_O, A_O + 16):
                    A(f"v_mov_b32 {vr(r)}, 0")
        A(f"s_nop 7\ns_branch {back}")
        self.cold.append("\n".join(L))

    def tail(self):
        e, c = self.e, self.c
        o, t0 = A_O, A_P
        back = "L_fb_back"
        e.i("s_nop 11")
        e.i(f"v_mov_b32 {vr(t0)}, {vr(o + 12)}")
        for k in range(12):
            e.i(f"v_fma_f32 {vr(t0)}, {vr(o + k)}, 0, {vr(t0)}")
        lo, hi = (2.0 ** 40, 2.0 ** -20) if c.force_fallback else (2.0 ** -20, 2.0 ** 40)
        e.i(f"""
        v_cmp_nle_f32 vcc, {f32(lo)}, {vr(t0)}
        s_mov_b64 {sr(S_MA, 2)}, vcc
        v_cmp_nge_f32 vcc, {f32(hi)}, {vr(t0)}
        s_or_b64 vcc, vcc, {sr(S_MA, 2)}
        s_cbranch_scc1 L_fb
        """)
        e.label(back)
        self.fallback(back)
        e.wait(vm="g")
        e.i(f"""
        v_rcp_f32 {vr(t0)}, {vr(o + 12)}
        v_and_b32 {vr(t0 + 1)}, 31, v0
        v_mul_f32 {vr(t0)}, {vr(t0)}, {vr(A_GA)}
        v_lshlrev_b32 {vr(t0 + 1)}, 3, {vr(t0 + 1)}
        """)
        for k in range(12):
            e.i(f"v_mul_f32 {vr(o + k)}, {vr(o + k)}, {vr(t0)}")
        for k in range(0, 12, 4):
            e.i(f"v_and_b32 {vr(o + k)}, 0xfffe0000, {vr(o + k)}")
        for k in range(6):
            e.i(f"v_cvt_pk_bf16_f32 {vr(o + k)}, {vr(o + 2 * k)}, {vr(o + 2 * k + 1)}")
        for k in range(0, 6, 2):
            e.i(f"v_or_b32 {vr(o + k)}, 1, {vr(o + k)}")
        e.vmem(f"buffer_store_dwordx4 {vr(o, 4)}, {vr(A_L16)}, {sr(R_WS, 4)}, {sr(S_OBLK)} offen sc1", "os")
        e.i("s_mov_b32 exec_hi, 0")
        e.vmem(f"buffer_store_dwordx2 {vr(o + 4, 2)}, {vr(t0 + 1)}, {sr(R_WS, 4)}, {sr(S_OBLK)} offen offset:1024 sc1", "os")
        e.i("s_mov_b64 exec, -1")
        for f in self.ffn_left:
            self.ffn_prep([f])
            self.ffn_mfma(*f)
        while self.q:
            self.pop(1)
        e.i(f"""
        v_lshrrev_b32 v1, 4, v0
        v_lshlrev_b32 v2, 3, v1
        v_and_b32 v3, 15, v0
        """)
        so = (S_MA, S_MA + 1, S_MB)
        for k in range(3):
            e.i(f"""
            s_add_u32 {sr(T1)}, {sr(S_WV)}, {8 * k}
            s_mul_i32 {sr(T2)}, {sr(T1)}, 52
            s_lshr_b32 {sr(T2)}, {sr(T2)}, 8
            s_mul_i32 {sr(T3)}, {sr(T2)}, 5
            s_sub_u32 {sr(T1)}, {sr(T1)}, {sr(T3)}
            s_lshl_b32 {sr(T1)}, {sr(T1)}, 5
            s_mul_i32 {sr(T3)}, {sr(S_CT)}, 160
            s_add_u32 {sr(T1)}, {sr(T1)}, {sr(T3)}
            s_lshl_b32 {sr(T3)}, {sr(S_RT)}, 2
            s_add_u32 {sr(T2)}, {sr(T2)}, {sr(T3)}
            s_mul_i32 {sr(T3)}, {sr(T2)}, {16 * 1280}
            s_add_u32 {sr(so[k])}, {sr(T3)}, {sr(T1)}
            s_lshl_b32 {sr(T2)}, {sr(T2)}, 6
            s_add_u32 {sr(T2)}, {sr(T2)}, {OFF_G}
            """)
            e.vmem(f"buffer_load_dwordx2 {vr(106 + 2 * k, 2)}, v2, {sr(R_B2, 4)}, {sr(T1)} offen", "b2")
            e.vmem(f"buffer_load_dword {vr(112 + k)}, {vr(A_T + 1)}, {sr(R_WS, 4)}, {sr(T2)} offen sc1", "b2")
        for r in range(4):
            e.i(f"v_sub_f32 {vr(A_GF + r)}, 1.0, {vr(A_GF + r)}")
        e.i("s_barrier")
        for r in range(4):
            for k in range(20):
                e.i(f"v_mul_f32 {vr(A_FACC + 20 * r + k)}, {vr(A_FACC + 20 * r + k)}, {vr(A_GF + r)}")
        ob, ob2, orem = S_HB, S_HB2, S_WB
        hs = 64 * 1280
        e.i(f"""
        v_lshrrev_b32 v4, 1, v1
        v_mul_u32_u24 v4, {hs}, v4
        v_and_b32 v5, 1, v1
        v_lshl_add_u32 v4, v5, 9, v4
        v_lshl_add_u32 v4, v3, 4, v4
        v_mul_u32_u24 v5, {2 * hs}, v1
        v_lshl_add_u32 v5, v3, 3, v5
        s_mul_i32 {sr(T1)}, {sr(S_RQ)}, {8 * hs}
        s_add_u32 {sr(T1)}, {sr(T1)}, {OFF_Q}
        s_mul_i32 {sr(T2)}, {sr(S_BLK)}, 1280
        s_add_u32 {sr(orem)}, {sr(T1)}, {sr(T2)}
        s_mul_i32 {sr(T3)}, {sr(S_CH)}, {4 * hs}
        s_add_u32 {sr(ob)}, {sr(orem)}, {sr(T3)}
        s_xor_b32 {sr(T2)}, {sr(S_BLK)}, 1
        s_mulk_i32 {sr(T2)}, 1280
        s_add_u32 {sr(T1)}, {sr(T1)}, {sr(T3)}
        s_add_u32 {sr(ob2)}, {sr(T1)}, {sr(T2)}
        s_mul_i32 {sr(T1)}, {sr(S_WV)}, 20480
        s_mul_i32 {sr(T2)}, {sr(S_CH)}, 10240
        s_add_u32 {sr(T3)}, {sr(T1)}, {sr(T2)}
        v_add_u32 v6, {sr(T3)}, {vr(A_L16)}
        s_sub_u32 {sr(T3)}, {sr(T1)}, {sr(T2)}
        v_add_u32 v7, {sr(T3)}, {vr(A_L16)}
        v_add_u32 v124, {2 * hs}, v4
        v_add_u32 v125, {hs}, v5
        s_mov_b32 {sr(S_SPIN)}, {SPIN}
        """)
        oreg = {7: 152, 8: 168, 9: 116}

        def oloads(i):
            if i < 9:
                return [f"buffer_load_dwordx4 {vr(oreg[i] + 4 * r, 4)}, {vr((4, 124)[i - 7])}, {sr(R_WS, 4)}, "
                        f"{sr((ob, ob2)[r >> 1])} offen offset:{256 * (r & 1)} sc1" for r in range(4)]
            return [f"buffer_load_dwordx2 {vr(oreg[i] + 4 * r + 2 * a, 2)}, {vr((5, 125)[a])}, {sr(R_WS, 4)}, {sr(orem)} offen "
                    f"offset:{1024 + 128 * r} sc1" for r in range(2) for a in range(2)]

        def ocheck(i):
            n = 16 if i < 9 else 8
            L = [f"v_and_b32 v1, 1, {vr(oreg[i])}"]
            L += [f"v_and_b32 v1, v1, {vr(oreg[i] + k)}" for k in range(2, n, 2)]
            L.append("v_cmp_eq_u32 vcc, 0, v1")
            return "\n".join(L)
        e.wait(vm="os")
        self.stamp("odrain")
        for i in (7, 9, 8):
            for x in oloads(i):
                e.vmem(x, f"o{i}")
        pend = []
        for i in (7, 9, 8):
            e.wait(vm=f"o{i}")
            e.i(ocheck(i) + f"\ns_cbranch_vccnz L_ort{i}")
            e.label(f"L_ook{i}")
            if i == 7:
                self.stamp("oload")
            self.cold.append(f"L_ort{i}:\n" + "\n".join(oloads(i)) + "\ns_waitcnt vmcnt(0)\n" + ocheck(i) + f"""
            s_sub_u32 {sr(S_SPIN)}, {sr(S_SPIN)}, 1
            s_cmp_lt_i32 {sr(S_SPIN)}, 1
            s_cbranch_scc1 L_ook{i}
            s_cbranch_vccnz L_ort{i}
            s_branch L_ook{i}
            """)
            for r in range(2 if i == 9 else 4):
                for n in range(5):
                    d = vr(self.facc(r, n), 4)
                    e.i(f"v_mfma_f32_16x16x32_bf16 {d}, {vr(self.ring_w(i, n), 4)}, {vr(oreg[i] + 4 * r, 4)}, {d}")
                    if i == 8:
                        pend.append(f"ds_write_b128 {vr(6 + (r >> 1))}, {d} offset:{(r * 5 + n) * 1024}")
                        if len(pend) > 8:
                            e.lds(pend.pop(0), "dw")
        e.i("s_nop 0")
        for x in pend:
            e.lds(x, "dw")
        e.i(f"""
        s_lshl_b32 {sr(T1)}, {sr(S_WV)}, 10
        v_add_u32 v9, {sr(T1)}, {vr(A_L16)}
        v_add_u32 v10, 81920, v9
        v_mul_u32_u24 v11, 1280, v3
        v_add_u32 v11, v11, v2
        """)
        for k in range(3):
            e.i(f"v_sub_f32 {vr(112 + k)}, 1.0, {vr(112 + k)}")
        e.wait(lg="all")
        e.i("s_barrier")
        self.stamp("dumped")
        for k in range(3):
            if k == 2:
                e.i(f"s_cmp_ge_u32 {sr(S_WV)}, 4\ns_cbranch_scc1 L_fin")
            if k:
                e.i("v_add_u32 v9, 8192, v9\nv_add_u32 v10, 8192, v10")
            b = 16 + 32 * (k & 1)
            for w in range(8):
                e.lds(f"ds_read_b128 {vr(b + 4 * w, 4)}, {vr(9 + (w >> 2))} offset:{(w & 3) * 20480}", f"rr{w}")
            for j in range(4):
                src = 106 + 2 * k + (j >> 1)
                e.i(f"v_and_b32 {vr(12 + j)}, 0xffff0000, {vr(src)}" if j & 1 else f"v_lshlrev_b32 {vr(12 + j)}, 16, {vr(src)}")
            for w in range(8):
                e.wait(lg=f"rr{w}")
                for j in range(4):
                    if w == 0:
                        e.i(f"v_fma_f32 {vr(12 + j)}, {vr(12 + j)}, {vr(112 + k)}, {vr(b + j)}")
                    else:
                        e.i(f"v_add_f32 {vr(12 + j)}, {vr(12 + j)}, {vr(b + 4 * w + j)}")
            if c.perturb:
                for j in range(4):
                    e.i(f"v_add_f32 {vr(12 + j)}, {f32(c.perturb / 1000.0)}, {vr(12 + j)}")
            e.i(f"""
            v_cvt_pk_bf16_f32 {vr(b)}, v12, v13
            v_cvt_pk_bf16_f32 {vr(b + 1)}, v14, v15
            buffer_store_dwordx2 {vr(b, 2)}, v11, {sr(R_OUT, 4)}, {sr(so[k])} offen
            """)
        e.label("L_fin")
        if c.dev:
            self.dev_dump()

    def dev_dump(self):
        e = self.e
        e.i(f"""
        s_waitcnt vmcnt(0)
        {"s_memrealtime" if self.c.rt else "s_memtime"} s[36:37]
        s_memrealtime s[12:13]
        s_lshl_b32 {sr(T0)}, s2, 3
        s_add_u32 {sr(T0)}, {sr(T0)}, {sr(S_WV)}
        s_lshl_b32 {sr(T0)}, {sr(T0)}, 7
        s_add_u32 {sr(T0)}, {sr(T0)}, {OFF_DEV}
        s_waitcnt lgkmcnt(0)
        s_mov_b64 exec, 1
        """)
        for k in range(12):
            e.i(f"v_mov_b32 v1, {sr(16 + 2 * k)}\nbuffer_store_dword v1, off, {sr(R_WS, 4)}, {sr(T0)} offset:{4 * k}")
        e.i(f"v_mov_b32 v1, s12\nbuffer_store_dword v1, off, {sr(R_WS, 4)}, {sr(T0)} offset:48")
        e.i(f"v_mov_b32 v1, {sr(S_SPIN)}\nbuffer_store_dword v1, off, {sr(R_WS, 4)}, {sr(T0)} offset:52")
        if self.c.enc >= 0:
            k = self.c.enc
            e.i(f"s_cmp_lg_u32 {sr(T0)}, {OFF_DEV + 296 * 128}\ns_cbranch_scc1 L_end")
            e.i("s_add_u32 s14, s38, 6000" if k == 11 else f"s_add_u32 s14, {sr(16 + 2 * k)}, 6000")
            e.i(f"""
            s_mov_b32 s15, 100000
            L_enc:
            s_memrealtime s[12:13]
            s_waitcnt lgkmcnt(0)
            s_sub_u32 s15, s15, 1
            s_cmp_eq_u32 s15, 0
            s_cbranch_scc1 L_end
            s_sub_u32 s13, s12, s14
            s_cmp_lt_i32 s13, 0
            s_cbranch_scc1 L_enc
            """)
        if self.c.dbgwg >= 0:
            e.i(f"s_cmp_lg_u32 {sr(T0)}, {OFF_DEV + self.c.dbgwg * 128}\ns_cbranch_scc1 L_end")
            for k in range(1, 11):
                e.i(f"s_sub_u32 s13, {sr(16 + 2 * k)}, s16\nv_mov_b32 v1, s13\nbuffer_store_dword v1, off, {sr(R_DBG, 4)}, 0 offset:{4 * k}")
            e.i(f"s_sub_u32 s13, s12, s38\nv_mov_b32 v1, s13\nbuffer_store_dword v1, off, {sr(R_DBG, 4)}, 0 offset:44")

    def build(self):
        e = self.e
        self.prologue()
        e.i(f"s_cmp_eq_u32 {sr(S_SEC)}, 2\ns_cbranch_scc1 L_p1v")
        snap = e.snapshot()
        self.pass1(False)
        after = e.snapshot()
        e.i("s_branch L_p2")
        e.label("L_p1v")
        e.restore(snap)
        self.pass1(True)
        assert e.snapshot() == after
        main = e.lines
        for name, state, fn in (("L_p1z", self.snap_z, self.helper), ("L_p2g", after, self.gate)):
            e.lines = []
            e.label(name)
            e.restore(state)
            fn()
            self.cold.append("\n".join(e.lines))
        e.lines = main
        e.restore(after)
        e.label("L_p2")
        e.i(f"s_cmp_eq_u32 {sr(S_CG)}, 14\ns_cbranch_scc1 L_p2g")
        self.pass2()
        e.label("L_att")
        if self.c.stop:
            e.i("s_branch L_fin")
        self.attention()
        self.tail()
        e.label("L_end")
        e.i("s_endpgm")
        for blk in self.cold:
            e.i(blk)
        return e


HEADER = """; Fused gate + multi-head attention block + squared-ReLU FFN, one persistent launch (generated by gen/gen.py).
; @launch grid=(256,1,1) block=(512,1,1) lds=163840
.amdgcn_target "amdgcn-amd-amdhsa--gfx950"
.text
.globl {n}_kernel
.p2align 8
.type {n}_kernel,@function
{n}_kernel:
"""
FOOTER = """
.section .rodata,"a"
.p2align 6
.amdhsa_kernel {n}_kernel
  .amdhsa_next_free_vgpr 256
  .amdhsa_next_free_sgpr 102
  .amdhsa_accum_offset 256
  .amdhsa_group_segment_fixed_size 0
  .amdhsa_kernarg_size 96
  .amdhsa_user_sgpr_count 2
  .amdhsa_user_sgpr_kernarg_segment_ptr 1
  .amdhsa_system_sgpr_workgroup_id_x 1
  .amdhsa_float_denorm_mode_32 3
.end_amdhsa_kernel
"""


def generate(**kw):
    cfg = Cfg()
    for k, v in kw.items():
        assert hasattr(cfg, k), k
        setattr(cfg, k, v)
    e = Gen(cfg).build()
    errs = check_hazards(e.lines)
    if errs:
        for x in errs[:40]:
            print("HAZARD", x, file=sys.stderr)
        raise SystemExit(f"{len(errs)} hazards")
    return HEADER.format(n=NAME) + e.text() + "\n" + FOOTER.format(n=NAME)


if __name__ == "__main__":
    out = sys.argv[1]
    kw = {}
    for a in sys.argv[2:]:
        k, v = a.split("=")
        kw[k] = int(v)
    open(out, "w").write(generate(**kw))
```

```python
import math
import struct
import sys

from asmlib import Emit, check_hazards, sr, vr

NAME = "gated_mix__mha_block__dense_activation_squared_relu__prompt"

OFF_FLG = 0
OFF_G = 32768
OFF_Q = 65536
OFF_KV = OFF_Q + 32 * 64 * 1280
OFF_H = OFF_KV + 32 * 64 * 2560
OFF_WT = OFF_H + 64 * 112 * 1024
OFF_DEV = OFF_WT + 152 * 20 * 1024
WS_SIZE = OFF_DEV + 2048 * 128
OOB = 0x40000000
SPIN = 400000


def f32(x):
    return "0x%08x" % struct.unpack("<I", struct.pack("<f", x))[0]


S_WV, S_XCD, S_J, S_RB, S_CG, S_RQ, S_CH, S_M0 = 3, 4, 5, 6, 7, 8, 9, 10
T0, T1, T2, T3, T4 = 11, 12, 13, 14, 15
P_X, P_WQ, P_WO, P_W1, P_B1, P_W2, P_B2, P_GW, P_OUT, P_DBG, P_WS = 16, 18, 20, 24, 26, 28, 30, 32, 34, 36, 38
R_X, R_WQ, R_W1, R_WS, R_JOB, R_B1, R_B2, R_GW, R_OUT, R_DBG = 40, 44, 48, 52, 56, 60, 64, 68, 72, 76
S_HD, S_RTQ, S_RT, S_CT, S_BLK, S_SCALE = 80, 81, 82, 83, 84, 85
S_VMASK = 86
S_EPI, S_JST, S_OBLK, S_HB, S_WB, S_SEC, S_GAM, S_HST = 88, 89, 90, 91, 92, 93, 94, 95
S_HB2, S_WOB = S_SEC, S_GAM
S_MA, S_MB = 96, 98
S_SPIN = 100
S_KVB = 101
S_KVL = 1

V_LANE = 0
V_X0, V_X1, V_W, V_W1 = 1, 2, 3, 4
V_XR = 5
V_WR = 7
V_ST = 11
V_WR2 = 15
V_BIAS = 16
V_L15, V_G4 = 240, 241
V_ACC = 32
V_WB = (64, 80)
V_XF = 96

A_AK, A_AKR, A_AV, A_IDX, A_GA = 104, 105, 132, 133, 134
A_L16, A_QA = 96, 97
A_T = 98
A_QLO, A_QHI, A_KR, A_QM, A_KM, A_VLO = 106, 108, 110, 112, 116, 120
A_VHI = (124, 128)
A_P = 100
A_O = 136
A_S = (152, 168)
A_RING = 184
A_FACC = 16
A_GF = 8


STAMPSETS = {
    0: [],
    1: ["karg", "b0", "p1end", "chk1", "att0", "chk2", "attend", "odrain", "oload", "dumped"],
    2: ["b0", "b1", "b6", "b2", "b8", "p1end", "b11", "b12", "b13", "b14"],
    3: ["p1end", "e1end", "b11", "chk1", "fl1", "b13", "b14", "u18", "p2end", "att0"],
    5: ["karg", "iss0", "x", "b0", "x", "x", "x", "x", "x", "p1end"],
    8: ["karg", "b0", "p1end", "b11", "p2end", "att0", "fl2a", "chk2", "attend", "dumped"],
    9: ["b9", "b10", "p1end", "e1a", "e1end", "pre11", "b11", "pre12", "b12", "b13"],
    10: ["karg", "z0", "z1", "z2", "z3", "z4", "z5", "z6", "p1end", "att0"],
    11: ["karg", "b0", "b1", "b2", "b4", "b6", "b8", "p1end", "fl1", "att0"],
    6: ["att0", "t2", "t4", "t6", "t8", "t10", "fl2a", "fl2b", "chk2a", "chk2"],
    7: ["chk2", "t24", "t28", "t32", "t40", "t48", "t56", "attend", "odrain", "oload"],
    4: ["karg", "att0", "fl2a", "fl2b", "chk2a", "chk2", "t16", "t32", "t48", "attend"],
}


class Cfg:
    dev = 0
    dbgwg = -1
    rt = 0
    enc = -1
    depth = 2
    ffn_start = 22
    ffn_emb = 140
    t_flag2 = 9
    t_kv = 3
    t_poll2 = 15
    t_chk2 = 18
    pre2 = 12
    u_late = 8
    nlate = 2
    u_flag1 = 8
    u_poll1 = 14
    u_chk1 = 17
    nst0 = 2
    stgap = 3
    qpos = 12
    rdfront = 8
    s_w1t = 2
    smem = 3
    smem0 = 4
    tfirst = 0
    w1end = 0
    ctouch = 1
    dgap = 2
    ramp = -1
    biasq = 1
    odelay = 1
    perturb = 0
    p1x = 0
    gprio = 1
    stop = 0
    force_fallback = False


def acc(n, rt):
    return V_ACC + (n * 2 + rt) * 4


def xf(ks, rt):
    return V_XF + (ks * 2 + rt) * 4


def srd(r, p, size):
    return (f"s_mov_b64 {sr(r, 2)}, {sr(p, 2)}\ns_mov_b32 {sr(r + 2)}, {size}\ns_mov_b32 {sr(r + 3)}, 0x20000\n")


class Gen:
    def __init__(self, cfg):
        self.c = cfg
        self.e = Emit()
        self.cold = []
        self.nlab = 0
        self.q = []
        self.issued = set()

    def stamp(self, name):
        names = STAMPSETS[self.c.dev]
        if name in names:
            op = "s_memrealtime" if self.c.rt else "s_memtime"
            self.e.i(f"{op} {sr(16 + 2 * names.index(name), 2)}")

    def lab(self, base):
        self.nlab += 1
        return f"L_{base}_{self.nlab}"

    def dma_stage(self, s):
        slot = (s % 5) * 32768
        out = []
        for i in range(4):
            m0 = slot + (i & 1) * 1024 + (i >> 1) * 16384
            if self.c.p1x & 2 and s >= self.c.depth:
                out.append((f"s_mov_b32 {sr(S_SPIN)}, {OOB}\nbuffer_load_dword v249, off, {sr(R_X, 4)}, {sr(S_SPIN)}", f"st{s}"))
                continue
            if s < 10:
                if i < 2:
                    va, r, so = (V_X0, V_X1)[i], R_X, s * 128
                else:
                    va, r, so = V_W, R_WQ, (s * 64 + (i & 1) * 4) * 3840
            else:
                va, r, so = V_W1, R_W1, ((s - 10) * 128 + (i & 1) * 4 + (i >> 1) * 64) * 3456
            sof = f"s_mov_b32 {sr(S_SPIN)}, {so}"
            out.append((f"s_add_u32 m0, {sr(S_M0)}, {m0}\n{sof}\n"
                        f"buffer_load_dwordx4 {vr(va)}, {sr(r, 4)}, {sr(S_SPIN)} offen lds", f"st{s}"))
        return out

    def prologue(self):
        e = self.e
        top = "s_memrealtime" if self.c.rt else "s_memtime"
        e.i(f"""
        s_load_dwordx16 s[16:31], s[0:1], 0
        s_load_dwordx8 s[32:39], s[0:1], 64
        {"s_memrealtime vcc" if self.c.dev else ""}
        s_cmp_ge_u32 s2, 256
        s_cbranch_scc1 L_end
        v_lshrrev_b32 v221, 6, v0
        v_and_b32 v0, 63, v0
        v_readfirstlane_b32 {sr(S_WV)}, v221
        s_and_b32 {sr(S_XCD)}, s2, 7
        s_lshr_b32 {sr(S_J)}, s2, 3
        s_lshr_b32 {sr(T0)}, {sr(S_XCD)}, 1
        s_cmp_ge_u32 {sr(S_J)}, 30
        s_cselect_b32 {sr(T1)}, 2, 30
        s_cselect_b32 {sr(T2)}, 90, 0
        s_cselect_b32 {sr(T3)}, {OOB}, 0
        s_mul_i32 {sr(T0)}, {sr(T0)}, {sr(T1)}
        s_add_u32 {sr(T0)}, {sr(T0)}, {sr(S_J)}
        s_add_u32 {sr(T0)}, {sr(T0)}, {sr(T2)}
        s_lshr_b32 {sr(S_CG)}, {sr(T0)}, 3
        s_and_b32 {sr(T0)}, {sr(T0)}, 7
        s_and_b32 {sr(T1)}, {sr(S_XCD)}, 1
        s_lshl3_add_u32 {sr(S_RB)}, {sr(T1)}, {sr(T0)}
        s_lshl_b32 {sr(S_M0)}, {sr(S_WV)}, 11
        v_and_b32 {vr(V_L15)}, 15, v0
        v_lshrrev_b32 {vr(V_G4)}, 4, v0
        v_lshrrev_b32 v221, 3, v0
        v_and_b32 v222, 7, v0
        v_xor_b32 v222, v222, {vr(V_G4)}
        s_lshl3_add_u32 {sr(T0)}, {sr(S_RB)}, {sr(S_WV)}
        s_mulk_i32 {sr(T0)}, 20480
        s_add_u32 {sr(T0)}, {sr(T0)}, {sr(T3)}
        v_mul_u32_u24 v221, 1280, v221
        v_lshl_add_u32 v221, v222, 4, v221
        v_add_u32 {vr(V_X0)}, {sr(T0)}, v221
        v_xor_b32 {vr(V_X1)}, 64, {vr(V_X0)}
        v_add_u32 {vr(V_X1)}, 10240, {vr(V_X1)}
        s_and_b32 {sr(T0)}, {sr(S_WV)}, 1
        s_lshl_b32 {sr(T0)}, {sr(T0)}, 3
        v_lshl_or_b32 v229, {vr(V_G4)}, 1, {sr(T0)}
        v_xor_b32 v229, v229, {vr(V_L15)}
        s_mul_i32 {sr(T0)}, {sr(S_WV)}, {8 * 3840}
        s_lshl_b32 {sr(T1)}, {sr(S_CG)}, 8
        s_add_u32 {sr(T0)}, {sr(T0)}, {sr(T1)}
        s_add_u32 {sr(T0)}, {sr(T0)}, {sr(T3)}
        v_mul_u32_u24 v222, 3840, {vr(V_G4)}
        v_lshl_add_u32 v222, v229, 4, v222
        v_add_u32 {vr(V_W)}, {sr(T0)}, v222
        s_mov_b32 {sr(R_X + 2)}, {2048 * 1280}
        s_mov_b32 {sr(R_X + 3)}, 0x20000
        s_mov_b32 {sr(R_WQ + 2)}, {640 * 3840}
        s_mov_b32 {sr(R_WQ + 3)}, 0x20000
        """)
        self.touch_addr()
        e.i(f"""
        s_waitcnt lgkmcnt(0)
        s_mov_b64 {sr(R_X, 2)}, {sr(P_X, 2)}
        s_mov_b64 {sr(R_WQ, 2)}, {sr(P_WQ, 2)}
        """)
        if self.c.dev:
            e.i("s_mov_b32 s0, vcc_lo")
        self.stamp("karg")
        if self.c.tfirst:
            self.touch()
            if self.c.s_w1t == -2:
                e.i(srd(R_W1, P_W1, 640 * 3456) + srd(R_JOB, P_WO, 640 * 1280))
                self.touch_w1()
            e.i("s_barrier")
        for s in range(self.c.depth):
            for txt, tag in self.dma_stage(s):
                e.vmem(txt, tag)
            if s == 0:
                e.i("s_barrier")
                self.stamp("iss0")
                if not self.c.tfirst:
                    self.touch()
                e.i(f"""
                s_and_b32 {sr(S_RQ)}, {sr(S_WV)}, 3
                s_lshr_b32 {sr(S_CH)}, {sr(S_WV)}, 2
                s_lshl_b32 {sr(T0)}, {sr(S_RQ)}, 12
                v_lshrrev_b32 v221, 1, {vr(V_L15)}
                v_xor_b32 v221, v221, {vr(V_G4)}
                v_lshl_add_u32 v221, v221, 4, {sr(T0)}
                v_lshl_add_u32 {vr(V_XR)}, {vr(V_L15)}, 7, v221
                v_xor_b32 {vr(V_XR + 1)}, 64, {vr(V_XR)}
                v_lshrrev_b32 v222, 2, {vr(V_L15)}
                v_lshl_add_u32 v221, {vr(V_G4)}, 3, v222
                v_lshlrev_b32 v221, 8, v221
                v_xor_b32 v223, {sr(S_CH)}, {vr(V_G4)}
                v_and_b32 v223, 1, v223
                v_lshl_add_u32 v222, v223, 2, v222
                v_lshlrev_b32 v222, 1, v222
                v_and_b32 v223, 3, {vr(V_L15)}
                v_lshrrev_b32 v225, 1, v223
                v_xor_b32 v224, v225, v222
                v_lshl_add_u32 v224, v224, 4, v221
                v_and_b32 v226, 1, v223
                v_lshl_add_u32 {vr(V_WR2)}, v226, 3, v224
                s_mul_i32 {sr(S_SEC)}, {sr(S_CG)}, 52
                s_lshr_b32 {sr(S_SEC)}, {sr(S_SEC)}, 8
                s_cmp_eq_u32 {sr(S_SEC)}, 3
                s_cbranch_scc1 L_p1z
                """)
                self.snap_z = e.snapshot()

    def deferred(self):
        e = self.e
        q = [self.ii(srd(R_WS, P_WS, WS_SIZE) + srd(R_DBG, P_DBG, 256)),
             self.clear_flags,
             self.ii(srd(R_W1, P_W1, 640 * 3456) + srd(R_B1, P_B1, 3456)),
             self.ii(srd(R_B2, P_B2, 1280) + srd(R_GW, P_GW, 1280) + srd(R_JOB, P_WO, 640 * 1280) + srd(R_OUT, P_OUT, 2048 * 1280))]
        q += self.each(f"""
        v_mul_u32_u24 v231, 3456, {vr(V_G4)}
        v_lshl_add_u32 v231, v229, 4, v231
        s_lshl_b32 {sr(T0)}, {sr(S_CG)}, 8
        s_mul_i32 {sr(T1)}, {sr(S_WV)}, {8 * 3456}
        s_add_u32 {sr(T0)}, {sr(T0)}, {sr(T1)}
        v_add_u32 {vr(V_W1)}, {sr(T0)}, v231
        s_lshl_b32 {sr(T0)}, {sr(S_CG)}, 4
        s_sub_u32 {sr(T0)}, 215, {sr(T0)}
        v_sub_u32 v231, {sr(T0)}, v229
        v_and_b32 v231, {OOB}, v231
        v_or_b32 {vr(V_W1)}, {vr(V_W1)}, v231
        """)
        q += [self.ii(x) for x in f"""
        s_lshr_b32 {sr(T1)}, {sr(S_J)}, 3
        s_lshl2_add_u32 {sr(S_HD)}, {sr(S_XCD)}, {sr(T1)}
        s_and_b32 {sr(T1)}, {sr(S_J)}, 3
        s_lshl2_add_u32 {sr(S_RT)}, {sr(S_XCD)}, {sr(T1)}
        s_lshr_b32 {sr(S_CT)}, {sr(S_J)}, 2
        --
        s_and_b32 {sr(T1)}, {sr(S_J)}, 7
        s_lshl3_add_u32 {sr(S_RTQ)}, {sr(T1)}, {sr(S_WV)}
        s_lshl2_add_u32 {sr(S_BLK)}, {sr(S_RB)}, {sr(S_RQ)}
        s_mul_i32 {sr(T0)}, {sr(S_SEC)}, 5
        s_sub_u32 {sr(S_GAM)}, {sr(S_CG)}, {sr(T0)}
        --
        s_mov_b32 {sr(S_VMASK)}, 0x000fffff
        s_mov_b32 {sr(S_VMASK + 1)}, 0x000fffff
        s_lshl_b32 {sr(T0)}, {sr(S_HD)}, 6
        s_add_u32 {sr(T0)}, {sr(T0)}, {sr(S_RTQ)}
        s_mulk_i32 {sr(T0)}, 1280
        s_add_u32 {sr(S_OBLK)}, {sr(T0)}, {OFF_Q}
        --
        s_mul_i32 {sr(T0)}, {sr(S_BLK)}, 14
        s_add_u32 {sr(T0)}, {sr(T0)}, {sr(S_CG)}
        s_lshl1_add_u32 {sr(T0)}, {sr(T0)}, {sr(S_CH)}
        s_lshl_b32 {sr(T0)}, {sr(T0)}, 12
        s_add_u32 {sr(S_HST)}, {sr(T0)}, {OFF_H}
        --
        s_lshl4_add_u32 {sr(T0)}, {sr(S_HD)}, {sr(S_WV)}
        s_mulk_i32 {sr(T0)}, 10240
        s_add_u32 {sr(S_KVB)}, {sr(T0)}, {OFF_KV}
        s_mul_i32 {sr(S_KVL)}, {sr(S_WV)}, 5120
        """.split("--")]
        if self.c.dev:
            q.append(self.ii("s_mov_b32 s38, s0"))
            q.append(lambda: self.stamp("pro"))
        return q

    def touch_addr(self):
        self.e.i(f"""
        s_lshl3_add_u32 {sr(T0)}, {sr(S_J)}, {sr(S_WV)}
        s_and_b32 {sr(T1)}, {sr(S_XCD)}, 1
        s_lshr_b32 {sr(T2)}, {sr(S_XCD)}, 1
        s_lshl2_add_u32 {sr(T3)}, {sr(T1)}, {sr(T2)}
        s_lshl_b32 {sr(T3)}, {sr(T3)}, 8
        s_add_u32 {sr(T3)}, {sr(T3)}, {sr(T0)}
        s_mulk_i32 {sr(T3)}, 1280
        v_lshlrev_b32 v254, 7, v0
        s_mulk_i32 {sr(T0)}, 10
        v_add_u32 v251, {sr(T0)}, v0
        v_lshrrev_b32 v252, 3, v251
        v_lshl_add_u32 v252, v252, 1, {sr(T1)}
        v_and_b32 v251, 7, v251
        v_lshlrev_b32 v251, 7, v251
        s_movk_i32 {sr(T0)}, 3840
        v_mad_u32_u24 v253, v252, {sr(T0)}, v251
        s_lshl_b32 {sr(T1)}, {sr(T2)}, 10
        """)

    def touch(self):
        e = self.e
        e.i("s_mov_b64 exec, 0x3ff")
        e.vmem(f"buffer_load_dword v250, v254, {sr(R_X, 4)}, {sr(T3)} offen", "touch")
        e.vmem(f"buffer_load_dword v253, v253, {sr(R_WQ, 4)}, {sr(T1)} offen", "touch")
        e.i("s_mov_b64 exec, -1")

    def touch_w1(self):
        e = self.e
        e.vmem(f"""
        s_lshl3_add_u32 {sr(T4)}, s2, {sr(S_WV)}
        s_mul_i32 {sr(S_SPIN)}, {sr(T4)}, {9 * 128}
        s_mov_b64 exec, 0x1ff
        buffer_load_dword v251, v254, {sr(R_W1, 4)}, {sr(S_SPIN)} offen
        """, "touch")
        e.vmem(f"""
        s_lshl_b32 {sr(S_SPIN)}, {sr(T4)}, 8
        s_add_u32 {sr(S_SPIN)}, {sr(S_SPIN)}, {256 * 1280}
        s_mov_b64 exec, 3
        buffer_load_dword v252, v254, {sr(R_JOB, 4)}, {sr(S_SPIN)} offen
        s_mov_b64 exec, -1
        """, "touch")

    def smem_touch(self):
        out = []
        for i in range(22):
            r, base = (R_W1, (i >> 1) * 1920 * 128) if i < 18 else (R_JOB, 256 * 1280 + ((i - 18) >> 1) * 1920 * 128)
            out.append(self.ii(f"s_add_u32 {sr(S_SPIN)}, {sr(S_JST)}, {base + (i & 1) * 64}\n"
                               f"s_buffer_load_dword s39, {sr(r, 4)}, {sr(S_SPIN)}"))
        return out

    def clear_flags(self):
        go, back = self.lab("init"), self.lab("initr")
        self.e.i(f"""
        s_lshl3_add_u32 {sr(T0)}, s2, {sr(S_WV)}
        s_cmp_eq_u32 {sr(T0)}, 7
        s_cbranch_scc1 {go}
        """)
        self.e.label(back)
        self.cold.append(f"""
        {go}:
        v_lshlrev_b32 v227, 7, v0
        v_mov_b32 v228, 0
        s_mov_b32 {sr(T0)}, 8192
        s_mov_b32 {sr(T1)}, 16384
        s_mov_b32 {sr(T2)}, 24576
        buffer_store_dword v228, v227, {sr(R_WS, 4)}, 0 offen sc1
        buffer_store_dword v228, v227, {sr(R_WS, 4)}, {sr(T0)} offen sc1
        buffer_store_dword v228, v227, {sr(R_WS, 4)}, {sr(T1)} offen sc1
        buffer_store_dword v228, v227, {sr(R_WS, 4)}, {sr(T2)} offen sc1
        s_branch {back}
        """)

    def reads(self, s, ksl, ntiles, buf):
        off = (s % 5) * 32768 - ((s % 5) >> 1) * 65536
        xs, ws = [], []
        if s < 10:
            ks = 2 * s + ksl
            for rt in range(2):
                xs.append((f"ds_read_b128 {vr(xf(ks, rt), 4)}, {vr(V_XR + ksl)} offset:{off + rt * 2048}", f"x{buf}{rt}"))
            wbase, wr = off + 16384, V_WR
        else:
            wbase, wr = off, V_WR
        for n in range(ntiles):
            for q in range(2):
                ws.append((f"ds_read_b64_tr_b16 {vr(V_WB[buf] + 4 * n + 2 * q, 2)}, {vr(wr + n)} "
                           f"offset:{wbase + ksl * 8192 + q * 1024}", f"w{buf}{n}"))
        if self.c.p1x & 4:
            ws = []
        if self.c.p1x & 8:
            xs = []
        return xs[:1] + ws[:2] + xs[1:] + ws[2:]

    def window(self, s):
        slot = s % 5
        if s in (0, 10) or slot in (1, 3):
            return []
        d = 65536 if slot in (2, 4) else -131072
        rs = ([V_XR, V_XR + 1] if s < 10 else []) + [V_WR + n for n in range(4)]
        return [f"v_add_u32 {vr(r)}, {d & 0xffffffff:#x}, {vr(r)}" for r in rs]

    def mfmas(self, ks, ntiles, buf, vtype, first):
        out = []
        for n in range(ntiles):
            for rt in range(2):
                w, x, d = vr(V_WB[buf] + 4 * n, 4), vr(xf(ks, rt), 4), vr(acc(n, rt), 4)
                a, b = (x, w) if vtype else (w, x)
                cin = vr(V_BIAS + 4 * n, 4) if first == "bias" else first
                out.append((f"v_mfma_f32_16x16x32_bf16 {d}, {a}, {b}, {cin or d}", [f"x{buf}{rt}", f"w{buf}{n}"]))
        return out

    def unit(self, mf, rd, rate=1, drain=False, prio=()):
        e = self.e
        rd = list(rd)
        nr, done = len(rd), 0
        for k, (m, tags) in enumerate(mf):
            if self.c.gprio and prio and k % (len(mf) // len(prio)) == 0:
                e.i(f"s_setprio {prio[k // (len(mf) // len(prio))]}")
            e.wait(lg=tags)
            e.i("s_nop 0" if self.c.p1x & 1 else m)
            want = min(nr, -(-nr * (k + 1) * self.c.rdfront // (len(mf) * 8)))
            while done < want:
                e.lds(*rd[done])
                done += 1
            for _ in range(rate):
                if self.q:
                    self.q.pop(0)()
        for r in rd[done:]:
            e.lds(*r)
        while drain and self.q:
            self.q.pop(0)()

    def vm(self, txt, tag):
        def f():
            self.e.vmem(txt, tag)
            self.issued.add(tag)
        return f

    def ii(self, txt):
        return lambda: self.e.i(txt)

    def each(self, txt):
        out, cur = [], []
        for ln in txt.strip().split("\n"):
            ln = ln.strip()
            if not ln:
                continue
            cur.append(ln)
            if not ln.startswith("s_"):
                out.append(self.ii("\n".join(cur)))
                cur = []
        if cur:
            out.append(self.ii("\n".join(cur)))
        return out

    def spaced(self, items, gap):
        out = []
        for x in items:
            out.append(x)
            out += [lambda: None] * gap
        return out

    def stage_sync(self, s, vmtags=()):
        e = self.e
        for w in self.window(s):
            e.i(w)
        self.stamp(f"pre{s}")
        e.wait(vm=[f"st{s}"] + list(vmtags), lg="all" if (self.c.depth > 3 or (s == 10 and self.c.pre2 > 13)) else None)
        e.i("s_barrier")
        self.stamp(f"b{s}")

    def pass1(self, vtype):
        e = self.e
        if vtype:
            e.i(f"v_mov_b32 {vr(V_WR)}, {vr(V_WR2)}")
        else:
            e.i(f"""
            v_xor_b32 v224, v223, v222
            v_lshl_add_u32 v224, v224, 4, v221
            v_lshl_add_u32 {vr(V_WR)}, v225, 3, v224
            """)
        for n in range(1, 4):
            e.i(f"v_xor_b32 {vr(V_WR + n)}, {n << 5 if vtype else ((n >> 1) << 6) | ((n & 1) << 3)}, {vr(V_WR)}")
        for x in self.epi1_addr(vtype):
            x()
        side = []
        sm = self.smem_touch()[self.c.smem0:] if self.c.smem else []
        prev = []
        dp = nxt = self.c.depth
        for s in range(10):
            for ksl in range(2):
                if ksl == 0:
                    self.stage_sync(s)
                    if s == dp + 1:
                        self.publish_init()
                        side = self.bias_unpack()
                    if s == self.c.s_w1t and not self.c.w1end:
                        self.touch_w1()
                    two = s == self.c.ramp
                    for _ in range(1 + two):
                        if nxt <= self.c.pre2:
                            assert nxt <= s + 3
                            for t, g in self.dma_stage(nxt):
                                self.q.append(self.vm(t, g))
                                self.q += [side.pop(0) if side else (lambda: None)]
                                self.q += [lambda: None] * (0 if two or s == 0 else self.c.dgap - 1)
                            nxt += 1
                    if s:
                        for k in range(self.c.smem):
                            if sm:
                                self.q.insert(2 + 4 * k, sm.pop(0))
                    if s == self.c.s_w1t and self.c.w1end:
                        self.q.append(self.touch_w1)
                    if s == 0 and self.c.biasq:
                        self.q = self.q[::2] + self.biasq
                self.unit(prev, self.reads(s, ksl, 4, ksl), drain=ksl == 1, prio=(3 - 2 * ksl, 2 - 2 * ksl))
                prev = self.mfmas(2 * s + ksl, 4, ksl, vtype, "0" if s == 0 and ksl == 0 else None)
        assert not side and not sm
        for n in range(4):
            e.i(f"v_xor_b32 {vr(V_WR + n)}, {n << 5}, {vr(V_WR2)}")
        self.stage_sync(10)
        for s in range(nxt, self.c.pre2 + 1):
            self.q += [self.vm(t, g) for t, g in self.dma_stage(s)]
        self.unit(prev, self.reads(10, 0, 4, 0), drain=True, prio=(3,))
        self.stamp("p1end")
        self.epi1(vtype)
        e.vmem(f"s_lshl_b32 {sr(T1)}, {sr(S_WV)}, 20\nbuffer_load_dword v2, off, {sr(R_DBG, 4)}, {sr(T1)} sc1", "dbg")
        self.stamp("e1end")

    def publish1(self, tags):
        e = self.e
        e.wait(vm=tags, lg="all")
        e.i("s_barrier")
        self.flag_store(1, True)
        e.i("s_barrier")

    def handover(self, extra=None):
        e = self.e
        p_issue, p_check = self.poll(A_P, A_P + 1, 1, 12, "p1")
        for x in self.lane_addr() + self.poll1_addr():
            x()
        for x in [p_issue, p_check] + self.q_loads() + self.kv_dma(0):
            x()
        if extra:
            extra()
        e.wait(vm="all")
        e.i("s_branch L_att")

    def job_lanes(self):
        self.e.i(f"""
        v_lshrrev_b32 v3, 5, v0
        v_bfe_u32 v4, v0, 3, 2
        v_and_b32 v5, 7, v0
        v_lshlrev_b32 v5, 4, v5
        v_bfe_u32 v6, v0, 2, 2
        v_lshlrev_b32 v6, 7, v6
        v_lshrrev_b32 v7, 4, v0
        v_lshl_add_u32 v6, v7, 10, v6
        v_and_b32 v7, 3, v0
        v_lshl_add_u32 v6, v7, 3, v6
        v_add_u32 v6, {sr(S_HB)}, v6
        """)

    def job_load(self, i):
        e = self.e
        zw, ldsb = S_EPI, S_HB
        kap, cp, base, a0, a1, a2, t = T0, T1, T2, T3, T4, S_WB, S_JST
        e.i(f"""
        s_add_u32 {sr(cp)}, {sr(zw)}, {128 * i}
        s_mul_i32 {sr(kap)}, {sr(cp)}, 6554
        s_lshr_b32 {sr(kap)}, {sr(kap)}, 16
        s_mul_i32 {sr(t)}, {sr(kap)}, 10
        s_sub_u32 {sr(cp)}, {sr(cp)}, {sr(t)}
        """)
        if i >= 4:
            e.i(f"""
            s_add_u32 {sr(t)}, {sr(kap)}, 4
            s_mul_i32 {sr(a0)}, {sr(t)}, 13108
            s_lshr_b32 {sr(a0)}, {sr(a0)}, 16
            s_mul_i32 {sr(base)}, {sr(a0)}, 160
            s_mulk_i32 {sr(a0)}, 5
            s_sub_u32 {sr(t)}, {sr(t)}, {sr(a0)}
            s_mul_i32 {sr(a0)}, {sr(t)}, 40
            s_cmp_eq_u32 {sr(t)}, 4
            s_cselect_b32 {sr(t)}, 16, {sr(a0)}
            s_cselect_b32 {sr(a0)}, 40, 4
            s_cselect_b32 {sr(a1)}, 80, 20
            s_cselect_b32 {sr(a2)}, 20, 8
            s_add_u32 {sr(base)}, {sr(base)}, {sr(t)}
            s_sub_u32 {sr(base)}, {sr(base)}, {12 * 160}
            """)
        if i <= 4:
            e.i(f"""
            s_lshl_b32 {sr(t)}, {sr(kap)}, 5
            s_cmp_ge_u32 {sr(kap)}, 56
            s_cselect_b32 {sr(base)}, {sr(base)}, {sr(t)}
            s_cselect_b32 {sr(a0)}, {sr(a0)}, 4
            s_cselect_b32 {sr(a1)}, {sr(a1)}, 8
            s_cselect_b32 {sr(a2)}, {sr(a2)}, 16
            s_cselect_b64 {sr(R_JOB, 2)}, {sr(S_MA, 2)}, {sr(S_MB, 2)}
            s_mov_b32 {sr(R_JOB + 2)}, {1728 * 1280}
            s_cselect_b32 {sr(R_JOB + 2)}, {640 * 1280}, {sr(R_JOB + 2)}
            """)
        e.i(f"""
        v_mad_u32_u24 v7, v3, {sr(a2)}, v4
        v_mul_u32_u24 v7, 1280, v7
        v_add_u32 v7, v7, v5
        s_mulk_i32 {sr(base)}, 10
        s_add_u32 {sr(base)}, {sr(base)}, {sr(cp)}
        s_lshl_b32 {sr(base)}, {sr(base)}, 7
        s_mulk_i32 {sr(a0)}, 1280
        s_mulk_i32 {sr(a1)}, 1280
        """)
        for g in range(4):
            if g == 2:
                e.i(f"s_add_u32 {sr(base)}, {sr(base)}, {sr(a1)}")
            e.i(f"s_add_u32 m0, {sr(ldsb)}, {(i % 5) * 4096 + g * 1024}")
            e.i(f"s_add_u32 {sr(t)}, {sr(base)}, {sr(a0) if g & 1 else 0}")
            e.vmem(f"buffer_load_dwordx4 v7, {sr(R_JOB, 4)}, {sr(t)} offen lds", f"job{i}")

    def job_store(self, i):
        e = self.e
        b = 64 + 16 * (i & 1) if i < 5 else V_WB[0]
        e.wait(vm=f"job{i}")
        self.stamp(f"z{i + 1}")
        for ph in range(4):
            for q in range(2):
                e.lds(f"ds_read_b64_tr_b16 {vr(b + 4 * ph + 2 * q, 2)}, v6 offset:{(i % 5) * 4096 + q * 512 + ph * 32}", "jr")
        e.i(f"""
        s_add_u32 {sr(T0)}, {sr(S_EPI)}, {128 * i}
        s_lshl_b32 {sr(T1)}, {sr(T0)}, 12
        s_add_u32 {sr(T1)}, {sr(T1)}, {OFF_WT}
        s_cmp_ge_u32 {sr(T0)}, 760
        s_cselect_b32 {sr(T1)}, {OOB}, {sr(T1)}
        """)
        e.wait(lg="all")
        if i == 5:
            e.i(f"s_mov_b32 {sr(S_HST)}, {sr(T1)}")
            return
        for ph in range(4):
            e.vmem(f"buffer_store_dwordx4 {vr(b + 4 * ph, 4)}, v50, {sr(R_WS, 4)}, {sr(T1)} offen offset:{1024 * ph} sc1", "js")

    def helper(self):
        e = self.e
        zw, ldsb = S_EPI, S_HB
        e.i(f"s_lshl3_add_u32 {sr(zw)}, {sr(S_RB)}, {sr(S_WV)}")
        if self.c.ctouch:
            e.i(f"""
            s_getpc_b64 {sr(T1, 2)}
            L_pc:
            s_and_b32 {sr(T0)}, {sr(zw)}, 15
            s_mulk_i32 {sr(T0)}, {20 * 128}
            v_lshl_add_u32 v40, v0, 7, {sr(T0)}
            v_min_u32 v40, L_pc-L_code0, v40
            v_mov_b32 v41, {sr(T2)}
            v_sub_co_u32 v40, vcc, {sr(T1)}, v40
            s_nop 1
            v_subbrev_co_u32 v41, vcc, 0, v41, vcc
            s_mov_b64 exec, 0xfffff
            """)
            e.vmem("global_load_dword v42, v[40:41], off", "touch")
            e.i("s_mov_b64 exec, -1")
        e.i(f"s_mov_b64 {sr(S_MA, 2)}, {sr(P_WO, 2)}\ns_mov_b64 {sr(S_MB, 2)}, {sr(P_W2, 2)}")
        for x in self.deferred():
            x()
        e.i(f"v_lshlrev_b32 v40, 7, v0\ns_lshl_b32 {sr(T0)}, {sr(S_WV)}, 20")
        for k, r in enumerate((R_B1, R_B2, R_GW)):
            e.vmem(f"buffer_load_dword {vr(52 + k)}, v40, {sr(r, 4)}, {sr(T0)} offen", "touch")
        e.i(f"s_mul_i32 {sr(ldsb)}, {sr(S_WV)}, 20480\nv_lshlrev_b32 v50, 4, v0")
        self.job_lanes()
        e.wait(vm="st0")
        e.i("s_barrier")
        for i in range(5):
            self.job_load(i)
        self.stamp("z0")
        for i in range(5):
            self.job_store(i)
        e.vmem(f"buffer_load_dword v2, off, {sr(R_DBG, 4)}, 0 sc1", "dbg")
        self.stamp("p1end")
        e.i(f"s_mov_b32 {sr(S_HST)}, {OOB}")
        self.publish1("all")
        self.handover()

    def gate(self):
        e = self.e
        assert self.c.pre2 <= 12
        e.i(f"""
        v_and_b32 v15, 48, v0
        s_lshl3_add_u32 {sr(S_EPI)}, {sr(S_RB)}, {sr(S_WV)}
        s_lshl_b32 {sr(S_HB)}, {sr(S_WV)}, 12
        s_add_u32 {sr(S_HB)}, {sr(S_HB)}, 98304
        """)
        self.job_lanes()
        self.publish1(["e1", "dbg"])
        for k in range(20):
            e.vmem(f"buffer_load_dwordx4 {vr(16 + 4 * k, 4)}, v15, {sr(R_GW, 4)}, 0 offen offset:{64 * k}", "gw")
        self.job_load(5)
        e.wait(vm="gw")
        for k in range(20):
            for rt in range(2):
                d = vr(8 + 4 * rt, 4)
                e.i(f"v_mfma_f32_16x16x32_bf16 {d}, {vr(16 + 4 * k, 4)}, {vr(xf(k, rt), 4)}, {'0' if k == 0 else d}")
        e.i(f"""
        s_nop 7
        s_mov_b32 exec_lo, 0xffff0000
        v_mov_b32 v8, v12
        s_mov_b32 exec_lo, -1
        v_mul_f32 v8, {f32(-math.log2(math.e))}, v8
        v_exp_f32 v8, v8
        v_lshlrev_b32 v9, 2, v0
        v_add_f32 v8, 1.0, v8
        v_rcp_f32 v8, v8
        s_lshl_b32 {sr(T0)}, {sr(S_BLK)}, 7
        s_add_u32 {sr(T0)}, {sr(T0)}, {OFF_G}
        s_cmp_eq_u32 {sr(S_CH)}, 0
        s_cselect_b32 {sr(T0)}, {sr(T0)}, {OOB}
        s_mov_b32 exec_hi, 0
        """)
        e.vmem(f"buffer_store_dword v8, v9, {sr(R_WS, 4)}, {sr(T0)} offen sc1", "gs")
        e.i("s_mov_b64 exec, -1")
        self.handover(lambda: self.job_store(5))

    def publish_init(self):
        go, back = self.lab("pub"), self.lab("pubr")
        self.e.i(f"""
        s_lshl3_add_u32 {sr(S_SPIN)}, s2, {sr(S_WV)}
        s_cmp_eq_u32 {sr(S_SPIN)}, 7
        s_cbranch_scc1 {go}
        """)
        self.e.label(back)
        self.cold.append(f"""
        {go}:
        v_mov_b32 v255, 1
        s_mov_b64 exec, 1
        buffer_store_dword v255, off, {sr(R_DBG, 4)}, 0 sc1
        s_mov_b64 exec, -1
        s_branch {back}
        """)

    def bias_loads(self):
        self.e.i(f"""
        s_lshl1_add_u32 {sr(T0)}, {sr(S_CG)}, {sr(S_CH)}
        s_lshl_b32 {sr(T0)}, {sr(T0)}, 7
        v_lshl_add_u32 v230, {vr(V_G4)}, 3, {sr(T0)}
        """)
        return [self.vm(f"buffer_load_dwordx2 {vr(V_BIAS + 4 * n + 2, 2)}, v230, {sr(R_B1, 4)}, 0 offen offset:{32 * n}", "bias")
                for n in range(4)]

    def bias_unpack(self):
        assert "bias" not in self.e.vm
        out = []
        for n in range(4):
            b = V_BIAS + 4 * n
            out += self.each(f"""
            v_lshlrev_b32 {vr(b)}, 16, {vr(b + 2)}
            v_and_b32 {vr(b + 1)}, 0xffff0000, {vr(b + 2)}
            v_lshlrev_b32 {vr(b + 2)}, 16, {vr(b + 3)}
            v_and_b32 {vr(b + 3)}, 0xffff0000, {vr(b + 3)}
            """)
        return out

    def epi1_addr(self, vtype):
        if vtype:
            txt = f"""
            s_lshl1_add_u32 {sr(T1)}, {sr(S_GAM)}, {sr(S_CH)}
            s_lshl_b32 {sr(T1)}, {sr(T1)}, 6
            s_mov_b32 {sr(T2)}, {64 * 2560 - 320}
            v_mul_u32_u24 v226, 320, {vr(V_G4)}
            s_mul_i32 {sr(T3)}, {sr(S_BLK)}, 2560
            s_add_u32 {sr(S_EPI)}, {sr(T3)}, {OFF_KV + 1280}
            """
            for n in range(4):
                txt += f"""
                v_add3_u32 v224, {vr(V_L15)}, {sr(T1)}, {16 * n}
                v_mul_u32_u24 v225, 3277, v224
                v_lshrrev_b32 v225, 16, v225
                v_lshl_add_u32 v224, v224, 4, v226
                v_mad_u32_u24 {vr(V_ST + n)}, v225, {sr(T2)}, v224
                """
            return self.each(txt)
        q = [self.ii(x) for x in f"""
        s_lshl1_add_u32 {sr(T1)}, {sr(S_GAM)}, {sr(S_CH)}
        s_lshl_b32 {sr(T1)}, {sr(T1)}, 3
        s_lshl_b32 {sr(T3)}, 1280, {sr(S_SEC)}
        s_lshl_b32 {sr(T2)}, {sr(T3)}, 6
        s_mul_i32 {sr(T3)}, {sr(T3)}, {sr(S_BLK)}
        --
        s_cmp_eq_u32 {sr(S_SEC)}, 0
        s_mov_b32 {sr(T4)}, {OFF_KV}
        s_cselect_b32 {sr(T4)}, {OFF_Q}, {sr(T4)}
        s_cselect_b32 {sr(S_SCALE)}, {f32(math.log2(math.e) / math.sqrt(20.0))}, 1.0
        s_cselect_b32 {sr(S_WB)}, 0xfffe0000, -1
        s_cselect_b32 {sr(S_HB)}, 0x10000, 0
        s_add_u32 {sr(S_EPI)}, {sr(T3)}, {sr(T4)}
        """.split("--")]
        q += self.each(f"v_lshrrev_b32 v227, 1, {vr(V_G4)}")
        for p in range(2):
            mask, a, b = (S_MA, S_MB)[p], V_ST + 2 * p, V_ST + 2 * p + 1
            q += self.each(f"""
            v_add3_u32 v224, {vr(V_G4)}, {sr(T1)}, {4 * p}
            v_mul_u32_u24 v225, 410, v224
            v_lshrrev_b32 v225, 10, v225
            v_mad_u32_u24 v226, v225, 5, 1
            v_lshrrev_b32 v226, 1, v226
            v_sub_u32 v226, v224, v226
            v_cmp_eq_u32 {sr(mask, 2)}, 2, v226
            v_lshlrev_b32 v226, 9, v226
            v_lshl_add_u32 v226, {vr(V_L15)}, 4, v226
            v_mad_u32_u24 {vr(a)}, v225, {sr(T2)}, v226
            v_add_u32 {vr(b)}, 256, {vr(a)}
            v_xor_b32 v228, 1, v227
            """)
            q.append(self.ii(f"""
            s_mov_b64 exec, {sr(mask, 2)}
            v_mad_u32_u24 {vr(b)}, v228, {sr(T2)}, {vr(a)}
            v_mad_u32_u24 {vr(a)}, v227, {sr(T2)}, {vr(a)}
            s_mov_b64 exec, -1
            """))
        return q

    def epi1(self, vtype):
        e = self.e
        for p in range(2):
            qa, qb = V_WB[1] + 8 * p, V_WB[1] + 8 * p + 4
            if vtype:
                for n, dst in ((2 * p, qa), (2 * p + 1, qb)):
                    for rt in range(2):
                        for h in range(2):
                            a = acc(n, rt) + 2 * h
                            e.i(f"v_cvt_pk_bf16_f32 {vr(dst + 2 * rt + h)}, {vr(a)}, {vr(a + 1)}")
            else:
                for k in range(0, 16, 2):
                    r = acc(2 * p, 0) + k
                    e.i(f"v_pk_mul_f32 {vr(r, 2)}, {vr(r, 2)}, {sr(S_SCALE - 1, 2)} op_sel:[0,1] op_sel_hi:[1,1]")
                for op, sg in (("v_add_u32", S_HB), ("v_and_b32", S_WB)):
                    for k in range(0, 16, 4):
                        r = acc(2 * p, 0) + k
                        e.i(f"{op} {vr(r)}, {sr(sg)}, {vr(r)}")
                for rt, dst in ((0, qa), (1, qb)):
                    for ab in range(2):
                        for h in range(2):
                            a = acc(2 * p + ab, rt) + 2 * h
                            e.i(f"v_cvt_pk_bf16_f32 {vr(dst + 2 * ab + h)}, {vr(a)}, {vr(a + 1)}")
                e.i(f"""
                s_mov_b64 exec, {sr((S_MA, S_MB)[p], 2)}
                v_swap_b32 {vr(qa + 2)}, {vr(qb)}
                v_swap_b32 {vr(qa + 3)}, {vr(qb + 1)}
                s_mov_b64 exec, -1
                """)
            if p == 0:
                self.stamp("e1a")
            if self.c.p1x & 16:
                e.i(f"s_mov_b32 {sr(S_EPI)}, {OOB}")
            for k, q in enumerate((qa, qb)):
                e.vmem(f"buffer_store_dwordx4 {vr(q, 4)}, {vr(V_ST + 2 * p + k)}, {sr(R_WS, 4)}, {sr(S_EPI)} offen sc1", "e1")

    def lane_addr(self):
        return self.each(f"v_lshlrev_b32 {vr(A_L16)}, 4, v0")

    def flag_store(self, val, check_init):
        e = self.e
        skip = self.lab("nofl")
        e.i(f"s_cmp_lg_u32 {sr(S_WV)}, 0\ns_cbranch_scc1 {skip}")
        if check_init:
            ok, lp = self.lab("iok"), self.lab("ilp")
            e.i(f"v_readfirstlane_b32 {sr(T1)}, v2\ns_cmp_eq_u32 {sr(T1)}, 0\ns_cbranch_scc1 {lp}")
            e.label(ok)
            self.cold.append(f"""
            {lp}:
            s_mov_b32 {sr(S_SPIN)}, {SPIN}
            {lp}_a:
            buffer_load_dword v2, off, {sr(R_DBG, 4)}, 0 sc1
            s_waitcnt vmcnt(0)
            v_readfirstlane_b32 {sr(T1)}, v2
            s_cmp_lg_u32 {sr(T1)}, 0
            s_cbranch_scc1 {ok}
            s_sleep 8
            s_sub_u32 {sr(S_SPIN)}, {sr(S_SPIN)}, 1
            s_cmp_lg_u32 {sr(S_SPIN)}, 0
            s_cbranch_scc1 {lp}_a
            s_branch {ok}
            """)
        e.i(f"""
        s_lshl_b32 {sr(T1)}, {sr(S_CG)}, 4
        s_add_u32 {sr(T1)}, {sr(T1)}, {sr(S_RB)}
        s_lshl_b32 {sr(T1)}, {sr(T1)}, 7
        v_mov_b32 v1, {val}
        s_mov_b64 exec, 1
        buffer_store_dword v1, off, {sr(R_WS, 4)}, {sr(T1)} sc1
        s_mov_b64 exec, -1
        """)
        e.label(skip)

    def poll(self, vaddr, vdat, val, nlanes, tag):
        e = self.e
        mask = (1 << nlanes) - 1
        setx = "s_mov_b32 exec_hi, 0" if nlanes == 32 else f"s_mov_b64 exec, {mask:#x}"

        def issue():
            e.i(setx)
            e.vmem(f"buffer_load_dword {vr(vdat)}, {vr(vaddr)}, {sr(R_WS, 4)}, 0 offen sc1", tag)
            e.i("s_mov_b64 exec, -1")

        def check():
            ok, lp = self.lab("pok"), self.lab("plp")
            e.wait(vm=tag)
            e.i(f"""
            v_cmp_gt_u32 vcc, {val}, {vr(vdat)}
            s_and_b32 {sr(T1)}, vcc_lo, {mask:#x}
            s_cbranch_scc1 {lp}
            """)
            e.label(ok)
            self.cold.append(f"""
            {lp}:
            s_mov_b32 {sr(S_SPIN)}, {SPIN}
            {lp}_a:
            {setx}
            buffer_load_dword {vr(vdat)}, {vr(vaddr)}, {sr(R_WS, 4)}, 0 offen sc1
            s_mov_b64 exec, -1
            s_waitcnt vmcnt(0)
            v_cmp_gt_u32 vcc, {val}, {vr(vdat)}
            s_and_b32 {sr(T1)}, vcc_lo, {mask:#x}
            s_cbranch_scc0 {ok}
            s_sub_u32 {sr(S_SPIN)}, {sr(S_SPIN)}, 1
            s_cmp_lg_u32 {sr(S_SPIN)}, 0
            s_cbranch_scc1 {lp}_a
            s_branch {ok}
            """)
        return issue, check

    def poll1_addr(self):
        return self.each(f"""
        s_mul_i32 {sr(T4)}, {sr(S_HD)}, 20
        v_and_b32 v28, 1, v0
        v_mad_u32_u24 v28, v28, 19, {sr(T4)}
        v_lshrrev_b32 v28, 7, v28
        v_lshrrev_b32 v24, 2, v0
        v_mad_u32_u24 v28, v24, 5, v28
        v_bfe_u32 v25, v0, 1, 1
        v_lshl_add_u32 v25, v25, 3, {sr(S_WV)}
        """) + [self.ii(f"""
        s_lshr_b32 {sr(T4)}, {sr(S_RTQ)}, 2
        s_mov_b64 exec, 15
        v_mov_b32 v25, {sr(T4)}
        s_mov_b64 exec, -1
        """)] + self.each(f"""
        v_lshl_add_u32 v28, v28, 4, v25
        v_lshlrev_b32 {vr(A_P)}, 7, v28
        v_bfe_u32 v24, v0, 4, 1
        v_lshlrev_b32 v24, 3, v24
        v_and_b32 v25, 15, v0
        v_lshl_add_u32 {vr(A_QA)}, v25, 4, v24
        """)

    def kv_dma(self, rnd):
        out = []
        for i in range(5):
            src = (rnd >> 1) * 81920 + (rnd & 1) * 5120 + i * 1024
            out.append(self.vm(f"s_add_u32 m0, {sr(S_KVL)}, {rnd * 40960 + i * 1024}\n"
                               f"s_add_u32 {sr(T2)}, {sr(S_KVB)}, {src}\n"
                               f"buffer_load_dwordx4 {vr(A_L16)}, {sr(R_WS, 4)}, {sr(T2)} offen sc1 lds", f"kv{rnd}"))
        return out

    def att_setup(self):
        out = self.each(f"""
        v_lshrrev_b32 v23, 5, v0
        v_bfe_u32 v24, v0, 3, 2
        v_and_b32 v25, 3, v0
        v_lshl_add_u32 v24, v24, 2, v25
        v_bfe_u32 v25, v0, 2, 1
        v_lshlrev_b32 v26, 9, v23
        v_lshl_add_u32 v26, v25, 8, v26
        v_lshl_add_u32 {vr(A_AK)}, v24, 4, v26
        v_mul_u32_u24 v26, 2560, v23
        v_lshl_add_u32 v26, v24, 4, v26
        v_lshl_add_u32 {vr(A_AKR)}, v25, 3, v26
        v_mul_u32_u24 v26, 192, v23
        v_sub_u32 {vr(A_AV)}, {vr(A_L16)}, v26
        """)
        return out

    def att_consts(self):
        e = self.e
        e.i(f"""
        v_mov_b32 {vr(A_IDX)}, 0xdddddddd
        v_mov_b32 {vr(A_VLO)}, 0
        s_mov_b32 exec_lo, 0x11000000
        s_mov_b32 exec_hi, 0x11000000
        v_mov_b32 {vr(A_VLO)}, 0x3f803f80
        s_mov_b64 exec, -1
        """)
        e.i(f"v_mov_b32 {vr(A_VLO + 1)}, {vr(A_VLO)}\nv_mov_b64 {vr(A_KR, 2)}, 0")
        for r in range(A_VLO + 2, A_VLO + 12, 2):
            e.i(f"v_mov_b64 {vr(r, 2)}, {vr(A_VLO, 2)}")
        e.i(f"v_mfma_f32_32x32x8_bf16 {vr(A_O, 16)}, {vr(A_KR, 2)}, {vr(A_KR, 2)}, 0")

    def q_loads(self):
        return [self.vm(f"buffer_load_dwordx4 {vr(A_QM, 4)}, {vr(A_L16)}, {sr(R_WS, 4)}, {sr(S_OBLK)} offen sc1", "q"),
                self.vm(f"buffer_load_dwordx2 {vr(A_QLO, 2)}, {vr(A_QA)}, {sr(R_WS, 4)}, {sr(S_OBLK)} offen offset:1024 sc1", "q")]

    def pass2(self):
        e, c = self.e, self.c
        assert c.u_chk1 >= 12
        p_issue, p_check = self.poll(A_P, A_P + 1, 1, 12, "p1")
        prev = self.mfmas(0, 4, 0, False, "bias")
        late = [self.vm(t, g) for s in range(c.pre2 + 1, 15) for t, g in self.dma_stage(s)]

        def chk():
            self.stamp("u18")
            p_check()
            self.stamp("chk1")
        for u in range(1, 21):
            s, ksl = 10 + (u >> 2), u & 3
            if ksl == 0 and u < 20:
                assert len(late) <= 4 * (14 - s)
                self.stage_sync(s, ["e1", "dbg"] if u == c.u_flag1 else [])
            elif u == c.u_flag1:
                e.wait(vm=["e1", "dbg"])
                e.i("s_barrier")
            if u == c.u_flag1:
                self.stamp("fl1")
                self.flag_store(1, True)
            if u == 2:
                self.q += self.spaced(self.lane_addr() + self.poll1_addr(), 1)
            if u >= c.u_late:
                for _ in range(c.nlate):
                    if late:
                        self.q += [late.pop(0), lambda: None]
            if u == c.u_poll1:
                self.q.append(p_issue)
            if u == c.u_chk1:
                self.q += [chk] + self.spaced(self.q_loads() + self.kv_dma(0), 1)
            self.unit(prev, self.reads(s, ksl, 4, u & 1) if u < 20 else [],
                      drain=u >= c.u_late - 1 and u != c.u_chk1 or u == 20, prio=(3 - ksl if u < 20 else 0,))
            if u < 20:
                prev = self.mfmas(u, 4, u & 1, False, None)
        self.stamp("p2end")
        pk = V_WB[0]
        e.i("s_nop 0")
        for p in range(2):
            for k in range(16):
                r = acc(2 * p, 0) + k
                e.i(f"v_mul_f32 {vr(r)}, {vr(r)}, abs({vr(r)})")
            for rt in range(2):
                for ab in range(2):
                    for h in range(2):
                        a = acc(2 * p + ab, rt) + 2 * h
                        e.i(f"v_cvt_pk_bf16_f32 {vr(pk + 8 * p + 4 * rt + 2 * ab + h)}, {vr(a)}, {vr(a + 1)}")
            for k in range(8):
                e.i(f"v_pk_max_i16 {vr(pk + 8 * p + k)}, {vr(pk + 8 * p + k)}, 0")
        if c.u_chk1 > 20:
            for x in [chk] + self.q_loads() + self.kv_dma(0):
                x()

    def bubble(self):
        e = self.e
        st = [self.vm(f"buffer_store_dwordx4 {vr(V_WB[0] + 4 * k, 4)}, {vr(A_L16)}, {sr(R_WS, 4)}, {sr(S_HST)} offen "
                      f"offset:{1024 * k} sc1", "hs") for k in range(4)]
        if self.c.u_chk1 > 18 and self.c.nst0:
            e.i("s_barrier")
        for x in st[:self.c.nst0] + self.att_setup():
            x()
        self.att_consts()
        return st[self.c.nst0:]

    def lds_off(self, reg, off):
        base = self.win[reg]
        while off - base > 65535 - 2560:
            base += 61440
            self.e.i(f"v_add_u32 {vr(reg)}, 61440, {vr(reg)}")
        self.win[reg] = base
        return off - base

    def rd_k(self, t):
        if t < 64:
            o = self.lds_off(A_AK, t * 2560)
            self.e.lds(f"ds_read_b128 {vr(A_KM, 4)}, {vr(A_AK)} offset:{o}", f"k{t}")

    def rd_kr(self, t):
        if t < 64:
            o = self.lds_off(A_AKR, t * 2560)
            self.e.lds(f"ds_read_b64 {vr(A_KR, 2)}, {vr(A_AKR)} offset:{o + 1024}", f"r{t}")

    def rd_v(self, t):
        if t < 64:
            e = self.e
            o = self.lds_off(A_AV, t * 2560)
            e.i(f"s_mov_b64 exec, {sr(S_VMASK, 2)}")
            e.lds(f"ds_read_b128 {vr(A_VLO, 4)}, {vr(A_AV)} offset:{o + 1280}", f"vl{t}")
            e.lds(f"ds_read_b128 {vr(A_VHI[t & 1], 4)}, {vr(A_AV)} offset:{o + 1920}", f"vh{t}")
            e.i("s_mov_b64 exec, -1")

    def qk1(self, t):
        self.e.wait(lg=f"k{t}")
        self.e.i(f"v_mfma_f32_32x32x16_bf16 {vr(A_S[t & 1], 16)}, {vr(A_KM, 4)}, {vr(A_QM, 4)}, 0")
        self.rd_k(t + 1)

    def qk2(self, t):
        self.e.wait(lg=f"r{t & ~1}")
        s = vr(A_S[t & 1], 16)
        self.e.i(f"v_mfma_f32_32x32x8_bf16 {s}, {vr(A_KR, 2)}, {vr((A_QLO, A_QHI)[t & 1], 2)}, {s}")
        if t & 1:
            self.rd_kr(t + 1)

    def pvlo(self, t):
        self.e.wait(lg=f"vl{t}")
        self.e.i(f"v_smfmac_f32_32x32x32_bf16 {vr(A_O, 16)}, {vr(A_VLO, 4)}, {vr(A_S[t & 1], 8)}, {vr(A_IDX)}")
        self.rd_v(t + 1)

    def pvhi(self, t):
        self.e.wait(lg=f"vh{t}")
        self.e.i(f"v_smfmac_f32_32x32x32_bf16 {vr(A_O, 16)}, {vr(A_VHI[t & 1], 4)}, {vr(A_S[t & 1] + 8, 8)}, {vr(A_IDX)}")

    def ring_a(self, i, r):
        return A_RING + (i & 1) * 36 + 4 * r

    def ring_w(self, i, n):
        if i == 9:
            return self.ring_a(1, n) if n < 4 else 12
        return A_RING + (i & 1) * 36 + 16 + 4 * n

    def ld_w(self, i, n):
        if i < 7:
            pre = f"s_add_u32 {sr(T2)}, {sr(S_WB)}, {i * 40960 + n * 1024}"
        elif i < 9:
            pre = f"s_add_u32 {sr(T2)}, {sr(S_EPI)}, {(i - 7) * 40960 + n * 1024}"
        else:
            pre = f"s_add_u32 {sr(T2)}, {sr(S_WOB)}, {n * 1024}"
        return self.vm(f"{pre}\nbuffer_load_dwordx4 {vr(self.ring_w(i, n), 4)}, {vr(A_L16)}, {sr(R_WS, 4)}, {sr(T2)} offen sc1",
                       f"w{i}_{n}")

    def ld_a(self, i, r):
        slot = 2 * i + (r & 1)
        return self.vm(f"s_add_u32 {sr(T2)}, {sr((S_HB, S_HB2)[r >> 1])}, {slot * 1024}\n"
                       f"buffer_load_dwordx4 {vr(self.ring_a(i, r), 4)}, {vr(A_L16)}, {sr(R_WS, 4)}, {sr(T2)} offen sc1",
                       f"a{i}_{r}")

    def facc(self, r, n):
        return A_FACC + (r * 5 + n) * 4

    def ffn_prep(self, fs):
        e = self.e
        tags = []
        for i, n, r in fs:
            tags += [f"w{i}_{n}", f"a{i}_{r}"]
        pend = {t for t in tags if t not in self.issued}
        while pend:
            self.pop(1)
            pend = {t for t in tags if t not in self.issued}
        e.wait(vm=tags)

    def ffn_mfma(self, i, n, r):
        d = vr(self.facc(r, n), 4)
        self.e.i(f"v_mfma_f32_16x16x32_bf16 {d}, {vr(self.ring_w(i, n), 4)}, {vr(self.ring_a(i, r), 4)}, {'0' if i == 0 else d}")
        if r == 3:
            self.q.append(self.ld_w(i + 2, n))
        if n == 4:
            if i + 2 < 7:
                self.q.append(self.ld_a(i + 2, r))
            elif i == 5:
                self.q.append(self.ld_w(9, r))
                if r == 3:
                    self.q.append(self.ld_w(9, 4))

    def attention(self):
        e, c = self.e, self.c
        assert c.t_flag2 <= 15 and c.t_chk2 <= 31
        self.win = {A_AK: 0, A_AKR: 0, A_AV: 0}
        p_issue, p_check = self.poll(A_P, A_P + 1, 2, 32, "p2")
        left = self.bubble()
        e.i(f"""
        s_lshl_b32 {sr(T1)}, {sr(S_WV)}, 12
        v_lshl_add_u32 {vr(A_P)}, v0, 7, {sr(T1)}
        v_lshlrev_b32 {vr(A_T)}, 2, v0
        v_and_b32 {vr(A_T + 1)}, 60, {vr(A_T)}
        v_and_b32 {vr(A_T)}, 124, {vr(A_T)}
        s_mul_i32 {sr(T2)}, {sr(S_CT)}, 5120
        s_add_u32 {sr(T2)}, {sr(T2)}, {OFF_WT}
        s_mul_i32 {sr(T1)}, {sr(S_WV)}, {7 * 40960}
        s_add_u32 {sr(S_WB)}, {sr(T1)}, {sr(T2)}
        s_mul_i32 {sr(T1)}, {sr(S_RQ)}, {5 * 40960}
        s_add_u32 {sr(T1)}, {sr(T1)}, {sr(T2)}
        s_add_u32 {sr(S_WOB)}, {sr(T1)}, {60 * 40960}
        s_mul_i32 {sr(T2)}, {sr(S_CH)}, {2 * 40960}
        s_add_u32 {sr(T1)}, {sr(T1)}, {sr(T2)}
        s_add_u32 {sr(S_EPI)}, {sr(T1)}, {56 * 40960}
        s_lshl_b32 {sr(T1)}, {sr(S_RT)}, 1
        s_add_u32 {sr(S_BLK)}, {sr(T1)}, {sr(S_CH)}
        s_mul_i32 {sr(T2)}, {sr(S_WV)}, 14336
        s_add_u32 {sr(T2)}, {sr(T2)}, {OFF_H}
        s_mul_i32 {sr(T1)}, {sr(S_BLK)}, {112 * 1024}
        s_add_u32 {sr(S_HB)}, {sr(T1)}, {sr(T2)}
        s_xor_b32 {sr(T1)}, {sr(S_BLK)}, 1
        s_mul_i32 {sr(T1)}, {sr(T1)}, {112 * 1024}
        s_add_u32 {sr(S_HB2)}, {sr(T1)}, {sr(T2)}
        """)
        e.wait(vm=["kv0", "q"])
        e.i(f"""
        v_mov_b32 {vr(A_QHI)}, {vr(A_QLO)}
        v_mov_b32 {vr(A_QHI + 1)}, {vr(A_QLO + 1)}
        s_mov_b32 exec_hi, 0
        v_mov_b32 {vr(A_QHI)}, 0
        v_mov_b32 {vr(A_QHI + 1)}, 0
        s_not_b64 exec, exec
        v_mov_b32 {vr(A_QLO)}, 0
        v_mov_b32 {vr(A_QLO + 1)}, 0
        s_mov_b64 exec, -1
        s_barrier
        """)
        self.stamp("att0")
        self.rd_k(0)
        self.rd_kr(0)
        self.q += self.spaced(left, c.stgap)
        ffn = [(i, n, r) for i in range(7) for n in range(5) for r in range(4)]
        nt = 64 - c.ffn_start
        done = 0
        for t in range(65):
            nf = 0
            if c.ffn_start <= t < 64:
                nf = (c.ffn_emb * (t - c.ffn_start + 1) + nt - 1) // nt - done
            fs = ffn[done:done + nf]
            done += nf
            if t == c.t_kv:
                self.q += self.kv_dma(1)
            if t == c.t_flag2:
                self.stamp("fl2a")
                assert not self.q
                e.wait(vm=["hs", "kv1"])
                e.i("s_barrier")
                self.stamp("fl2b")
                self.flag_store(2, False)
                self.q += self.kv_dma(2) + self.kv_dma(3)
            if t == c.t_poll2:
                assert not self.q
                p_issue()
            if t == c.t_chk2:
                self.stamp("chk2a")
                p_check()
                e.i("s_barrier")
                self.stamp("chk2")
                self.after_flags2()
            self.stamp(f"t{t}")
            self.tile(t, fs)
        e.i("s_setprio 0")
        self.stamp("attend")
        self.ffn_left = ffn[done:]

    def after_flags2(self):
        for i in range(2):
            self.q += [self.ld_w(i, 0)] + [self.ld_a(i, r) for r in range(4)] + [self.ld_w(i, n) for n in range(1, 5)]
        self.q.append(self.vm(f"""
        s_lshl_b32 {sr(T2)}, {sr(S_RTQ)}, 7
        s_add_u32 {sr(T2)}, {sr(T2)}, {OFF_G}
        buffer_load_dword {vr(A_GA)}, {vr(A_T)}, {sr(R_WS, 4)}, {sr(T2)} offen sc1
        """, "g"))
        for r in range(4):
            self.q.append(self.vm(f"""
            s_xor_b32 {sr(T2)}, {sr(S_BLK)}, {r >> 1}
            s_lshl_b32 {sr(T2)}, {sr(T2)}, 7
            s_add_u32 {sr(T2)}, {sr(T2)}, {OFF_G + 64 * (r & 1)}
            buffer_load_dword {vr(A_GF + r)}, {vr(A_T + 1)}, {sr(R_WS, 4)}, {sr(T2)} offen sc1
            """, "g"))

    def pop(self, n):
        for _ in range(n):
            if self.q:
                self.q.pop(0)()

    def tile(self, t, fs):
        e, c = self.e, self.c
        e.i("s_setprio 2")
        if t < 64:
            self.qk1(t)
            self.pop(1)
        if t > 0:
            if t == 64:
                e.i("s_nop 0")
            self.pvlo(t - 1)
        else:
            self.rd_v(0)
        n0 = len(e.lines)
        if t < 64:
            self.qk2(t)
            self.pop(1)
        n1 = len(e.lines)
        if t > 0:
            self.pvhi(t - 1)
        if t == 64:
            return
        if fs:
            self.ffn_prep(fs)
            e.i("s_setprio 3")
        x = A_S[t & 1]
        for k in range(16):
            if k < len(fs):
                self.ffn_mfma(*fs[k])
            if k == len(fs):
                e.i("s_setprio 0")
            if k == (c.qpos if fs else 8):
                e.i("s_setprio 1")
            if k == 0:
                kk = max(i for i in range(n0, n1) if "32x32x8" in e.lines[i])
                pad = 12 - (len(e.lines) - 1 - kk)
                if pad > 0:
                    e.lines.insert(n1, f"s_nop {pad - 1}")
            e.i(f"v_exp_f32 {vr(x + k)}, {vr(x + k)}")

    def fallback(self, back):
        x, m = A_S[0], A_S[1]
        L = []
        A = L.append
        A(f"""
        L_fb:
        v_add_u32 {vr(A_AK)}, {(-self.win[A_AK]) & 0xffffffff:#x}, {vr(A_AK)}
        v_add_u32 {vr(A_AKR)}, {(-self.win[A_AKR]) & 0xffffffff:#x}, {vr(A_AKR)}
        v_add_u32 {vr(A_AV)}, {(-self.win[A_AV]) & 0xffffffff:#x}, {vr(A_AV)}
        v_mov_b32 {vr(m)}, 0xff800000
        """)
        for ps in range(2):
            A(f"s_mov_b32 {sr(T1)}, 0\nL_fb{ps}:")
            for par in range(2):
                A(f"""
                ds_read_b128 {vr(A_KM, 4)}, {vr(A_AK)} offset:{par * 2560}
                ds_read_b64 {vr(A_KR, 2)}, {vr(A_AKR)} offset:1024
                """)
                if ps:
                    A(f"""
                    s_mov_b64 exec, {sr(S_VMASK, 2)}
                    ds_read_b128 {vr(A_VLO, 4)}, {vr(A_AV)} offset:{par * 2560 + 1280}
                    ds_read_b128 {vr(A_VHI[0], 4)}, {vr(A_AV)} offset:{par * 2560 + 1920}
                    s_mov_b64 exec, -1
                    """)
                A(f"""
                s_waitcnt lgkmcnt(0)
                v_mfma_f32_32x32x16_bf16 {vr(x, 16)}, {vr(A_KM, 4)}, {vr(A_QM, 4)}, 0
                v_mfma_f32_32x32x8_bf16 {vr(x, 16)}, {vr(A_KR, 2)}, {vr((A_QLO, A_QHI)[par], 2)}, {vr(x, 16)}
                s_nop 11
                """)
                if ps == 0:
                    for k in range(0, 16, 2):
                        A(f"v_max3_f32 {vr(m)}, {vr(m)}, {vr(x + k)}, {vr(x + k + 1)}")
                else:
                    for k in range(16):
                        A(f"v_sub_f32 {vr(x + k)}, {vr(x + k)}, {vr(m)}\nv_exp_f32 {vr(x + k)}, {vr(x + k)}")
                    A(f"""
                    s_nop 1
                    v_smfmac_f32_32x32x32_bf16 {vr(A_O, 16)}, {vr(A_VLO, 4)}, {vr(x, 8)}, {vr(A_IDX)}
                    v_smfmac_f32_32x32x32_bf16 {vr(A_O, 16)}, {vr(A_VHI[0], 4)}, {vr(x + 8, 8)}, {vr(A_IDX)}
                    s_nop 7
                    """)
            A(f"""
            v_add_u32 {vr(A_AK)}, 5120, {vr(A_AK)}
            v_add_u32 {vr(A_AKR)}, 5120, {vr(A_AKR)}
            """)
            if ps:
                A(f"v_add_u32 {vr(A_AV)}, 5120, {vr(A_AV)}")
            A(f"""
            s_add_u32 {sr(T1)}, {sr(T1)}, 1
            s_cmp_lt_u32 {sr(T1)}, 32
            s_cbranch_scc1 L_fb{ps}
            """)
            if ps == 0:
                A(f"""
                v_mov_b32 {vr(m + 1)}, {vr(m)}
                v_add_u32 {vr(A_AK)}, {(-163840) & 0xffffffff:#x}, {vr(A_AK)}
                v_add_u32 {vr(A_AKR)}, {(-163840) & 0xffffffff:#x}, {vr(A_AKR)}
                v_permlane32_swap_b32 {vr(m)}, {vr(m + 1)}
                s_nop 1
                v_max_f32 {vr(m)}, {vr(m)}, {vr(m + 1)}
                """)
                for r in range(A_O, A_O + 16):
                    A(f"v_mov_b32 {vr(r)}, 0")
        A(f"s_nop 7\ns_branch {back}")
        self.cold.append("\n".join(L))

    def tail(self):
        e, c = self.e, self.c
        o, t0 = A_O, A_P
        back = "L_fb_back"
        e.i(f"""
        v_lshrrev_b32 v1, 4, v0
        v_lshlrev_b32 v2, 3, v1
        v_and_b32 v3, 15, v0
        """)
        ob, ob2, orem = S_JST, S_HST, S_KVB
        hs = 64 * 1280
        e.i(f"""
        v_lshrrev_b32 v4, 1, v1
        v_mul_u32_u24 v4, {hs}, v4
        v_and_b32 v5, 1, v1
        v_lshl_add_u32 v4, v5, 9, v4
        v_lshl_add_u32 v4, v3, 4, v4
        v_mul_u32_u24 v5, {2 * hs}, v1
        v_lshl_add_u32 v5, v3, 3, v5
        s_mul_i32 {sr(T1)}, {sr(S_RQ)}, {8 * hs}
        s_add_u32 {sr(T1)}, {sr(T1)}, {OFF_Q}
        s_mul_i32 {sr(T2)}, {sr(S_BLK)}, 1280
        s_add_u32 {sr(orem)}, {sr(T1)}, {sr(T2)}
        s_mul_i32 {sr(T3)}, {sr(S_CH)}, {4 * hs}
        s_add_u32 {sr(ob)}, {sr(orem)}, {sr(T3)}
        s_xor_b32 {sr(T2)}, {sr(S_BLK)}, 1
        s_mulk_i32 {sr(T2)}, 1280
        s_add_u32 {sr(T1)}, {sr(T1)}, {sr(T3)}
        s_add_u32 {sr(ob2)}, {sr(T1)}, {sr(T2)}
        s_mul_i32 {sr(T1)}, {sr(S_WV)}, 20480
        s_mul_i32 {sr(T2)}, {sr(S_CH)}, 10240
        s_add_u32 {sr(T3)}, {sr(T1)}, {sr(T2)}
        v_add_u32 v6, {sr(T3)}, {vr(A_L16)}
        s_sub_u32 {sr(T3)}, {sr(T1)}, {sr(T2)}
        v_add_u32 v7, {sr(T3)}, {vr(A_L16)}
        v_add_u32 v102, {2 * hs}, v4
        v_add_u32 v103, {hs}, v5
        s_mov_b32 {sr(S_SPIN)}, {SPIN}
        """)
        oreg = {7: 152, 8: 168, 9: 116}

        def oloads(i):
            if i < 9:
                return [f"buffer_load_dwordx4 {vr(oreg[i] + 4 * r, 4)}, {vr((4, 102)[i - 7])}, {sr(R_WS, 4)}, "
                        f"{sr((ob, ob2)[r >> 1])} offen offset:{256 * (r & 1)} sc1" for r in range(4)]
            return [f"buffer_load_dwordx2 {vr(oreg[i] + 4 * r + 2 * a, 2)}, {vr((5, 103)[a])}, {sr(R_WS, 4)}, {sr(orem)} offen "
                    f"offset:{1024 + 128 * r} sc1" for r in range(2) for a in range(2)]

        def ocheck(i):
            n = 16 if i < 9 else 8
            L = [f"v_and_b32 v1, 1, {vr(oreg[i])}"]
            L += [f"v_and_b32 v1, v1, {vr(oreg[i] + k)}" for k in range(2, n, 2)]
            L.append("v_cmp_eq_u32 vcc, 0, v1")
            return "\n".join(L)

        def oissue():
            self.stamp("odrain")
            for i in (7, 9, 8):
                for x in oloads(i):
                    e.vmem(x, f"o{i}")
        e.i(f"v_mov_b32 {vr(t0)}, {vr(o + 12)}")
        for k in range(12):
            e.i(f"v_fma_f32 {vr(t0)}, {vr(o + k)}, 0, {vr(t0)}")
        lo, hi = (2.0 ** 40, 2.0 ** -20) if c.force_fallback else (2.0 ** -20, 2.0 ** 40)
        e.i(f"""
        v_cmp_nle_f32 vcc, {f32(lo)}, {vr(t0)}
        s_mov_b64 {sr(S_MA, 2)}, vcc
        v_cmp_nge_f32 vcc, {f32(hi)}, {vr(t0)}
        s_or_b64 vcc, vcc, {sr(S_MA, 2)}
        s_cbranch_scc1 L_fb
        """)
        e.label(back)
        self.fallback(back)
        e.wait(vm="g")
        e.i(f"""
        v_rcp_f32 {vr(t0)}, {vr(o + 12)}
        v_and_b32 {vr(t0 + 1)}, 31, v0
        v_mul_f32 {vr(t0)}, {vr(t0)}, {vr(A_GA)}
        v_lshlrev_b32 {vr(t0 + 1)}, 3, {vr(t0 + 1)}
        """)
        for k in range(12):
            e.i(f"v_mul_f32 {vr(o + k)}, {vr(o + k)}, {vr(t0)}")
        for k in range(0, 12, 4):
            e.i(f"v_and_b32 {vr(o + k)}, 0xfffe0000, {vr(o + k)}")
        for k in range(6):
            e.i(f"v_cvt_pk_bf16_f32 {vr(o + k)}, {vr(o + 2 * k)}, {vr(o + 2 * k + 1)}")
        for k in range(0, 6, 2):
            e.i(f"v_or_b32 {vr(o + k)}, 1, {vr(o + k)}")
        e.vmem(f"buffer_store_dwordx4 {vr(o, 4)}, {vr(A_L16)}, {sr(R_WS, 4)}, {sr(S_OBLK)} offen sc1", "os")
        e.i("s_mov_b32 exec_hi, 0")
        e.vmem(f"buffer_store_dwordx2 {vr(o + 4, 2)}, {vr(t0 + 1)}, {sr(R_WS, 4)}, {sr(S_OBLK)} offen offset:1024 sc1", "os")
        e.i("s_mov_b64 exec, -1")
        for f in self.ffn_left:
            self.ffn_prep([f])
            self.ffn_mfma(*f)
        while self.q:
            self.pop(1)
        if not c.odelay:
            oissue()
        so = (S_MA, S_MA + 1, S_MB)
        for k in range(3):
            e.i(f"""
            s_add_u32 {sr(T1)}, {sr(S_WV)}, {8 * k}
            s_mul_i32 {sr(T2)}, {sr(T1)}, 52
            s_lshr_b32 {sr(T2)}, {sr(T2)}, 8
            s_mul_i32 {sr(T3)}, {sr(T2)}, 5
            s_sub_u32 {sr(T1)}, {sr(T1)}, {sr(T3)}
            s_lshl_b32 {sr(T1)}, {sr(T1)}, 5
            s_mul_i32 {sr(T3)}, {sr(S_CT)}, 160
            s_add_u32 {sr(T1)}, {sr(T1)}, {sr(T3)}
            s_lshl_b32 {sr(T3)}, {sr(S_RT)}, 2
            s_add_u32 {sr(T2)}, {sr(T2)}, {sr(T3)}
            s_mul_i32 {sr(T3)}, {sr(T2)}, {16 * 1280}
            s_add_u32 {sr(so[k])}, {sr(T3)}, {sr(T1)}
            s_lshl_b32 {sr(T2)}, {sr(T2)}, 6
            s_add_u32 {sr(T2)}, {sr(T2)}, {OFF_G}
            """)
            e.vmem(f"buffer_load_dwordx2 {vr(106 + 2 * k, 2)}, v2, {sr(R_B2, 4)}, {sr(T1)} offen", "b2")
            e.vmem(f"buffer_load_dword {vr(112 + k)}, {vr(A_T + 1)}, {sr(R_WS, 4)}, {sr(T2)} offen sc1", "b2")
        for r in range(4):
            e.i(f"v_sub_f32 {vr(A_GF + r)}, 1.0, {vr(A_GF + r)}")
        e.i("s_barrier")
        for r in range(4):
            sel = r & 1
            for k in range(0, 20, 2):
                a = vr(A_FACC + 20 * r + k, 2)
                e.i(f"v_pk_mul_f32 {a}, {a}, {vr(A_GF + (r & 2), 2)} op_sel:[0,{sel}] op_sel_hi:[1,{sel}]")
        if c.odelay:
            e.wait(vm="os")
            oissue()
        pend = []
        for i in (7, 9, 8):
            e.wait(vm=f"o{i}")
            e.i(ocheck(i) + f"\ns_cbranch_vccnz L_ort{i}")
            e.label(f"L_ook{i}")
            if i == 7:
                self.stamp("oload")
            self.cold.append(f"L_ort{i}:\n" + "\n".join(x for k in (7, 9, 8)[(7, 9, 8).index(i):] for x in oloads(k)) + "\ns_waitcnt vmcnt(0)\n" + ocheck(i) + f"""
            s_sub_u32 {sr(S_SPIN)}, {sr(S_SPIN)}, 1
            s_cmp_lt_i32 {sr(S_SPIN)}, 1
            s_cbranch_scc1 L_ook{i}
            s_cbranch_vccnz L_ort{i}
            s_branch L_ook{i}
            """)
            for r in range(2 if i == 9 else 4):
                for n in range(5):
                    d = vr(self.facc(r, n), 4)
                    e.i(f"v_mfma_f32_16x16x32_bf16 {d}, {vr(self.ring_w(i, n), 4)}, {vr(oreg[i] + 4 * r, 4)}, {d}")
                    if i == 8:
                        pend.append(f"ds_write_b128 {vr(6 + (r >> 1))}, {d} offset:{(r * 5 + n) * 1024}")
                        if len(pend) > 8:
                            e.lds(pend.pop(0), "dw")
        e.i("s_nop 0")
        for x in pend:
            e.lds(x, "dw")
        e.i(f"""
        s_lshl_b32 {sr(T1)}, {sr(S_WV)}, 10
        v_add_u32 v9, {sr(T1)}, {vr(A_L16)}
        v_add_u32 v10, 81920, v9
        v_mul_u32_u24 v11, 1280, v3
        v_add_u32 v11, v11, v2
        """)
        e.wait(vm="b2")
        for k in range(3):
            e.i(f"v_sub_f32 {vr(112 + k)}, 1.0, {vr(112 + k)}")
        e.wait(lg="all")
        e.i("s_barrier")
        self.stamp("dumped")
        for k in range(3):
            if k == 2:
                e.i(f"s_cmp_ge_u32 {sr(S_WV)}, 4\ns_cbranch_scc1 L_fin")
            if k:
                e.i("v_add_u32 v9, 8192, v9\nv_add_u32 v10, 8192, v10")
            b = 16 + 32 * (k & 1)
            for w in range(8):
                e.lds(f"ds_read_b128 {vr(b + 4 * w, 4)}, {vr(9 + (w >> 2))} offset:{(w & 3) * 20480}", f"rr{w}")
            for j in range(4):
                src = 106 + 2 * k + (j >> 1)
                e.i(f"v_and_b32 {vr(12 + j)}, 0xffff0000, {vr(src)}" if j & 1 else f"v_lshlrev_b32 {vr(12 + j)}, 16, {vr(src)}")
            for w in range(8):
                e.wait(lg=f"rr{w}")
                for j in range(4):
                    if w == 0:
                        e.i(f"v_fma_f32 {vr(12 + j)}, {vr(12 + j)}, {vr(112 + k)}, {vr(b + j)}")
                    else:
                        e.i(f"v_add_f32 {vr(12 + j)}, {vr(12 + j)}, {vr(b + 4 * w + j)}")
            if c.perturb:
                for j in range(4):
                    e.i(f"v_add_f32 {vr(12 + j)}, {f32(c.perturb / 1000.0)}, {vr(12 + j)}")
            e.i(f"""
            v_cvt_pk_bf16_f32 {vr(b)}, v12, v13
            v_cvt_pk_bf16_f32 {vr(b + 1)}, v14, v15
            buffer_store_dwordx2 {vr(b, 2)}, v11, {sr(R_OUT, 4)}, {sr(so[k])} offen
            """)
        e.label("L_fin")
        if c.dev:
            self.dev_dump()

    def dev_dump(self):
        e = self.e
        e.i(f"""
        s_waitcnt vmcnt(0)
        {"s_memrealtime" if self.c.rt else "s_memtime"} s[36:37]
        s_memrealtime s[12:13]
        s_lshl_b32 {sr(T0)}, s2, 3
        s_add_u32 {sr(T0)}, {sr(T0)}, {sr(S_WV)}
        s_lshl_b32 {sr(T0)}, {sr(T0)}, 7
        s_add_u32 {sr(T0)}, {sr(T0)}, {OFF_DEV}
        s_waitcnt lgkmcnt(0)
        s_mov_b64 exec, 1
        """)
        for k in range(12):
            e.i(f"v_mov_b32 v1, {sr(16 + 2 * k)}\nbuffer_store_dword v1, off, {sr(R_WS, 4)}, {sr(T0)} offset:{4 * k}")
        e.i(f"v_mov_b32 v1, s12\nbuffer_store_dword v1, off, {sr(R_WS, 4)}, {sr(T0)} offset:48")
        e.i(f"v_mov_b32 v1, {sr(S_SPIN)}\nbuffer_store_dword v1, off, {sr(R_WS, 4)}, {sr(T0)} offset:52")
        if self.c.enc >= 0:
            k = self.c.enc
            e.i(f"s_cmp_lg_u32 {sr(T0)}, {OFF_DEV + 296 * 128}\ns_cbranch_scc1 L_end")
            e.i("s_add_u32 s14, s38, 6000" if k == 11 else f"s_add_u32 s14, {sr(16 + 2 * k)}, 6000")
            e.i(f"""
            s_mov_b32 s15, 100000
            L_enc:
            s_memrealtime s[12:13]
            s_waitcnt lgkmcnt(0)
            s_sub_u32 s15, s15, 1
            s_cmp_eq_u32 s15, 0
            s_cbranch_scc1 L_end
            s_sub_u32 s13, s12, s14
            s_cmp_lt_i32 s13, 0
            s_cbranch_scc1 L_enc
            """)
        if self.c.dbgwg >= 0:
            e.i(f"s_cmp_lg_u32 {sr(T0)}, {OFF_DEV + self.c.dbgwg * 128}\ns_cbranch_scc1 L_end")
            for k in range(1, 11):
                e.i(f"s_sub_u32 s13, {sr(16 + 2 * k)}, s16\nv_mov_b32 v1, s13\nbuffer_store_dword v1, off, {sr(R_DBG, 4)}, 0 offset:{4 * k}")
            e.i(f"s_sub_u32 s13, s12, s38\nv_mov_b32 v1, s13\nbuffer_store_dword v1, off, {sr(R_DBG, 4)}, 0 offset:44")

    def build(self):
        e = self.e
        self.prologue()
        for x in self.deferred():
            x()
        self.biasq = self.bias_loads()
        if not self.c.biasq:
            for x in self.biasq:
                x()
        if self.c.smem:
            self.c.s_w1t = -3
            e.i(f"s_lshl3_add_u32 {sr(S_JST)}, s2, {sr(S_WV)}\ns_lshl_b32 {sr(S_JST)}, {sr(S_JST)}, 7")
            for x in self.smem_touch()[:self.c.smem0]:
                x()
        if self.c.s_w1t == -1:
            self.touch_w1()
        e.label("L_code0")
        e.i(f"s_cmp_eq_u32 {sr(S_SEC)}, 2\ns_cbranch_scc1 L_p1v")
        snap = e.snapshot()
        self.pass1(False)
        after = e.snapshot()
        e.i("s_branch L_p2")
        e.label("L_p1v")
        e.restore(snap)
        self.pass1(True)
        assert e.snapshot() == after
        main = e.lines
        for name, state, fn in (("L_p1z", self.snap_z, self.helper), ("L_p2g", after, self.gate)):
            e.lines = []
            e.label(name)
            e.restore(state)
            fn()
            self.cold.insert(0, "\n".join(e.lines))
        e.lines = main
        e.restore(after)
        e.label("L_p2")
        e.i(f"s_cmp_eq_u32 {sr(S_CG)}, 14\ns_cbranch_scc1 L_p2g")
        self.pass2()
        e.label("L_att")
        if self.c.stop:
            e.i("s_branch L_fin")
        self.attention()
        self.tail()
        e.label("L_end")
        e.i("s_endpgm")
        for blk in self.cold:
            e.i(blk)
        return e


HEADER = """; Fused gate + multi-head attention block + squared-ReLU FFN, one persistent launch (generated by gen/gen.py).
; @launch grid=(256,1,1) block=(512,1,1) lds=163840
.amdgcn_target "amdgcn-amd-amdhsa--gfx950"
.text
.globl {n}_kernel
.p2align 8
.type {n}_kernel,@function
{n}_kernel:
"""
FOOTER = """
.section .rodata,"a"
.p2align 6
.amdhsa_kernel {n}_kernel
  .amdhsa_next_free_vgpr 256
  .amdhsa_next_free_sgpr 102
  .amdhsa_accum_offset 256
  .amdhsa_group_segment_fixed_size 0
  .amdhsa_kernarg_size 96
  .amdhsa_user_sgpr_count 2
  .amdhsa_user_sgpr_kernarg_segment_ptr 1
  .amdhsa_system_sgpr_workgroup_id_x 1
  .amdhsa_float_denorm_mode_32 3
.end_amdhsa_kernel
"""


def generate(**kw):
    cfg = Cfg()
    for k, v in kw.items():
        assert hasattr(cfg, k), k
        setattr(cfg, k, v)
    e = Gen(cfg).build()
    errs = check_hazards(e.lines)
    if errs:
        for x in errs[:40]:
            print("HAZARD", x, file=sys.stderr)
        raise SystemExit(f"{len(errs)} hazards")
    return HEADER.format(n=NAME) + e.text() + "\n" + FOOTER.format(n=NAME)


if __name__ == "__main__":
    out = sys.argv[1]
    kw = {}
    for a in sys.argv[2:]:
        k, v = a.split("=")
        kw[k] = int(v)
    open(out, "w").write(generate(**kw))
```
